```python
import torch

def _softmax(x, axis=-1):
    return torch.softmax(x, dim=axis)
def _gelu(x):
    return torch.nn.functional.gelu(x, approximate="tanh")
def _silu(x):
    return torch.nn.functional.silu(x)
def _sigmoid(x):
    return torch.sigmoid(x)
def _layernorm(x, axis=-1, eps=1e-5):
    m = x.mean(dim=axis, keepdim=True)
    v = x.var(dim=axis, keepdim=True, unbiased=False)
    return (x - m) / torch.sqrt(v + eps)
def _scatter_add(tgt, idx, src, axis=0):
    return tgt.clone().index_add_(axis, idx, src)
def _segment_sum(src, seg, n):
    out = torch.zeros((n,) + src.shape[1:], dtype=src.dtype)
    return out.index_add_(0, seg, src)
def _pad(x, pw):
    flat = tuple(v for pair in reversed(pw) for v in pair)
    return torch.nn.functional.pad(x, flat)

kernel_name = 'sequential_preLN__grouped_kv_mqa__glu_gated_geglu__prompt'

def setup_inputs():

    _w = (lambda a: (lambda t: t.to(torch.bfloat16) if t.is_floating_point() else t)(torch.as_tensor(a)))
    def _A_setup():
        B, S, D, H = 1, 2048, 640, 32
        Dh = D // H
        return {
            "x": _w((lambda *s: torch.randn(*s, dtype=torch.bfloat16) * 0.05)(B, S, D)),
            "wq": _w((lambda *s: torch.randn(*s, dtype=torch.bfloat16) * 0.05)(D, H * Dh)),
            "wk": _w((lambda *s: torch.randn(*s, dtype=torch.bfloat16) * 0.05)(D, Dh)),
            "wv": _w((lambda *s: torch.randn(*s, dtype=torch.bfloat16) * 0.05)(D, Dh)),
            "wo": _w((lambda *s: torch.randn(*s, dtype=torch.bfloat16) * 0.05)(H * Dh, D)),
        }
    _A_in = _A_setup()

    def _B_setup():
        B, S, Dm, Df = 1, 2048, 640, 1536
        return {
            "x": _w((lambda *s: torch.randn(*s, dtype=torch.bfloat16) * 0.05)(B, S, Dm)),
            "w_gate": _w((lambda *s: torch.randn(*s, dtype=torch.bfloat16) * 0.8)(Dm, Df) * (Dm ** -0.5)),
            "w_up": _w((lambda *s: torch.randn(*s, dtype=torch.bfloat16) * 0.8)(Dm, Df) * (Dm ** -0.5)),
            "w_down": _w((lambda *s: torch.randn(*s, dtype=torch.bfloat16) * 0.8)(Df, Dm) * (Df ** -0.5)),
        }
    _B_in = _B_setup()

    return {
        "A_x": _A_in["x"],
        "A_wq": _A_in["wq"],
        "A_wk": _A_in["wk"],
        "A_wv": _A_in["wv"],
        "A_wo": _A_in["wo"],
        "B_x": _B_in["x"],
        "B_w_gate": _B_in["w_gate"],
        "B_w_up": _B_in["w_up"],
        "B_w_down": _B_in["w_down"],
    }

def reference(A_x, A_wq, A_wk, A_wv, A_wo, B_x, B_w_gate, B_w_up, B_w_down):
    def _A_ref(x, wq, wk, wv, wo):
        B, S, D = x.shape
        H = 32
        Dh = D // H
        q = (lambda x, *d: x.permute(*d))((x @ wq).reshape(B, S, H, Dh), 0, 2, 1, 3)
        k = x @ wk
        v = x @ wv
        scores = torch.einsum("bhqd,bkd->bhqk", q, k) * (Dh ** -0.5)
        p = _softmax(scores, axis=-1)
        o = torch.einsum("bhqk,bkd->bhqd", p, v)
        return (lambda x, *d: x.permute(*d))(o, 0, 2, 1, 3).reshape(B, S, H * Dh) @ wo

    def _B_ref(x, w_gate, w_up, w_down):
        g = torch.einsum("bsd,df->bsf", x, w_gate)
        u = torch.einsum("bsd,df->bsf", x, w_up)
        h = _gelu(g) * u
        return torch.einsum("bsf,fd->bsd", h, w_down)

    x = A_x
    h = x + _A_ref(_layernorm(x, axis=-1), A_wq, A_wk, A_wv, A_wo)
    h2 = h + _B_ref(_layernorm(h, axis=-1), B_w_gate, B_w_up, B_w_down)
    return h2
```

```python
import re
TRANS = ("v_exp_f32","v_log_f32","v_rcp_f32","v_rsq_f32","v_sqrt_f32","v_sin_f32","v_cos_f32","v_rcp_iflag_f32")
def regs(tok):
    tok = tok.strip()
    if tok.startswith("-"): tok = tok[1:]
    if tok.startswith("|"): tok = tok.strip("|")
    m = re.fullmatch(r"([vs])\[(\d+):(\d+)\]", tok)
    if m: return {(m.group(1), i) for i in range(int(m.group(2)), int(m.group(3))+1)}
    m = re.fullmatch(r"([vs])(\d+)", tok)
    if m: return {(m.group(1), int(m.group(2)))}
    if tok == "vcc": return {("s",106),("s",107)}
    if tok == "vcc_lo": return {("s",106)}
    if tok == "vcc_hi": return {("s",107)}
    if tok == "exec": return {("s",126),("s",127)}
    if tok == "m0": return {("s",124)}
    return set()
class I:
    def __init__(s, text):
        s.text = text
        t = text.split(";")[0].strip()
        p = t.split(None, 1); s.mn = p[0]
        ops = []
        if len(p) > 1:
            ops = [o.strip() for o in p[1].split(",")]
            last = ops[-1].split()
            if last: ops[-1] = last[0]
            s.mods = " ".join(last[1:])
        else: s.mods = ""
        s.ops = ops
        mn = s.mn
        s.mfma = mn.startswith("v_mfma") or mn.startswith("v_smfmac")
        s.valu = mn.startswith("v_") and not s.mfma
        s.salu = mn.startswith("s_")
        s.vmem = mn.startswith("buffer_") or mn.startswith("global_")
        s.ds = mn.startswith("ds_")
        s.trans = any(mn.startswith(x) for x in TRANS)
        s.dot = mn.startswith("v_dot")
        s.w = set(); s.r = set(); s.ab = set(); s.c = set(); s.sdata = set()
        R = [regs(o) for o in ops]
        U = lambda L: set().union(*L) if L else set()
        if s.mfma:
            s.w = R[0]; s.passes = 4 if "16x16" in mn else 8
            if mn.startswith("v_smfmac"): s.ab = R[1]|R[2]|R[3]; s.c = R[0]
            else: s.ab = R[1]|R[2]; s.c = R[3]
            s.r = s.ab | s.c
        elif s.valu:
            if mn.startswith("v_cmp"):
                s.w = R[0]; s.r = U(R[1:])
            elif mn.startswith("v_permlane") and "swap" in mn:
                s.w = R[0]|R[1]; s.r = R[0]|R[1]
            elif "_co_" in mn:
                s.w = R[0]|R[1]; s.r = U(R[2:])
            else:
                s.w = R[0]; s.r = U(R[1:])
                if mn.startswith("v_fmac") or mn.startswith("v_dot2c") or mn.startswith("v_writelane") : s.r |= R[0]
                if mn.startswith("v_cndmask") and len(ops) == 3: s.r |= regs("vcc")
        elif s.vmem:
            lds = " lds" in (" " + s.mods)
            if "load" in mn and not lds: s.w = R[0]; s.r = U(R[1:])
            else:
                s.r = U(R)
                if lds: s.r |= regs("m0")
                if "store" in mn and ("x4" in mn or "x3" in mn):
                    s.sdata = R[0] if mn.startswith("buffer") else R[1]
            s.ldsdma = lds
        elif s.ds:
            if "read" in mn or "bpermute" in mn or "swizzle" in mn or "rtn" in mn: s.w = R[0]; s.r = U(R[1:])
            else: s.r = U(R)
        elif s.salu:
            if mn.startswith("s_cmp") or mn.startswith("s_cbranch") or mn in ("s_waitcnt","s_nop","s_barrier","s_branch","s_setprio","s_sleep","s_endpgm") or mn.startswith("s_bitcmp"):
                s.r = U(R)
            else: s.w = R[0]; s.r = U(R[1:])
        s.states = (int(ops[0], 0) + 1) if mn == "s_nop" else 1
def need(p, c):
    n = 0
    vw = {x for x in p.w if x[0] == "v"}; sw = {x for x in p.w if x[0] == "s"}
    if p.valu:
        if c.mfma and (vw & c.r): n = max(n, 3 if p.dot else 2)
        if p.trans and c.valu and not c.trans and (vw & (c.r|c.w)): n = max(n, 1)
        if p.trans and (c.vmem or c.ds) and (vw & c.r): n = max(n, 1)
        if p.dot and (vw & (c.r | c.w)):
            if c.mn == p.mn and not (vw & (regs(c.ops[1]) | regs(c.ops[2]))): pass
            else: n = max(n, 3)
        if c.vmem and (sw & c.r): n = max(n, 5)
        if c.valu and (sw & c.r): n = max(n, 4 if c.mn.startswith(("v_readlane","v_writelane")) else 2)
        if c.salu and (sw & c.r): n = max(n, 1)
        if c.mn.startswith(("v_readfirstlane","v_readlane")) and (vw & c.r): n = max(n, 1)
        if (c.mn.startswith("v_permlane") or "dpp" in c.mn or "row_" in c.mods or "quad_perm" in c.mods) and (vw & c.r): n = max(n, 2)
        if ("op_sel" in p.mods or "sdwa" in p.mn) and c.valu and (vw & (c.r|c.w)): n = max(n, 1)
        if c.mn.startswith("s_cbranch_vcc") and (sw & regs("vcc")): n = max(n, 5)
    if p.mfma:
        big = 8 if p.passes == 4 else 12
        if c.mfma:
            if p.w & c.ab: n = max(n, big)
            if p.w & c.c:
                if not (p.w == c.c and p.passes == c.passes): n = max(n, big - 2)
            elif p.w & c.w: n = max(n, big - 2)
        elif (c.valu or c.vmem or c.ds) and (p.w & (c.r | c.w)): n = max(n, big)
        if c.valu and (p.c & c.w): n = max(n, 3 if p.passes == 4 else 7)
    if p.sdata and (p.sdata & c.w): n = max(n, 2)
    if p.salu and ("s",124) in p.w and c.vmem and getattr(c, "ldsdma", False): n = max(n, 1)
    return n
class Asm:
    def __init__(s): s.out = []; s.hists = [[]]; s.nops = 0; s.snap = {}
    def raw(s, t): s.out.append(t)
    def label(s, l):
        s.out.append(l + ":")
        s.hists += s.snap.pop(l, [])
    def _push(s, c):
        for h in s.hists: h.append(c)
        keep = []
        for h in s.hists:
            t = h[-14:]
            if not any(len(t) == len(k) and all(a is b for a, b in zip(t, k)) for k in keep): keep.append(t)
        s.hists = keep
    def __call__(s, text):
        for line in text.split("\n"):
            line = line.strip()
            if not line or line.startswith(";"): continue
            if line.endswith(":"): s.label(line[:-1]); continue
            c = I(line); req = 0
            for h in s.hists:
                d = 0
                for p in reversed(h):
                    req = max(req, need(p, c) - d)
                    d += p.states
                    if d >= 12: break
            if req > 0:
                s.nops += req
                nop = I(f"s_nop {req-1}"); s._push(nop); s.out.append("    " + nop.text)
            s._push(c); s.out.append("    " + line)
            if c.mn.startswith("s_cbranch") or c.mn == "s_branch":
                s.snap.setdefault(c.ops[0], []).extend([list(h) for h in s.hists])
                if c.mn == "s_branch": s.hists = [[]]
    def flush(s, n=12):
        s(f"s_nop {n-1}")
    def text(s): return "\n".join(s.out) + "\n"
```

```python
import sys, math, struct
from asmlib import Asm
NAME = "sequential_preLN__grouped_kv_mqa__glu_gated_geglu__prompt"
WS_F1, WS_F2, WS_F3, WS_F4 = 0x1000, 0x9000, 0xB000, 0xD000
WS_KV, WS_HS, WS_O, WS_H, WS_HP, WS_DBG, WS_SIZE = 0x10000, 0x40000, 0x80000, 0x300000, 0x580000, 0xC00000, 0x1000000
def f2u(x): return "0x%08x" % struct.unpack("<I", struct.pack("<f", x))[0]
def vr(a, n): return f"v[{a}:{a+n-1}]" if n > 1 else f"v{a}"

def gen(diag=False, force_slow=False, force_fb=False, opt=None):
    opt = opt or {}
    A = Asm()
    X, WQ, WKV, WO, GU, WD, OUT, WS = ("s[8:11]","s[12:15]","s[16:19]","s[20:23]","s[24:27]","s[28:31]","s[32:35]","s[36:39]")
    sW, sXCD, sIDX, sB, sNB = "s3","s4","s5","s6","s7"
    sT, sXCC, sFAST, sTT, sKH, sTH, sHD, sKQ = "s40","s41","s42","s43","s44","s45","s46","s47"
    nstamp = [0]
    def stamp():
        if not diag: return
        i = nstamp[0]; nstamp[0] += 1
        A(f"s_memtime s[82:83]\ns_waitcnt lgkmcnt(0)\ns_mov_b32 s{84+i}, s82")
    GUP, WDP, WOFF, GOFF, XR, vL = 0, 60, 160, 165, 168, 174
    vT1 = 175
    lab = [0]
    def L(p):
        lab[0] += 1; return f"L_{p}{lab[0]}"
    def poll(vaddr, vdst, soff="0", x2=False):
        l0, l1 = L("poll"), L("pdone")
        A(f"s_mov_b32 s78, 0")
        A(f"{l0}:")
        A(f"buffer_load_dword{'x2' if x2 else ''} {vr(vdst, 2 if x2 else 1)}, v{vaddr}, {WS}, {soff} offen sc1")
        A(f"s_add_u32 s78, s78, 1\ns_cmp_gt_u32 s78, 0x8000\ns_cbranch_scc1 {l1}")
        A(f"s_waitcnt vmcnt(0)\nv_cmp_ne_u32 vcc, {sT}, v{vdst}\ns_cbranch_vccnz {l0}")
        A(f"{l1}:")
        A("s_waitcnt vmcnt(0)")
    def publish(stores, flagaddr_s):
        ls, le = L("slow"), L("pubend")
        A(f"v_mov_b32 v{vT1}, {sT}")
        A(f"s_cmp_eq_u32 {sFAST}, 0\ns_cbranch_scc1 {ls}")
        for sc in ("", " sc1"):
            for st in stores:
                if st.startswith("buffer_store"): A(st + sc)
                else: A(st.replace("@", "S" if sc else "F"))
            A("s_waitcnt vmcnt(0)\ns_mov_b64 exec, 1")
            A(f"buffer_store_dword v{vT1}, off, {WS}, {flagaddr_s}{sc}")
            A("s_mov_b64 exec, -1")
            if not sc: A(f"s_branch {le}\n{ls}:")
        A(f"{le}:")

    A(f"""
    s_cmp_ge_u32 s2, 256
    s_cbranch_scc1 L_exit
    s_load_dwordx16 s[52:67], s[0:1], 0
    s_load_dwordx8 s[68:75], s[0:1], 64
    s_getpc_b64 s[80:81]
    L_pc:
    v_lshrrev_b32 v1, 6, v0
    v_and_b32 v{vL}, 63, v0
    v_readfirstlane_b32 {sW}, v1
    s_and_b32 {sXCD}, s2, 7
    s_lshr_b32 {sIDX}, s2, 3
    s_lshr_b32 {sB}, {sIDX}, 3
    s_and_b32 {sNB}, {sIDX}, 7
    s_lshl_b32 s78, {sXCD}, 2
    s_add_u32 {sB}, {sB}, s78
    s_getreg_b32 {sXCC}, hwreg(HW_REG_XCC_ID, 0, 4)
    s_lshr_b32 {sTT}, {sW}, 1
    s_and_b32 {sKH}, {sW}, 1
    s_lshr_b32 {sTH}, {sW}, 2
    s_and_b32 {sHD}, {sW}, 3
    s_and_b32 {sKQ}, {sTT}, 1
    s_lshl_b32 s78, {sKH}, 1
    s_add_u32 {sKQ}, {sKQ}, s78
    """)
    stamp()
    A(f"""
    s_lshl_b32 s78, {sB}, 2
    s_add_u32 s78, s78, {sTT}
    s_mul_i32 s78, s78, {16*1280}
    s_lshl_b32 s79, {sKH}, 7
    s_add_u32 s78, s78, s79
    v_lshrrev_b32 v2, 3, v{vL}
    v_and_b32 v3, 7, v{vL}
    v_mul_u32_u24 v4, 1280, v2
    v_lshl_add_u32 v4, v3, 4, v4
    v_add_u32 v200, s78, v4
    v_lshlrev_b32 v201, 7, v0
    v_min_u32 v201, L_end-L_pc-4, v201
    s_waitcnt lgkmcnt(0)
    s_mov_b32 s8, s52
    s_mov_b32 s9, s53
    s_mov_b32 s10, 2621440
    s_mov_b32 s11, 0x00020000
    s_mov_b32 s36, s74
    s_mov_b32 s37, s75
    s_mov_b32 s38, {WS_SIZE}
    s_mov_b32 s39, 0x00020000
    s_movk_i32 s79, 10240
    buffer_load_dword v202, off, {WS}, 0 sc1
    """)
    for i in range(5):
        A(f"buffer_load_dwordx4 {vr(8*i,4)}, v200, {X}, 0 offen offset:{256*i}")
        A(f"buffer_load_dwordx4 {vr(8*i+4,4)}, v200, {X}, s79 offen offset:{256*i}")
    A(f"""
    s_mov_b32 s12, s54
    s_mov_b32 s13, s55
    s_mov_b32 s14, 819200
    s_mov_b32 s15, 0x00020000
    s_cmp_lt_u32 {sNB}, 4
    s_cselect_b32 s16, s56, s58
    s_cselect_b32 s17, s57, s59
    s_mov_b32 s18, 25600
    s_mov_b32 s19, 0x00020000
    """)
    A(f"s_mul_i32 s78, {sNB}, 160")
    for j in range(5):
        A(f"""
        v_add_u32 v204, {64*j}, v{vL}
        v_mul_u32_u24 v205, 6554, v204
        v_lshrrev_b32 v205, 16, v205
        v_mul_u32_u24 v206, 10, v205
        v_sub_u32 v206, v204, v206
        v_and_b32 v207, 3, v205
        v_bfe_u32 v208, v205, 2, 2
        v_lshrrev_b32 v209, 4, v205
        v_lshl_add_u32 v207, v208, 3, v207
        v_lshl_add_u32 v207, v209, 2, v207
        v_mul_u32_u24 v207, 1280, v207
        v_lshl_add_u32 v207, v206, 4, v207
        v_add_u32 v{WOFF+j}, s78, v207
        """)
    LWKV, LXS, LST, LKX, LKS, LKF = 102400, 128000, 160768, 161792-1024+1024, 0, 0
    LST, LKX = 160768, 161792
    A(f"v_lshlrev_b32 v203, 4, v{vL}")
    lk1, lj = L("kh1"), L("j")
    A(f"s_cmp_eq_u32 {sKH}, 1\ns_cbranch_scc1 {lk1}")
    for j in range(7):
        if j < 6: A(f"s_add_u32 s78, {sTT}, {4*j}\ns_lshl_b32 s78, s78, 10")
        else: A(f"s_movk_i32 s78, {24*1024}")
        A(f"s_add_u32 m0, s78, {LWKV}")
        A(f"buffer_load_dwordx4 v203, {WKV}, s78 offen lds")
    A(f"global_load_dword v204, v201, s[80:81]")
    A(f"s_waitcnt vmcnt(8)\ns_branch {lj}\n{lk1}:")
    for i in range(5):
        A(f"s_add_u32 s78, {sTT}, {4*i}\ns_mul_i32 s79, s78, 5120\ns_mul_i32 s78, s78, 40960")
        for j in range(5):
            A(f"s_add_u32 m0, s79, {1024*j}")
            A(f"buffer_load_dwordx4 v{WOFF+j}, {WQ}, s78 offen lds")
        if i == 0: A(f"global_load_dword v204, v201, s[80:81]")
    A(f"s_waitcnt vmcnt(26)\n{lj}:")
    A(f"""
    s_mov_b32 s20, s60
    s_mov_b32 s21, s61
    s_mov_b32 s22, 819200
    s_mov_b32 s23, 0x00020000
    s_cmp_lt_u32 {sW}, 4
    s_cselect_b32 s24, s64, s66
    s_cselect_b32 s25, s65, s67
    s_mov_b32 s26, 1966080
    s_mov_b32 s27, 0x00020000
    s_mov_b32 s28, s68
    s_mov_b32 s29, s69
    s_mov_b32 s30, 1966080
    s_mov_b32 s31, 0x00020000
    s_mov_b32 s32, s70
    s_mov_b32 s33, s71
    s_mov_b32 s34, 2621440
    s_mov_b32 s35, 0x00020000
    v_readfirstlane_b32 {sT}, v202
    s_add_u32 {sT}, {sT}, 0x9E3779B9
    """)
    stamp()
    A(f"""
    s_lshl_b32 s78, {sW}, 12
    s_add_u32 s78, s78, {LXS}
    v_lshrrev_b32 v209, 3, v{vL}
    v_lshrrev_b32 v210, 4, v{vL}
    v_and_b32 v211, 7, v{vL}
    v_xor_b32 v211, v211, v210
    v_lshlrev_b32 v211, 4, v211
    v_lshl_add_u32 v205, v209, 7, v211
    v_add_u32 v205, s78, v205
    v_xor_b32 v206, 64, v205
    v_and_b32 v212, 15, v{vL}
    v_lshrrev_b32 v211, 1, v212
    v_xor_b32 v211, v211, v210
    v_lshlrev_b32 v211, 4, v211
    v_lshl_add_u32 v207, v212, 7, v211
    v_add_u32 v207, s78, v207
    v_xor_b32 v208, 64, v207
    v_mov_b32 v44, 0x3f803f80
    v_mov_b32 v45, 0x3f803f80
    v_mov_b32 v46, 0x3f803f80
    v_mov_b32 v47, 0x3f803f80
    """)
    for i in range(5):
        o = 2048*(i & 1)
        A(f"ds_write_b128 v205, {vr(8*i,4)} offset:{o}")
        A(f"ds_write_b128 v206, {vr(8*i+4,4)} offset:{o+1024}")
        A(f"ds_read_b128 {vr(8*i,4)}, v207 offset:{o}")
        A(f"ds_read_b128 {vr(8*i+4,4)}, v208 offset:{o}")
    A(f"""
    s_lshl_b32 s78, {sTT}, 8
    s_add_u32 s78, s78, {LST}
    v_lshl_add_u32 v213, v212, 3, s78
    s_lshl_b32 s79, {sKH}, 7
    v_add_u32 v214, s79, v213
    s_mov_b32 s48, 0xAAAAAAAA
    s_mov_b32 s49, 0xAAAAAAAA
    s_mov_b32 s50, 0xCCCCCCCC
    s_mov_b32 s51, 0xCCCCCCCC
    """)
    for i in range(5):
        A(f"s_waitcnt lgkmcnt({min(15, 4*(4-i))})")
        for s in range(2):
            x = vr(8*i+4*s, 4); first = (i == 0 and s == 0)
            A(f"v_mfma_f32_16x16x32_bf16 v[48:51], v[44:47], {x}, {'0' if first else 'v[48:51]'}")
            A(f"v_mfma_f32_16x16x32_bf16 v[52:55], {x}, {x}, {'0' if first else 'v[52:55]'}")
    A(f"""
    v_mov_b32 v216, 0
    s_and_b32 s78, {sW}, 6
    s_lshl_b32 s78, s78, 12
    s_add_u32 s78, s78, {LXS+1024}
    v_mov_b32 v215, s78
    v_cndmask_b32 v52, v52, v53, s[48:49]
    v_cndmask_b32 v54, v54, v55, s[48:49]
    v_cndmask_b32 v49, v52, v54, s[50:51]
    s_mov_b32 exec_lo, 0x00F0000F
    s_mov_b32 exec_hi, 0xF0000F00
    ds_write_b64 v214, v[48:49]
    s_mov_b64 exec, -1
    """)
    l1 = L("b1")
    A(f"s_cmp_eq_u32 {sKH}, 1\ns_cbranch_scc1 {l1}\nds_write_b32 v215, v216\ns_waitcnt vmcnt(0)\n{l1}:")
    A("s_waitcnt lgkmcnt(0)\ns_barrier")
    stamp()
    A(f"""
    ds_read2_b64 v[48:51], v213 offset1:16
    v_bfe_u32 v209, v{vL}, 2, 2
    v_and_b32 v211, 3, v{vL}
    v_lshl_add_u32 v217, v210, 3, v209
    v_mul_u32_u24 v217, 40, v217
    v_lshl_add_u32 v217, v211, 3, v217
    s_mul_i32 s78, {sKH}, 2560
    s_add_u32 s78, s78, {LWKV}
    v_add_u32 v217, s78, v217
    v_lshrrev_b32 v218, 2, v{vL}
    v_mul_u32_u24 v218, 160, v218
    v_lshl_add_u32 v218, v211, 3, v218
    s_mul_i32 s78, {sKH}, 10240
    v_add_u32 v218, s78, v218
    v_add_u32 v219, 61440, v218
    s_waitcnt lgkmcnt(0)
    v_add_f32 v48, v48, v50
    v_add_f32 v49, v49, v51
    v_mul_f32 v48, {f2u(1/640)}, v48
    v_mul_f32 v49, {f2u(1/640)}, v49
    v_fma_f32 v49, -v48, v48, v49
    v_max_f32 v49, 0, v49
    v_add_f32 v49, {f2u(1e-5)}, v49
    v_rsq_f32 v50, v49
    v_mul_f32 v51, v48, v50
    s_mov_b32 s79, 0xffff0000
    """)
    def normalise(r):
        A(f"""
        v_lshlrev_b32 v56, 16, v{r}
        v_and_b32 v57, s79, v{r}
        v_fma_f32 v56, v56, v50, -v51
        v_fma_f32 v57, v57, v50, -v51
        v_cvt_pk_bf16_f32 v{r}, v56, v57
        """)
    lkv, lq = L("kv"), L("q")
    A(f"s_and_b32 s78, {sNB}, 3\ns_cmp_eq_u32 s78, {sTT}\ns_cbranch_scc1 {lkv}")
    for r in range(40): normalise(r)
    A(f"s_branch {lq}\n{lkv}:")
    A("s_setprio 2")
    KF = 60
    for st in range(10):
        o = (st >> 1)*5120 + (st & 1)*1280
        for tl in range(2):
            for hf in range(2):
                A(f"ds_read_b64_tr_b16 {vr(KF+8*st+4*tl+2*hf,2)}, v217 offset:{o+hf*160+tl*32}")
    for r in range(40): normalise(r)
    lv, lx = L("v"), L("kvx")
    A(f"s_waitcnt lgkmcnt(0)\ns_cmp_ge_u32 {sNB}, 4\ns_cbranch_scc1 {lv}")
    for isv in range(2):
        for st in range(10):
            for tl in range(2):
                a, b = vr(KF+8*st+4*tl,4), vr(4*st,4)
                if isv: a, b = b, a
                d = vr(140+4*tl, 4)
                A(f"v_mfma_f32_16x16x32_bf16 {d}, {a}, {b}, {'0' if st == 0 else d}")
        A(f"s_lshl_b32 s78, {sW}, 12\ns_add_u32 s78, s78, {LXS}")
        A(f"v_lshrrev_b32 v222, 5, v{vL}\nv_and_b32 v223, 1, v210")
        if not isv:
            A(f"""
            v_lshlrev_b32 v220, 8, v222
            v_lshl_add_u32 v220, v212, 4, v220
            v_lshl_add_u32 v220, v223, 3, v220
            v_add_u32 v220, s78, v220
            v_lshl_add_u32 v221, v212, 3, s78
            v_add_u32 v221, 512, v221
            s_mov_b64 s[48:49], 0xffff
            s_branch {lx}
            {lv}:
            """)
        else:
            A(f"""
            v_mul_u32_u24 v220, 320, v222
            v_lshl_add_u32 v220, v212, 4, v220
            v_lshl_add_u32 v220, v223, 3, v220
            v_add_u32 v220, s78, v220
            v_add_u32 v221, 256, v220
            s_mov_b32 s48, 0x000f000f
            s_mov_b32 s49, 0x000f000f
            """)
    lk0, lsp, lsd = L("kv0"), L("spin"), L("spind")
    A(f"""
    {lx}:
    v_add_u32 v224, {LKX}, v203
    s_cmp_eq_u32 {sKH}, 0
    s_cbranch_scc1 {lk0}
    v_mov_b32 v216, 1
    ds_write_b128 v224, v[140:143]
    ds_write_b128 v224, v[144:147] offset:1024
    ds_write_b32 v215, v216
    s_setprio 0
    s_branch {lq}
    {lk0}:
    s_mov_b32 s79, 0
    {lsp}:
    ds_read_b32 v216, v215
    s_add_u32 s79, s79, 1
    s_cmp_gt_u32 s79, 0x40000
    s_cbranch_scc1 {lsd}
    s_waitcnt lgkmcnt(0)
    v_cmp_ne_u32 vcc, 1, v216
    s_cbranch_vccnz {lsp}
    {lsd}:
    ds_read_b128 v[148:151], v224
    ds_read_b128 v[152:155], v224 offset:1024
    v_add_u32 v225, s78, v203
    s_lshl_b32 s78, {sB}, 2
    s_add_u32 s78, s78, {sTT}
    s_mul_i32 s78, s78, 1280
    s_lshr_b32 s79, {sNB}, 2
    s_mul_i32 s79, s79, 640
    s_add_u32 s78, s78, s79
    s_add_u32 s78, s78, {WS_KV}
    s_lshl_b32 s79, {sXCD}, 5
    s_add_u32 s79, s79, {sIDX}
    s_lshl_b32 s79, s79, 7
    s_add_u32 s79, s79, {WS_F1}
    s_waitcnt lgkmcnt(0)
    """)
    for r in range(8): A(f"v_add_f32 v{140+r}, v{140+r}, v{148+r}")
    for r in range(4): A(f"v_cvt_pk_bf16_f32 v{148+r}, v{140+2*r}, v{141+2*r}")
    A(f"""
    ds_write_b64 v220, v[148:149]
    s_mov_b64 exec, s[48:49]
    ds_write_b64 v221, v[150:151]
    s_mov_b32 exec_lo, -1
    s_mov_b32 exec_hi, 0xff
    ds_read_b128 v[152:155], v225
    v_mov_b32 v156, {sT}
    v_mov_b32 v157, {sXCC}
    s_waitcnt lgkmcnt(0)
    buffer_store_dwordx4 v[152:155], v203, {WS}, s78 offen sc1
    s_waitcnt vmcnt(0)
    s_mov_b64 exec, 1
    buffer_store_dwordx2 v[156:157], off, {WS}, s79 sc1
    s_mov_b64 exec, -1
    s_setprio 0
    {lq}:
    """)
    stamp()

    def gemm_tk(acc, ring, nring, bfrag, a0, a1, pre):
        def rd(st, ct):
            i, s = st >> 1, st & 1
            base, o = (a0, i*20480) if i < 3 else (a1, (i-3)*20480)
            r = ring + 20*(st % nring) + 4*ct
            for hf in range(2):
                A(f"ds_read_b64_tr_b16 {vr(r+2*hf,2)}, v{base} offset:{o+s*5120+hf*2560+ct*32}")
        return rd
    ACC, RING = 40, 60
    rd = gemm_tk(ACC, RING, 4, 0, 218, 219, None)
    for grp, (s0, s1) in enumerate(((0,4),(4,8),(8,10))):
        lb = L("st")
        A(f"s_cmp_eq_u32 {sKH}, 0\ns_cbranch_scc1 {lb}\ns_waitcnt vmcnt({(15,5,0)[grp]})\n{lb}:\ns_barrier")
        for ct in range(5): rd(s0, ct)
        for st in range(s0, s1):
            for ct in range(5):
                more = st+1 < s1
                if more: rd(st+1, ct)
                A(f"s_waitcnt lgkmcnt({10 if more else 2*(4-ct)})")
                d = vr(ACC+4*ct,4)
                A(f"v_mfma_f32_16x16x32_bf16 {d}, {vr(RING+20*(st%4)+4*ct,4)}, {vr(4*st,4)}, {'0' if st == 0 else d}")
    LQP = 102400
    A(f"""
    s_lshl_b32 s78, {sTT}, 4
    v_add_u32 v220, s78, v212
    v_mul_u32_u24 v220, 336, v220
    v_lshl_add_u32 v220, v210, 4, v220
    s_mul_i32 s78, {sKH}, 21504
    s_add_u32 s78, s78, {LQP}
    v_add_u32 v220, s78, v220
    v_and_b32 v221, 31, v{vL}
    v_lshrrev_b32 v222, 5, v{vL}
    s_lshl_b32 s78, {sTH}, 5
    v_add_u32 v223, s78, v221
    v_mul_u32_u24 v223, 336, v223
    s_mul_i32 s78, {sHD}, 80
    s_add_u32 s78, s78, {LQP}
    v_add_u32 v223, s78, v223
    v_lshl_add_u32 v224, v222, 5, v223
    """)
    for ct in range(5): A(f"ds_write_b128 v220, {vr(ACC+4*ct,4)} offset:{64*ct}")
    A("s_waitcnt lgkmcnt(0)\ns_barrier")
    stamp()
    O, SA, SB, KM, KT, V0, V1, QM, QT, aK, aT, aV, vIDX = 176, 192, 208, 224, 228, 230, 234, 238, 242, 244, 245, 246, 247
    for p in range(2):
        A(f"ds_read_b128 {vr(60+12*p,4)}, v224 offset:{21504*p}")
        A(f"ds_read_b128 {vr(64+12*p,4)}, v224 offset:{21504*p+16}")
        A(f"ds_read_b128 {vr(68+12*p,4)}, v223 offset:{21504*p+64}")
    A(f"""
    s_add_u32 s78, {sXCD}, {sW}
    s_and_b32 s78, s78, 7
    s_lshl_b32 s78, s78, 12
    s_add_u32 s78, s78, {WS_F1}
    v_lshl_add_u32 v248, v221, 7, s78
    s_lshl_b32 s78, {sXCD}, 12
    s_add_u32 s78, s78, {WS_F1+4}
    v_lshl_add_u32 v249, v221, 7, s78
    v_bfe_u32 v250, v{vL}, 4, 1
    v_mul_u32_u24 v250, 1280, v250
    v_lshl_add_u32 v{aT}, v212, 3, v250
    v_add_u32 v{aT}, 512, v{aT}
    v_lshl_add_u32 v{aK}, v212, 4, v250
    v_lshl_add_u32 v{aK}, v222, 8, v{aK}
    v_and_b32 v250, 3, v{vL}
    v_bfe_u32 v251, v{vL}, 2, 1
    v_bfe_u32 v252, v{vL}, 3, 1
    v_lshl_add_u32 v253, v251, 3, v250
    v_lshl_add_u32 v253, v252, 2, v253
    s_and_b32 s78, {sHD}, 1
    s_lshl_b32 s79, s78, 2
    v_add_u32 v253, s79, v253
    s_lshl_b32 s79, s78, 4
    s_sub_u32 s79, 16, s79
    v_add_u32 v250, s79, v250
    v_cmp_gt_u32 vcc, 16, v221
    v_mul_u32_u24 v251, 20, v222
    v_cndmask_b32 v253, v250, v253, vcc
    v_add_u32 v253, v253, v251
    v_lshlrev_b32 v{aV}, 4, v253
    v_add_u32 v{aV}, 640, v{aV}
    v_mov_b32 v{vIDX}, 0xDDDDDDDD
    s_mov_b32 s76, 0x000fffff
    s_mov_b32 s77, 0x000fffff
    s_mov_b32 s48, 0x01100000
    s_mov_b32 s49, 0x01100000
    v_mov_b32 v250, 0x3f803f80
    """)
    for r in range(8): A(f"v_cndmask_b32 v{V0+r}, 0, v250, s[48:49]")
    for r in range(16): A(f"v_mov_b32 v{O+r}, 0")
    QS = f2u(20**-0.5 * math.log2(math.e))
    A(f"s_mov_b32 s79, {QS}\ns_waitcnt lgkmcnt(0)")
    for r in range(12): A(f"v_add_f32 v{60+r}, v{60+r}, v{72+r}")
    for r in range(12): A(f"v_mul_f32 v{60+r}, s79, v{60+r}")
    for r in range(6): A(f"v_cvt_pk_bf16_f32 v{QM+r}, v{60+2*r}, v{61+2*r}")
    A(f"""
    s_mov_b32 exec_lo, 0
    v_mov_b32 v{QT}, 0
    v_mov_b32 v{QT+1}, 0
    s_mov_b64 exec, -1
    """)
    A(f"s_mul_i32 s78, {sIDX}, 96\ns_mul_i32 s79, {sHD}, 98304\ns_add_u32 s78, s78, s79")
    for i in range(3):
        A(f"""
        v_add_u32 v250, {64*i}, v{vL}
        v_mul_u32_u24 v251, 10923, v250
        v_lshrrev_b32 v251, 16, v251
        v_mul_u32_u24 v252, 6, v251
        v_sub_u32 v252, v250, v252
        v_mul_u32_u24 v251, 3072, v251
        v_lshl_add_u32 v251, v252, 4, v251
        v_add_u32 v{GOFF+i}, s78, v251
        """)
    A(f"v_lshlrev_b32 v254, 4, v{vL}\nv_add_u32 v254, {WS_KV}, v254")
    poll(248, 250)
    A("s_barrier")
    stamp()
    A(f"s_lshl_b32 s52, {sW}, 10\ns_mul_i32 s53, {sXCD}, 20480\ns_add_u32 s53, s53, s52")
    for j in range(20):
        A(f"s_add_u32 m0, s52, {8192*j}")
        A(f"buffer_load_dwordx4 v254, {WS}, s53 offen sc1 lds")
        if j == 2: A(f"buffer_load_dword v255, v249, {WS}, 0 offen sc1")
        if j < 19: A(f"s_add_u32 s53, s53, 8192\ns_sub_u32 s54, s53, 163840\ns_cmp_ge_u32 s53, 163840\ns_cselect_b32 s53, s54, s53")
    A(f"s_mul_i32 s55, {sKQ}, 12\ns_add_u32 s55, s55, {sTH}\ns_mul_i32 s55, s55, 40960")
    extra = {t: [] for t in range(64)}
    park = []
    for p in range(5):
        for i in range(3):
            park.append(f"s_mov_b32 s56, {p*4*98304}\nbuffer_load_dwordx4 {vr(GUP+12*p+4*i,4)}, v{GOFF+i}, {GU}, s56 offen")
    for p in range(5):
        for j in range(5):
            park.append(f"s_add_u32 s56, s55, {(p+1)*2*40960}\nbuffer_load_dwordx4 {vr(WDP+20*p+4*j,4)}, v{WOFF+j}, {WD}, s56 offen")
    for n, x in enumerate(park): extra[n].append(x)
    for p in range(3):
        for j in range(5):
            tx = f"s_add_u32 s56, {sW}, {8*p}\ns_mul_i32 s57, s56, 5120\ns_add_u32 m0, s57, {1024*j}\ns_mul_i32 s56, s56, 40960\nbuffer_load_dwordx4 v{WOFF+j}, {WO}, s56 offen lds"
            if p == 2:
                lz = L("wo"); tx = f"s_cmp_ge_u32 {sW}, 4\ns_cbranch_scc1 {lz}\n{tx}\n{lz}:"
            extra[41+5*p+j].append(tx)
    for j in range(5):
        extra[56+j].append(f"buffer_load_dword v254, v{WOFF+j}, {WD}, s55 offen")
    extra[55].append(f"""
    s_lshl_b32 s56, {sB}, 2
    s_add_u32 s56, s56, {sTT}
    s_mul_i32 s56, s56, {16*1280}
    s_mul_i32 s57, {sNB}, 160
    s_add_u32 s56, s56, s57
    s_mul_i32 s57, {sKH}, 96
    s_add_u32 s56, s56, s57
    v_and_b32 v249, 15, v{vL}
    v_lshrrev_b32 v250, 4, v{vL}
    v_mul_u32_u24 v249, 1280, v249
    v_lshl_add_u32 v249, v250, 3, v249""")
    for c in range(3):
        extra[61+c].append(f"buffer_load_dwordx2 {vr(XR+2*c,2)}, v249, {X}, s56 offen offset:{32*c}")
    A("s_waitcnt vmcnt(18)\ns_barrier")
    stamp()
    cur = {"K": 0, "T": 0, "V": 0}
    def lds_off(key, reg, off):
        if off - cur[key] > 65535 - 16:
            A(f"v_add_u32 v{reg}, {off - cur[key]}, v{reg}"); cur[key] = off
        return off - cur[key]
    def rdK(t): A(f"ds_read_b128 {vr(KM,4)}, v{aK} offset:{lds_off('K', aK, 2560*t)}")
    def rdT(t): A(f"ds_read_b64 {vr(KT,2)}, v{aT} offset:{lds_off('T', aT, 2560*t)}")
    def M1(S): A(f"v_mfma_f32_32x32x16_bf16 {vr(S,16)}, {vr(KM,4)}, {vr(QM,4)}, 0")
    def M2(S): A(f"v_mfma_f32_32x32x8_bf16 {vr(S,16)}, {vr(KT,2)}, {vr(QT,2)}, {vr(S,16)}")
    def SM(S, h): A(f"v_smfmac_f32_32x32x32_bf16 {vr(O,16)}, {vr(V0+4*h,4)}, {vr(S+8*h,8)}, v{vIDX}")
    def EX(S, a):
        for r in range(a, a+4): A(f"v_exp_f32 v{S+r}, v{S+r}")
    rdK(0); rdT(0)
    A("s_waitcnt lgkmcnt(0)")
    M1(SA); rdK(1); M2(SA); rdT(1)
    A(f"s_mov_b64 exec, s[76:77]\nds_read_b128 {vr(V0,4)}, v{aV}\nds_read_b128 {vr(V1,4)}, v{aV} offset:1280\ns_mov_b64 exec, -1")
    npark = 0
    for t in range(64):
        S, N = (SA, SB) if t % 2 == 0 else (SB, SA)
        EX(S, 0)
        if t < 63:
            A("s_waitcnt lgkmcnt(2)"); M1(N)
            if t == 6: A(f"s_waitcnt vmcnt({npark})\ns_barrier")
            if t < 62: rdK(t+2)
        EX(S, 4)
        if t < 63:
            M2(N)
            if t < 62: rdT(t+2)
        for x in extra[t]: A(x); npark += 1
        EX(S, 8)
        A(f"s_waitcnt lgkmcnt({2 if t < 62 else 0})")
        SM(S, 0)
        if t == 40: A("s_barrier")
        if t < 63: o = lds_off('V', aV, 2560*(t+1) + 1280) - 1280
        if t < 63 and o < 0:
            A(f"v_subrev_u32 v{aV}, 1280, v{aV}"); cur['V'] -= 1280; o = 0
        EX(S, 12)
        if t < 63:
            A(f"s_mov_b64 exec, s[76:77]\nds_read_b128 {vr(V0,4)}, v{aV} offset:{o}")
        SM(S, 1)
        if t < 63:
            A(f"ds_read_b128 {vr(V1,4)}, v{aV} offset:{o+1280}\ns_mov_b64 exec, -1")
    stamp()
    A(f"""
    v_cmp_ne_u32 vcc, {sXCC}, v255
    s_mov_b32 s48, 0
    s_mov_b32 s49, -1
    s_cmp_eq_u64 vcc, 0
    s_cselect_b32 {sFAST}, {0 if force_slow else 1}, 0
    v_and_b32 v250, 15, v{vL}
    v_bfe_u32 v251, v{vL}, 4, 1
    v_lshrrev_b32 v252, 5, v{vL}
    v_mul_u32_u24 v251, 20480, v251
    v_lshl_add_u32 v251, v250, 4, v251
    v_lshl_add_u32 v252, v252, 8, v251
    s_lshl_b32 s56, {sB}, 1
    s_add_u32 s56, s56, {sTH}
    s_mul_i32 s57, s56, 40960
    s_add_u32 s57, s57, {WS_O}
    s_lshl_b32 s58, {sNB}, 2
    s_add_u32 s58, s58, {sHD}
    s_lshl_b32 s56, s56, 7
    s_lshl_b32 s59, s58, 2
    s_add_u32 s56, s56, s59
    s_add_u32 s56, s56, {WS_F2}
    s_mul_i32 s58, s58, 20
    s_add_u32 s59, s58, 4
    s_lshr_b32 s59, s59, 3
    s_lshl_b32 s59, s59, 8
    s_add_u32 s59, s59, s57
    s_and_b32 s60, {sHD}, 1
    s_lshl_b32 s61, s60, 4
    s_sub_u32 s58, s58, s61
    s_add_u32 s58, s58, 16
    s_lshr_b32 s58, s58, 3
    s_lshl_b32 s58, s58, 8
    s_lshl_b32 s60, s60, 3
    s_add_u32 s58, s58, s60
    s_add_u32 s58, s58, s57
    """)
    A("L_oep:")
    A(f"v_cndmask_b32 v248, v{O+12}, v{O+8}, s[48:49]")
    A(f"v_add_f32 v249, |v{O}|, |v{O+1}|\nv_add_f32 v250, |v{O+2}|, |v{O+3}|")
    for r in range(4, 12, 2): A(f"v_add_f32 v249, v249, |v{O+r}|\nv_add_f32 v250, v250, |v{O+r+1}|")
    A(f"""
    v_add_f32 v249, v249, v250
    v_mov_b32 v253, {f2u(2.0**-60)}
    v_cmp_nle_f32 vcc, v253, v248
    v_mov_b32 v253, {f2u(2.0**100)}
    v_cmp_nge_f32 s[50:51], v253, v248
    v_mov_b32 v253, {f2u(2.0**126)}
    s_or_b64 s[50:51], s[50:51], vcc
    v_cmp_nge_f32 vcc, v253, v249
    v_rcp_f32 v248, v248
    s_or_b64 s[50:51], s[50:51], vcc
    s_cmp_lg_u64 s[50:51], 0
    s_cbranch_scc{0 if force_fb else 1} L_fallback
    L_fbret:
    """)
    for r in range(12): A(f"v_mul_f32 v{O+r}, v{O+r}, v248")
    for r in range(6): A(f"v_cvt_pk_bf16_f32 v{SA+r}, v{O+2*r}, v{O+2*r+1}")
    publish([f"buffer_store_dwordx4 {vr(SA,4)}, v252, {WS}, s59 offen", "s_mov_b32 exec_hi, 0",
             f"buffer_store_dwordx2 {vr(SA+4,2)}, v251, {WS}, s58 offen"], "s56")
    A("s_barrier")
    stamp()
    BF, ACC, RING, a0, a1, vB = 176, 216, 236, 165, 166, 167
    A(f"""
    v_and_b32 v211, 3, v{vL}
    v_lshrrev_b32 v{a0}, 2, v{vL}
    v_mul_u32_u24 v{a0}, 160, v{a0}
    v_lshl_add_u32 v{a0}, v211, 3, v{a0}
    s_mul_i32 s78, {sKH}, 10240
    v_add_u32 v{a0}, s78, v{a0}
    v_add_u32 v{a1}, 61440, v{a0}
    s_lshl_b32 s56, {sB}, 2
    s_add_u32 s56, s56, {sTT}
    s_mul_i32 s57, s56, 20480
    s_lshl_b32 s58, {sKH}, 11
    s_add_u32 s57, s57, s58
    s_add_u32 s57, s57, {WS_O}
    v_lshlrev_b32 v{vB}, 4, v{vL}
    v_and_b32 v212, 31, v{vL}
    v_lshlrev_b32 v212, 2, v212
    s_lshr_b32 s56, s56, 1
    s_lshl_b32 s56, s56, 7
    s_add_u32 s56, s56, {WS_F2}
    """)
    rd = gemm_tk(ACC, RING, 1, 0, a0, a1, None)
    for ct in range(5): rd(0, ct)
    poll(212, 213, "s56")
    stamp()
    for i in range(5):
        for s in range(2): A(f"buffer_load_dwordx4 {vr(BF+8*i+4*s,4)}, v{vB}, {WS}, s57 offen offset:{1024*s} sc1")
        if i < 4: A("s_add_u32 s57, s57, 4096")
    for st in range(10):
        A(f"s_waitcnt vmcnt({9-st})")
        for ct in range(5):
            A(f"s_waitcnt lgkmcnt({8 if st < 9 else 2*(4-ct)})")
            d = vr(ACC+4*ct,4)
            A(f"v_mfma_f32_16x16x32_bf16 {d}, {vr(RING+4*ct,4)}, {vr(BF+4*st,4)}, {'0' if st == 0 else d}")
            if st < 9: rd(st+1, ct)
    LSC = 102400
    A(f"""
    s_mul_i32 s78, {sW}, 5120
    s_add_u32 s78, s78, {LSC}
    v_add_u32 v176, s78, v{vB}
    s_mul_i32 s78, {sTT}, 10240
    s_mul_i32 s79, {sKH}, 3072
    s_add_u32 s78, s78, s79
    s_add_u32 s78, s78, {LSC}
    v_add_u32 v177, s78, v{vB}
    """)
    for ct in range(5): A(f"ds_write_b128 v176, {vr(ACC+4*ct,4)} offset:{1024*ct}")
    A(f"""
    v_and_b32 v181, 15, v{vL}
    v_lshrrev_b32 v182, 5, v{vL}
    v_bfe_u32 v183, v{vL}, 4, 1
    v_lshlrev_b32 v180, 4, v181
    v_lshl_add_u32 v179, v182, 9, v180
    v_lshl_add_u32 v178, v183, 10, v179
    v_lshl_add_u32 v179, v183, 3, v179
    s_lshl_b32 s56, {sB}, 1
    s_add_u32 s56, s56, {sTH}
    s_and_b32 s60, {sTT}, 1
    s_lshl_b32 s61, s60, 8
    s_mul_i32 s57, s56, 40960
    s_add_u32 s57, s57, s61
    s_mul_i32 s58, {sNB}, 5120
    s_add_u32 s57, s57, s58
    s_add_u32 s57, s57, s79
    s_add_u32 s57, s57, {WS_H}
    s_lshl_b32 s58, s56, 12
    s_add_u32 s58, s58, s61
    s_lshl_b32 s59, {sNB}, 9
    s_add_u32 s58, s58, s59
    s_lshl_b32 s59, {sKH}, 3
    s_add_u32 s58, s58, s59
    s_add_u32 s58, s58, {WS_HS}
    s_lshl_b32 s56, s56, 7
    s_lshl_b32 s59, {sNB}, 4
    s_add_u32 s56, s56, s59
    s_lshl_b32 s59, {sHD}, 2
    s_add_u32 s56, s56, s59
    s_add_u32 s56, s56, {WS_F3}
    s_mov_b32 s79, 0xffff0000
    s_waitcnt lgkmcnt(0)
    s_barrier
    """)
    for c in range(3):
        A(f"ds_read_b128 {vr(184+8*c,4)}, v177 offset:{1024*c}")
        A(f"ds_read_b128 {vr(188+8*c,4)}, v177 offset:{1024*c+5120}")
    A("v_mov_b32 v212, 0\nv_mov_b32 v213, 0")
    l3 = L("t3")
    for c in range(3):
        if c == 2: A(f"s_cmp_eq_u32 {sKH}, 1\ns_cbranch_scc1 {l3}")
        A(f"""
        v_lshlrev_b32 v208, 16, v{XR+2*c}
        v_and_b32 v209, s79, v{XR+2*c}
        v_lshlrev_b32 v210, 16, v{XR+2*c+1}
        v_and_b32 v211, s79, v{XR+2*c+1}
        s_waitcnt lgkmcnt({4-2*c})""")
        for r in range(4): A(f"v_add_f32 v{208+r}, v{208+r}, v{184+8*c+r}")
        for r in range(4): A(f"v_add_f32 v{208+r}, v{208+r}, v{188+8*c+r}")
        A(f"v_cvt_pk_bf16_f32 v{XR+2*c}, v208, v209\nv_cvt_pk_bf16_f32 v{XR+2*c+1}, v210, v211")
        for r in range(2):
            A(f"v_dot2c_f32_bf16 v212, 0x3f803f80, v{XR+2*c+r}\nv_dot2c_f32_bf16 v213, v{XR+2*c+r}, v{XR+2*c+r}")
    A(f"{l3}:")
    A(f"""
    v_mov_b32 v216, v{XR}
    v_mov_b32 v217, v{XR+1}
    v_mov_b32 v218, v{XR+2}
    v_mov_b32 v219, v{XR+3}
    v_mov_b32 v214, v212
    v_mov_b32 v215, v213
    v_permlane16_swap_b32 v216, v218
    v_permlane16_swap_b32 v217, v219
    v_permlane16_swap_b32 v212, v214
    v_permlane16_swap_b32 v213, v215
    v_add_f32 v212, v212, v214
    v_add_f32 v213, v213, v215
    v_mov_b32 v214, v212
    v_mov_b32 v215, v213
    v_permlane32_swap_b32 v212, v214
    v_permlane32_swap_b32 v213, v215
    v_add_f32 v212, v212, v214
    v_add_f32 v213, v213, v215
    """)
    publish([f"buffer_store_dwordx4 v[216:219], v178, {WS}, s57 offen",
             f"s_cmp_eq_u32 {sKH}, 1\ns_cbranch_scc1 L_h3@",
             f"buffer_store_dwordx2 {vr(XR+4,2)}, v179, {WS}, s57 offen offset:2048",
             "L_h3@:\ns_mov_b64 exec, 0xffff",
             f"buffer_store_dwordx2 v[212:213], v180, {WS}, s58 offen"], "s56")
    A("s_waitcnt lgkmcnt(0)\ns_barrier")
    stamp()
    LGU = 40960
    A(f"s_mul_i32 s78, {sHD}, 6144\ns_mul_i32 s79, {sTH}, 96\ns_add_u32 s78, s78, s79\ns_add_u32 s78, s78, {LGU}")
    for i in range(3):
        A(f"""
        v_add_u32 v250, {64*i}, v{vL}
        v_mul_u32_u24 v251, 10923, v250
        v_lshrrev_b32 v251, 16, v251
        v_mul_u32_u24 v251, 96, v251
        v_lshl_add_u32 v251, v250, 4, v251
        v_add_u32 v{176+i}, s78, v251
        v_add_u32 v{180+i}, {3*24576}, v{176+i}
        """)
    for p in range(5):
        for i in range(3):
            b, o = (176+i, p*24576) if p < 3 else (180+i, (p-3)*24576)
            A(f"ds_write_b128 v{b}, {vr(GUP+12*p+4*i,4)} offset:{o}")
    AC4, AR4, BR4, NB4 = 208, 184, 0, 15
    aA0, aA, vCS = 165, 166, 176
    A(f"""
    v_and_b32 v250, 3, v{vL}
    v_and_b32 v251, 1, v{vL}
    v_bfe_u32 v252, v{vL}, 1, 1
    v_lshl_add_u32 v250, v251, 1, v252
    v_bfe_u32 v251, v{vL}, 2, 2
    v_lshrrev_b32 v252, 5, v{vL}
    v_lshl_add_u32 v251, v252, 3, v251
    v_mul_u32_u24 v251, 192, v251
    v_lshl_add_u32 v251, v250, 3, v251
    v_bfe_u32 v250, v{vL}, 4, 1
    v_mul_u32_u24 v250, 96, v250
    v_add_u32 v251, v251, v250
    v_add_u32 v{aA0}, {LGU}, v251
    v_and_b32 v253, 31, v{vL}
    v_lshlrev_b32 v254, 2, v253
    v_lshlrev_b32 v253, 4, v253
    v_lshl_add_u32 v253, v252, 11, v253
    s_lshl_b32 s56, {sXCD}, 3
    s_add_u32 s56, s56, {sW}
    s_lshl_b32 s57, s56, 7
    s_add_u32 s57, s57, {WS_F3}
    s_lshl_b32 s58, s56, 12
    s_add_u32 s58, s58, {WS_HS}
    s_mul_i32 s59, s56, 40960
    s_add_u32 s59, s59, {WS_H}
    """)
    for j in range(8):
        A(f"s_add_u32 s78, {sW}, {j}\ns_and_b32 s78, s78, 7\ns_mul_i32 s{68+j}, s78, 15360\ns_mul_i32 s78, s78, 5120\ns_add_u32 s{60+j}, s78, s59")
    poll(254, 255, "s57")
    stamp()
    for i in range(4): A(f"buffer_load_dwordx4 {vr(AC4+4*i,4)}, v253, {WS}, s58 offen offset:{512*i} sc1")
    A("s_waitcnt lgkmcnt(0)")
    vBh = 175
    A(f"v_add_u32 v{vBh}, 4096, v{vB}")
    def ldB4(st):
        j, u = divmod(st, 5)
        a, o = (vB, 1024*u) if u < 4 else (vBh, 0)
        A(f"buffer_load_dwordx4 {vr(BR4+4*(st%NB4),4)}, v{a}, {WS}, s{60+j} offen offset:{o} sc1")
    vmq = ["st"]*4
    for st in range(NB4): ldB4(st); vmq.append(("B", st))
    A("s_barrier")
    def rdA4(st, i):
        j, u = divmod(st, 5)
        if u == 0 and i == 0: A(f"v_add_u32 v{aA}, s{68+j}, v{aA0}")
        r = AR4 + 12*(st & 1) + 4*i
        for hf in range(2): A(f"ds_read_b64_tr_b16 {vr(r+2*hf,2)}, v{aA} offset:{u*3072+hf*768+i*32}")
    for i in range(3): rdA4(0, i)
    def wait_vm(tag):
        k = len(vmq) - 1 - max(i for i, x in enumerate(vmq) if x == tag)
        A(f"s_waitcnt vmcnt({k})")
    wait_vm("st")
    A(f"v_add_f32 v179, v{AC4}, v{AC4+2}\nv_add_f32 v180, v{AC4+1}, v{AC4+3}")
    for q in range(2, 8): A(f"v_add_f32 v179, v179, v{AC4+2*q}\nv_add_f32 v180, v180, v{AC4+2*q+1}")
    A(f"""
    v_mov_b32 v181, v179
    v_mov_b32 v182, v180
    v_permlane32_swap_b32 v179, v181
    v_permlane32_swap_b32 v180, v182
    v_add_f32 v179, v179, v181
    v_add_f32 v180, v180, v182
    v_mul_f32 v179, {f2u(-1/640)}, v179
    v_mul_f32 v180, {f2u(1/640)}, v180
    v_fma_f32 v180, -v179, v179, v180
    v_max_f32 v180, 0, v180
    v_add_f32 v180, {f2u(1e-5)}, v180
    v_rsq_f32 v181, v180
    v_mov_b32 v{vCS}, 0
    v_mov_b32 v{vCS+1}, 0
    v_mov_b32 v{vCS+2}, 0
    s_mul_i32 s57, {sW}, 5120
    v_add_u32 v182, s57, v{vB}
    """)
    for st in range(40):
        wait_vm(("B", st))
        for i in range(3):
            if st < 39: rdA4(st+1, i)
            ex = 1 if (st == 5) else 0
            A(f"s_waitcnt lgkmcnt({(6 if st < 39 else 2*(2-i))})")
            d = vr(AC4+16*i,16); a = AR4+12*(st&1)+4*i
            A(f"v_mfma_f32_32x32x16_bf16 {d}, {vr(a,4)}, {vr(BR4+4*(st%NB4),4)}, {'0' if st == 0 else d}")
            if st < 5:
                for r in range(4): A(f"v_dot2c_f32_bf16 v{vCS+i}, 0x3f803f80, v{a+r}")
        if st + NB4 < 40: ldB4(st+NB4); vmq.append(("B", st+NB4))
        if st == 4: A(f"ds_write_b96 v182, {vr(vCS,3)}")
        if st == 8: A("s_barrier")
        if 26 <= st < 30:
            j = st - 25
            A(f"s_add_u32 m0, s57, {1024*j}\nbuffer_load_dwordx4 v{WOFF+j}, {WD}, s55 offen lds"); vmq.append("wd")
        if st == 34:
            pass
    for q in range(8): A(f"ds_read_b96 {vr(4*q,3)}, v{vB} offset:{5120*q}")
    A(f"""
    v_cvt_pk_bf16_f32 v32, v179, v179
    v_and_b32 v33, 0xffff0000, v32
    v_sub_f32 v33, v179, v33
    v_cvt_pk_bf16_f32 v40, v179, v33
    v_mov_b32 v42, 0
    v_mov_b32 v43, 0
    v_mov_b32 v41, v40
    s_waitcnt lgkmcnt(0)
    s_barrier
    s_mov_b32 m0, s57
    buffer_load_dwordx4 v{WOFF}, {WD}, s55 offen lds
    """)
    for i in range(3):
        for q in range(1, 8): A(f"v_add_f32 v{i}, v{i}, v{4*q+i}")
    for i in range(3):
        A(f"""
        v_cvt_pk_bf16_f32 v{44+4*i}, v{i}, v{i}
        v_and_b32 v33, 0xffff0000, v{44+4*i}
        v_sub_f32 v33, v{i}, v33
        v_cvt_pk_bf16_f32 v{45+4*i}, v33, v33
        v_mov_b32 v{46+4*i}, 0
        v_mov_b32 v{47+4*i}, 0""")
    for i in range(3):
        d = vr(AC4+16*i,16)
        A(f"v_mfma_f32_32x32x16_bf16 {d}, {vr(44+4*i,4)}, v[40:43], {d}")
    c1 = -2*math.sqrt(2/math.pi)*math.log2(math.e); c2 = c1*0.044715
    A(f"""
    v_mul_f32 v34, {f2u(c1)}, v181
    v_mul_f32 v36, v181, v181
    v_mul_f32 v36, v36, v181
    v_mul_f32 v36, {f2u(c2)}, v36
    v_mov_b32 v38, v180
    v_and_b32 v250-250+56, 15, v{vL}
    """.replace("v250-250+56", "v56"))
    A(f"""
    v_bfe_u32 v57, v{vL}, 4, 1
    v_lshrrev_b32 v58, 5, v{vL}
    v_mul_u32_u24 v57, 49152, v57
    v_lshl_add_u32 v57, v56, 4, v57
    v_lshl_add_u32 v57, v58, 8, v57
    s_mul_i32 s58, s56, 98304
    s_mul_i32 s59, {sIDX}, 1536
    s_add_u32 s58, s58, s59
    s_add_u32 s58, s58, {WS_HP}
    s_lshl_b32 s56, s56, 7
    s_lshl_b32 s59, {sIDX}, 2
    s_add_u32 s56, s56, s59
    s_add_u32 s56, s56, {WS_F4}
    """)
    for i in range(3):
        g, u = AC4+16*i, AC4+16*i+8
        for r in range(0, 8, 2): A(f"v_pk_mul_f32 {vr(r,2)}, {vr(g+r,2)}, {vr(g+r,2)}")
        for r in range(0, 8, 2): A(f"v_pk_fma_f32 {vr(r,2)}, {vr(r,2)}, v[36:37], v[34:35] op_sel_hi:[1,0,0]")
        for r in range(0, 8, 2): A(f"v_pk_mul_f32 {vr(r,2)}, {vr(r,2)}, {vr(g+r,2)}")
        for r in range(8): A(f"v_exp_f32 v{r}, v{r}")
        for r in range(0, 8, 2): A(f"v_pk_mul_f32 {vr(u+r,2)}, {vr(u+r,2)}, {vr(g+r,2)}")
        for r in range(0, 8, 2): A(f"v_pk_fma_f32 {vr(r,2)}, {vr(r,2)}, v[38:39], v[38:39] op_sel_hi:[1,0,0]")
        for r in range(8): A(f"v_rcp_f32 v{r}, v{r}")
        for r in range(0, 8, 2): A(f"v_pk_mul_f32 {vr(u+r,2)}, {vr(u+r,2)}, {vr(r,2)}")
        for r in range(4): A(f"v_cvt_pk_bf16_f32 v{8+4*i+r}, v{u+2*r}, v{u+2*r+1}")
    publish([f"buffer_store_dwordx4 {vr(8+4*i,4)}, v57, {WS}, s58 offen offset:{512*i}" for i in range(3)], "s56")
    stamp()
    A(f"v_add_u32 v183, 81920, v182")
    for p in range(3):
        for j in range(5):
            b, o = (182, 40960) if p == 0 else (183, (p-1)*40960)
            A(f"ds_write_b128 v{b}, {vr(WDP+20*p+4*j,4)} offset:{o+1024*j}")
    AC5, AR5, B5 = 216, 176, 0
    a0, a1 = 165, 166
    A(f"""
    v_and_b32 v211, 3, v{vL}
    v_lshrrev_b32 v{a0}, 2, v{vL}
    v_mul_u32_u24 v{a0}, 160, v{a0}
    v_lshl_add_u32 v{a0}, v211, 3, v{a0}
    s_mul_i32 s78, {sHD}, 5120
    v_add_u32 v{a0}, s78, v{a0}
    v_add_u32 v{a1}, 81920, v{a0}
    v_mov_b32 v164, v182
    v_and_b32 v212, 7, v{vL}
    v_lshlrev_b32 v212, 2, v212
    s_lshl_b32 s56, {sB}, 1
    s_add_u32 s56, s56, {sTH}
    s_mul_i32 s57, s56, 98304
    s_mul_i32 s58, {sKQ}, 12288
    s_add_u32 s57, s57, s58
    s_add_u32 s57, s57, {WS_HP}
    s_lshl_b32 s56, s56, 7
    s_lshl_b32 s58, {sKQ}, 5
    s_add_u32 s56, s56, s58
    s_add_u32 s56, s56, {WS_F4}
    v_add_u32 v{vBh}, 49152, v{vB}
    """)
    poll(212, 213, "s56")
    stamp()
    A("s_waitcnt lgkmcnt(0)")
    for u in range(12):
        for tt in range(2):
            A(f"buffer_load_dwordx4 {vr(B5+8*u+4*tt,4)}, v{(vB, vBh)[tt]}, {WS}, s57 offen offset:{1024*(u&3)} sc1")
        if u & 3 == 3 and u < 11: A("s_add_u32 s57, s57, 4096")
    A("s_barrier")
    def rdA5(u, ct):
        j = (u >> 1) & 3
        b, o = (a0, j*40960) if j < 2 else (a1, (j-2)*40960)
        r = AR5 + 20*(u & 1) + 4*ct
        for hf in range(2): A(f"ds_read_b64_tr_b16 {vr(r+2*hf,2)}, v{b} offset:{o+(u&1)*20480+hf*2560+ct*32}")
    for g0 in (0, 4, 8):
        if g0 == 8 or g0 == 0:
            for ct in range(5): rdA5(g0, ct)
        for u in range(g0, g0+4):
            A(f"s_waitcnt vmcnt({22-2*u})")
            nxt = (u+1 < 12) and (u+1 != 8)
            for ct in range(5):
                if nxt: rdA5(u+1, ct)
                if g0 == 4 and u < 6:
                    A(f"ds_write_b128 v164, {vr(WDP+60+20*(u-4)+4*ct,4)} offset:{40960*(u-4)+1024*ct}")
                if g0 == 4 and u < 6: n = 10 + (ct + 1) + ((4 - ct + 1) if u == 5 else 0)
                elif g0 == 4 and u == 6: n = 10 + (4 - ct + 1)
                else: n = 10 if nxt else 2*(4-ct)
                A(f"s_waitcnt lgkmcnt({min(n,15)})")
                for tt in range(2):
                    d = vr(AC5+20*tt+4*ct,4)
                    A(f"v_mfma_f32_16x16x32_bf16 {d}, {vr(AR5+20*(u&1)+4*ct,4)}, {vr(B5+8*u+4*tt,4)}, {'0' if u == 0 else d}")
        if g0 < 8: A("s_barrier")
    A(f"""
    s_lshl_b32 s78, {sKQ}, 1
    s_add_u32 s78, s78, {sTH}
    s_mul_i32 s78, s78, 10240
    s_add_u32 s78, s78, 81920
    v_add_u32 v0, s78, v{vB}
    s_mul_i32 s78, {sTT}, 5120
    s_mul_i32 s79, {sKH}, 3072
    s_add_u32 s78, s78, s79
    s_add_u32 s78, s78, 81920
    v_add_u32 v1, s78, v{vB}
    """)
    for q in range(10): A(f"ds_write_b128 v0, {vr(AC5+4*q,4)} offset:{1024*q}")
    A(f"""
    v_and_b32 v2, 15, v{vL}
    v_lshrrev_b32 v3, 4, v{vL}
    v_mul_u32_u24 v2, 1280, v2
    v_lshl_add_u32 v5, v3, 3, v2
    v_and_b32 v4, 1, v3
    v_lshrrev_b32 v3, 1, v3
    v_lshl_add_u32 v2, v4, 5, v2
    v_lshl_add_u32 v4, v3, 4, v2
    s_lshl_b32 s56, {sB}, 2
    s_add_u32 s56, s56, {sTT}
    s_mul_i32 s56, s56, {16*1280}
    s_mul_i32 s57, {sNB}, 160
    s_add_u32 s56, s56, s57
    s_mul_i32 s57, {sKH}, 96
    s_add_u32 s56, s56, s57
    s_mov_b32 s79, 0xffff0000
    s_waitcnt lgkmcnt(0)
    s_barrier
    """)
    l5, l6 = L("t5"), L("t6")
    for c in range(3):
        if c == 2: A(f"s_cmp_eq_u32 {sKH}, 1\ns_cbranch_scc1 {l5}")
        for q in range(4): A(f"ds_read_b128 {vr(16+16*c+4*q,4)}, v1 offset:{1024*c+20480*q}")
    A(f"{l5}:")
    for c in range(3):
        A(f"""
        v_lshlrev_b32 v8, 16, v{XR+2*c}
        v_and_b32 v9, s79, v{XR+2*c}
        v_lshlrev_b32 v10, 16, v{XR+2*c+1}
        v_and_b32 v11, s79, v{XR+2*c+1}
        s_waitcnt lgkmcnt({4 if c == 0 else 0})""")
        for q in range(4):
            for r in range(4): A(f"v_add_f32 v{8+r}, v{8+r}, v{16+16*c+4*q+r}")
        A(f"v_cvt_pk_bf16_f32 v{70+2*c}, v8, v9\nv_cvt_pk_bf16_f32 v{71+2*c}, v10, v11")
        if c == 1:
            A(f"""
            v_permlane16_swap_b32 v70, v72
            v_permlane16_swap_b32 v71, v73
            buffer_store_dwordx4 v[70:73], v4, {OUT}, s56 offen
            s_cmp_eq_u32 {sKH}, 1
            s_cbranch_scc1 {l6}""")
    A(f"buffer_store_dwordx2 v[74:75], v5, {OUT}, s56 offen offset:64\n{l6}:")
    le = L("ep")
    A(f"""
    s_add_u32 s78, s2, {sW}
    s_cmp_lg_u32 s78, 0
    s_cbranch_scc1 {le}
    v_mov_b32 v6, {sT}
    s_mov_b64 exec, 1
    buffer_store_dword v6, off, {WS}, 0 sc1
    s_mov_b64 exec, -1
    {le}:
    """)
    if diag:
        A("s_waitcnt vmcnt(0)")
        stamp()
        A(f"s_lshl_b32 s78, s2, 3\ns_add_u32 s78, s78, {sW}\ns_lshl_b32 s78, s78, 6\ns_add_u32 s78, s78, {WS_DBG}\ns_mov_b64 exec, 1")
        A(f"s_mov_b32 s99, {sFAST}")
        for i in range(16): A(f"v_mov_b32 v{i}, s{84+i}")
        for i in range(4): A(f"buffer_store_dwordx4 {vr(4*i,4)}, off, {WS}, s78 offset:{16*i}")
    A("L_exit:\ns_endpgm")
    A("L_fallback:")
    A(f"""
    v_subrev_u32 v{aK}, {cur['K']}, v{aK}
    v_subrev_u32 v{aT}, {cur['T']}, v{aT}
    v_subrev_u32 v{aV}, {cur['V']}, v{aV}
    v_mov_b32 v248, 0xff800000
    s_mov_b32 s60, {WS_KV}
    s_nop 7
    L_fb1:
    buffer_load_dwordx4 {vr(KM,4)}, v{aK}, {WS}, s60 offen sc1
    buffer_load_dwordx2 {vr(KT,2)}, v{aT}, {WS}, s60 offen sc1
    s_waitcnt vmcnt(0)
    """)
    M1(SA); M2(SA)
    for r in range(0, 16, 2): A(f"v_max3_f32 v248, v248, v{SA+r}, v{SA+r+1}")
    A(f"""
    s_add_u32 s60, s60, 2560
    s_cmp_lt_u32 s60, {WS_KV+163840}
    s_cbranch_scc1 L_fb1
    v_mov_b32 v249, v248
    v_permlane32_swap_b32 v248, v249
    v_max_f32 v248, v248, v249
    s_mov_b32 s60, {WS_KV}
    """)
    for r in range(16): A(f"v_mov_b32 v{O+r}, 0")
    A(f"""
    s_nop 7
    L_fb2:
    buffer_load_dwordx4 {vr(KM,4)}, v{aK}, {WS}, s60 offen sc1
    buffer_load_dwordx2 {vr(KT,2)}, v{aT}, {WS}, s60 offen sc1
    s_mov_b64 exec, s[76:77]
    buffer_load_dwordx4 {vr(V0,4)}, v{aV}, {WS}, s60 offen sc1
    buffer_load_dwordx4 {vr(V1,4)}, v{aV}, {WS}, s60 offen offset:1280 sc1
    s_mov_b64 exec, -1
    s_waitcnt vmcnt(0)
    """)
    M1(SA); M2(SA)
    for r in range(16): A(f"v_sub_f32 v{SA+r}, v{SA+r}, v248")
    for r in range(16): A(f"v_exp_f32 v{SA+r}, v{SA+r}")
    SM(SA, 0); SM(SA, 1)
    A(f"""
    s_add_u32 s60, s60, 2560
    s_cmp_lt_u32 s60, {WS_KV+163840}
    s_nop 7
    s_cbranch_scc1 L_fb2
    v_cndmask_b32 v248, v{O+12}, v{O+8}, s[48:49]
    v_rcp_f32 v248, v248
    s_nop 1
    s_branch L_fbret
    L_end:
    """)
    hdr = open("cdna_kernels/" + NAME + ".s.ref").read().split("\n")
    k0 = next(i for i, l in enumerate(hdr) if l.startswith(NAME + "_kernel:"))
    k1 = next(i for i, l in enumerate(hdr) if l.startswith(".section .rodata"))
    head = [("; @launch grid=(256,1,1) block=(512,1,1) lds=163840" if l.startswith("; @launch") else l) for l in hdr[:k0+1]]
    return "\n".join(head) + "\n" + A.text() + "    s_endpgm\n" + "\n".join(hdr[k1:]), A.nops

if __name__ == "__main__":
    t, n = gen()
    open("cdna_kernels/" + NAME + ".s", "w").write(t)
    for nm, kw in (("diag", dict(diag=True)), ("slow", dict(diag=True, force_slow=True)), ("fb", dict(force_fb=True))):
        open(f"k_{nm}.s", "w").write(gen(**kw)[0])
    print("ok; nops", n, "lines", t.count("\n"))
```

```python
import sys, math, struct
from asmlib import Asm
NAME = "sequential_preLN__grouped_kv_mqa__glu_gated_geglu__prompt"
WS_F1, WS_F2, WS_F3, WS_F4 = 0x1000, 0x9000, 0xB000, 0xD000
WS_KV, WS_HS, WS_O, WS_H, WS_HP, WS_DBG, WS_SIZE = 0x10000, 0x40000, 0x80000, 0x300000, 0x580000, 0xC00000, 0x1000000
def f2u(x): return "0x%08x" % struct.unpack("<I", struct.pack("<f", x))[0]
def vr(a, n): return f"v[{a}:{a+n-1}]" if n > 1 else f"v{a}"
ONES = "0x3f803f80"

class Q:
    def __init__(s, A, name, cap): s.A, s.name, s.cap, s.q, s.done = A, name, cap, [], 0
    def add(s, tag, n=1): s.q += [tag]*n
    def wait(s, tag):
        i = max(i for i, x in enumerate(s.q) if x == tag)
        if i < s.done: return
        k = min(len(s.q) - 1 - i, s.cap); s.done = len(s.q) - k
        s.A(f"s_waitcnt {s.name}({k})")
    def all(s): s.A(f"s_waitcnt {s.name}(0)"); s.done = len(s.q)

def gen(diag=False, force_slow=False, force_fb=False, **opt):
    A = Asm()
    X, WQ, WKV, WO, GU, WD, OUT, WS = ("s[8:11]","s[12:15]","s[16:19]","s[20:23]","s[24:27]","s[28:31]","s[32:35]","s[36:39]")
    sW, sXCD, sIDX, sB, sNB = "s3","s4","s5","s6","s7"
    sT, sXCC, sFAST, sTT, sKH, sTH, sQ = "s40","s41","s42","s43","s44","s45","s46"
    names = []
    def stamp(name):
        if not diag or (name not in diag and name != "start"): return
        if name not in names: names.append(name)
        i = names.index(name); assert i < 15
        A(f"s_memtime s[82:83]\ns_waitcnt lgkmcnt(0)\ns_mov_b32 s{84+i}, s82")
    WOFF, vL, vB, vT1 = 240, 245, 246, 247
    XR = 230
    lab = [0]
    def L(p):
        lab[0] += 1; return f"L_{p}{lab[0]}"
    def poll(vaddr, vdst, soff="0", x2=False):
        l0, l1 = L("poll"), L("pdone")
        A(f"s_mov_b32 s78, 0\n{l0}:")
        A(f"buffer_load_dword{'x2' if x2 else ''} {vr(vdst, 2 if x2 else 1)}, v{vaddr}, {WS}, {soff} offen sc1")
        A(f"s_add_u32 s78, s78, 1\ns_cmp_gt_u32 s78, 0x8000\ns_cbranch_scc1 {l1}")
        A(f"s_waitcnt vmcnt(0)\nv_cmp_ne_u32 vcc, {sT}, v{vdst}\ns_cbranch_vccnz {l0}")
        A(f"{l1}:\ns_waitcnt vmcnt(0)")
    def ldsspin(vaddr, vdst, val, off=0):
        l0, l1 = L("spin"), L("spind")
        A(f"""s_mov_b32 s78, 0
        {l0}:
        ds_read_b32 v{vdst}, v{vaddr} offset:{off}
        s_add_u32 s78, s78, 1
        s_cmp_gt_u32 s78, 0x40000
        s_cbranch_scc1 {l1}
        s_waitcnt lgkmcnt(0)
        v_cmp_ne_u32 vcc, {val}, v{vdst}
        s_cbranch_vccnz {l0}
        {l1}:""")
    def publish(stores, flagaddr_s):
        ls, le = L("slow"), L("pubend")
        A(f"v_mov_b32 v{vT1}, {sT}")
        A(f"s_cmp_eq_u32 {sFAST}, 0\ns_cbranch_scc1 {ls}")
        for sc in ("", " sc1"):
            for st in stores: A(st + sc if st.startswith("buffer_store") else st)
            A("s_waitcnt vmcnt(0)\ns_mov_b64 exec, 1")
            A(f"buffer_store_dword v{vT1}, off, {WS}, {flagaddr_s}{sc}")
            A("s_mov_b64 exec, -1")
            if not sc: A(f"s_branch {le}\n{ls}:")
        A(f"{le}:")
    def srd(base, lo, size):
        A(f"s_mov_b32 s{base}, s{lo}\ns_mov_b32 s{base+1}, s{lo+1}\ns_mov_b32 s{base+2}, {size}\ns_mov_b32 s{base+3}, 0x00020000")
    def trA(dst, kh_term):
        A(f"v_and_b32 v{vT1}, 3, v{vL}\nv_lshrrev_b32 v{dst}, 2, v{vL}\nv_mul_u32_u24 v{dst}, 160, v{dst}\nv_lshl_add_u32 v{dst}, v{vT1}, 3, v{dst}")
        if kh_term: A(f"v_add_u32 v{dst}, {kh_term}, v{dst}")

    LWKV, LXS, LST, LFL = 102400, 128000, 160768, 161792
    A(f"""
    s_cmp_ge_u32 s2, 256
    s_cbranch_scc1 L_exit
    s_load_dwordx16 s[52:67], s[0:1], 0
    s_load_dwordx8 s[68:75], s[0:1], 64
    s_getpc_b64 s[80:81]
    L_pc:
    v_lshrrev_b32 v1, 6, v0
    v_and_b32 v{vL}, 63, v0
    v_readfirstlane_b32 {sW}, v1
    s_and_b32 {sXCD}, s2, 7
    s_lshr_b32 {sIDX}, s2, 3
    s_lshr_b32 {sB}, {sIDX}, 3
    s_and_b32 {sNB}, {sIDX}, 7
    s_lshl_b32 s78, {sXCD}, 2
    s_add_u32 {sB}, {sB}, s78
    s_getreg_b32 {sXCC}, hwreg(HW_REG_XCC_ID, 0, 4)
    s_lshr_b32 {sTT}, {sW}, 1
    s_and_b32 {sKH}, {sW}, 1
    s_lshr_b32 {sTH}, {sW}, 2
    s_and_b32 {sQ}, {sW}, 3
    v_lshlrev_b32 v{vB}, 4, v{vL}
    v_mov_b32 v216, 0
    v_lshlrev_b32 v215, 2, v{vL}
    v_add_u32 v215, {LFL}, v215
    ds_write_b32 v215, v216
    s_lshl_b32 s78, {sB}, 2
    s_add_u32 s78, s78, {sTT}
    s_mul_i32 s78, s78, {16*1280}
    s_mul_i32 s79, {sKH}, 640
    s_add_u32 s78, s78, s79
    v_lshrrev_b32 v209, 3, v{vL}
    v_and_b32 v211, 7, v{vL}
    v_mul_u32_u24 v4, 1280, v209
    v_lshl_add_u32 v4, v211, 4, v4
    v_add_u32 v200, s78, v4
    s_waitcnt lgkmcnt(0)
    """)
    stamp("start")
    if diag:
        for i in range(1, 15): A(f"s_mov_b32 s{84+i}, s84")
    srd(8, 52, 2621440); srd(36, 74, WS_SIZE); srd(12, 54, 819200)
    A(f"""
    s_cmp_lt_u32 {sNB}, 4
    s_cselect_b32 s16, s56, s58
    s_cselect_b32 s17, s57, s59
    s_mov_b32 s18, 25600
    s_mov_b32 s19, 0x00020000
    s_movk_i32 s79, 10240
    s_and_b32 s47, {sNB}, 3
    """)
    def xloads():
        for i in range(5):
            A(f"buffer_load_dwordx4 {vr(8*i,4)}, v200, {X}, 0 offen offset:{128*i}")
            A(f"buffer_load_dwordx4 {vr(8*i+4,4)}, v200, {X}, s79 offen offset:{128*i}")
    def woff():
        A(f"s_mul_i32 s78, {sNB}, 160")
        for j in range(5):
            A(f"""
            v_add_u32 v204, {64*j}, v{vL}
            v_mul_u32_u24 v205, 6554, v204
            v_lshrrev_b32 v205, 16, v205
            v_mul_u32_u24 v206, 10, v205
            v_sub_u32 v206, v204, v206
            v_and_b32 v207, 3, v205
            v_bfe_u32 v208, v205, 2, 2
            v_lshrrev_b32 v201, 4, v205
            v_lshl_add_u32 v207, v208, 3, v207
            v_lshl_add_u32 v207, v201, 2, v207
            v_mul_u32_u24 v207, 1280, v207
            v_lshl_add_u32 v207, v206, 4, v207
            v_add_u32 v{WOFF+j}, s78, v207
            """)
    lnk, lj = L("nkv"), L("j")
    A(f"s_cmp_lg_u32 s47, {sTT}\ns_cbranch_scc1 {lnk}\ns_setprio 2")
    xloads()
    A(f"s_mul_i32 s78, {sKH}, 12288")
    for j in range(13):
        A(f"s_add_u32 m0, s78, {LWKV}\nbuffer_load_dwordx4 v{vB}, {WKV}, s78 offen lds")
        if j < 12: A("s_add_u32 s78, s78, 1024")
    A(f"buffer_load_dword v202, off, {WS}, 0 sc1\ns_barrier")
    woff()
    A(f"s_waitcnt vmcnt(14)\ns_branch {lj}\n{lnk}:")
    woff()
    A(f"""
    s_barrier
    s_sub_u32 s48, {sW}, 2
    s_cmp_gt_u32 {sTT}, s47
    s_cselect_b32 s48, s48, {sW}
    s_mul_i32 s49, {sIDX}, 6
    s_add_u32 s49, s49, s48
    s_mul_i32 s50, s49, {34*128}
    v_lshlrev_b32 v201, 7, v{vL}
    s_mov_b32 exec_hi, 3
    buffer_load_dword v203, v201, {WQ}, s50 offen
    s_mul_i32 s50, s49, 384
    v_add_u32 v201, s50, v201
    v_min_u32 v201, L_end-L_pc-4, v201
    s_mov_b64 exec, 7
    global_load_dword v203, v201, s[80:81]
    s_mov_b64 exec, -1
    buffer_load_dword v202, off, {WS}, 0 sc1
    """)
    xloads()
    lnd = L("nodma")
    A(f"s_cmp_ge_u32 s48, 4\ns_cbranch_scc1 {lnd}")
    A(f"s_lshr_b32 s49, s48, 1\ns_mul_i32 s49, s49, 10\ns_and_b32 s50, s48, 1\ns_add_u32 s49, s49, s50\ns_mul_i32 s50, s49, 5120\ns_mul_i32 s49, s49, 40960")
    def wqdma(i):
        for j in range(5):
            A(f"s_add_u32 m0, s50, {1024*j + 10240*i}\nbuffer_load_dwordx4 v{WOFF+j}, {WQ}, s49 offen lds")
        A(f"s_add_u32 s49, s49, 81920")
    wqdma(0)
    A(f"s_waitcnt vmcnt(5)\ns_branch {lj}\n{lnd}:\ns_waitcnt vmcnt(0)\n{lj}:")
    stamp("xin")
    A(f"""
    s_lshl_b32 s51, {sW}, 12
    s_add_u32 s51, s51, {LXS}
    v_lshrrev_b32 v210, 4, v{vL}
    v_xor_b32 v211, v211, v210
    v_lshlrev_b32 v211, 4, v211
    v_lshl_add_u32 v205, v209, 7, v211
    v_add_u32 v205, s51, v205
    v_xor_b32 v206, 64, v205
    v_and_b32 v212, 15, v{vL}
    v_lshrrev_b32 v211, 1, v212
    v_xor_b32 v211, v211, v210
    v_lshlrev_b32 v211, 4, v211
    v_lshl_add_u32 v207, v212, 7, v211
    v_add_u32 v207, s51, v207
    v_xor_b32 v208, 64, v207
    """)
    for i in range(5):
        o = 2048*(i & 1)
        A(f"ds_write_b128 v205, {vr(8*i,4)} offset:{o}\nds_write_b128 v206, {vr(8*i+4,4)} offset:{o+1024}")
        A(f"ds_read_b128 {vr(8*i,4)}, v207 offset:{o}\nds_read_b128 {vr(8*i+4,4)}, v208 offset:{o}")
    for r in range(4): A(f"v_mov_b32 v{44+r}, {ONES}")
    A(f"""
    s_lshl_b32 s78, {sTT}, 8
    s_add_u32 s78, s78, {LST}
    v_lshl_add_u32 v213, v212, 3, s78
    s_lshl_b32 s79, {sKH}, 7
    v_add_u32 v214, s79, v213
    s_mov_b32 s52, 0xAAAAAAAA
    s_mov_b32 s53, 0xAAAAAAAA
    s_mov_b32 s54, 0xCCCCCCCC
    s_mov_b32 s55, 0xCCCCCCCC
    s_lshl_b32 s78, {sW}, 2
    s_add_u32 s78, s78, {LFL}
    v_mov_b32 v215, s78
    v_xor_b32 v217, 4, v215
    v_mov_b32 v216, 1
    """)
    for i in range(5):
        A(f"s_waitcnt lgkmcnt({min(15, 4*(4-i))})")
        for s in range(2):
            x = vr(8*i+4*s, 4); first = (i == 0 and s == 0)
            A(f"v_mfma_f32_16x16x32_bf16 v[48:51], v[44:47], {x}, {'0' if first else 'v[48:51]'}")
            A(f"v_mfma_f32_16x16x32_bf16 v[52:55], {x}, {x}, {'0' if first else 'v[52:55]'}")
    srd(20, 60, 819200)
    A(f"""
    s_bitcmp1_b32 {sW}, 1
    s_cselect_b32 s24, s66, s64
    s_cselect_b32 s25, s67, s65
    s_mov_b32 s26, 1966080
    s_mov_b32 s27, 0x00020000
    v_cndmask_b32 v52, v52, v53, s[52:53]
    v_cndmask_b32 v54, v54, v55, s[52:53]
    v_cndmask_b32 v49, v52, v54, s[54:55]
    s_mov_b32 exec_lo, 0x00F0000F
    s_mov_b32 exec_hi, 0xF0000F00
    ds_write_b64 v214, v[48:49]
    s_mov_b64 exec, -1
    ds_write_b32 v215, v216
    """)
    srd(28, 68, 1966080); srd(32, 70, 2621440)
    lsk = L("skip")
    A(f"s_cmp_eq_u32 s47, {sTT}\ns_cbranch_scc1 {lsk}\ns_cmp_ge_u32 s48, 4\ns_cbranch_scc1 {lsk}")
    for i in range(1, 5): wqdma(i)
    A(f"{lsk}:")
    A(f"s_mul_i32 s79, {sKH}, 51200"); trA(218, "s79")
    ldsspin(217, 219, 1)
    A(f"""
    ds_read2_b64 v[48:51], v213 offset1:16
    s_waitcnt lgkmcnt(0)
    v_add_f32 v48, v48, v50
    v_add_f32 v49, v49, v51
    v_mul_f32 v48, {f2u(1/640)}, v48
    v_mul_f32 v49, {f2u(1/640)}, v49
    v_fma_f32 v49, -v48, v48, v49
    v_max_f32 v49, 0, v49
    v_add_f32 v49, {f2u(1e-5)}, v49
    v_rsq_f32 v50, v49
    s_mov_b32 s79, 0xffff0000
    v_mul_f32 v51, v48, v50
    """)
    stamp("stats")
    def normalise(r):
        t = 56 + 2*(r & 1)
        A(f"""v_lshlrev_b32 v{t}, 16, v{r}
        v_and_b32 v{t+1}, s79, v{r}
        v_fma_f32 v{t}, v{t}, v50, -v51
        v_fma_f32 v{t+1}, v{t+1}, v50, -v51
        v_cvt_pk_bf16_f32 v{r}, v{t}, v{t+1}""")
    lkv, lq = L("kv"), L("q")
    A(f"s_cmp_eq_u32 s47, {sTT}\ns_cbranch_scc1 {lkv}")
    for r in range(40): normalise(r)
    A(f"v_readfirstlane_b32 {sT}, v202\ns_add_u32 {sT}, {sT}, 0x9E3779B9")
    A(f"s_branch {lq}\n{lkv}:")
    KF = 60
    A(f"""
    v_bfe_u32 v209, v{vL}, 2, 2
    v_and_b32 v211, 3, v{vL}
    v_lshl_add_u32 v219, v210, 3, v209
    v_mul_u32_u24 v219, 40, v219
    v_lshl_add_u32 v219, v211, 3, v219
    s_mul_i32 s78, {sKH}, 12800
    s_add_u32 s78, s78, {LWKV}
    v_add_u32 v219, s78, v219
    s_waitcnt vmcnt(0)
    v_readfirstlane_b32 {sT}, v202
    s_add_u32 {sT}, {sT}, 0x9E3779B9
    """)
    lv, lx = L("v"), L("kvx")
    A(f"s_cmp_ge_u32 {sNB}, 4\ns_cbranch_scc1 {lv}")
    for isv in range(2):
        def rdw(st):
            for tl in range(2):
                for hf in range(2): A(f"ds_read_b64_tr_b16 {vr(KF+8*st+4*tl+2*hf,2)}, v219 offset:{st*1280+hf*160+tl*32}")
        def mm(st):
            for tl in range(2):
                a, b = vr(KF+8*st+4*tl,4), vr(4*st,4)
                if isv: a, b = b, a
                d = vr(140+4*tl, 4)
                A(f"v_mfma_f32_16x16x32_bf16 {d}, {a}, {b}, {'0' if st == 0 else d}")
        for st in range(10):
            rdw(st)
            for r in range(4*st, 4*st+4): normalise(r)
            if st > 0: A("s_waitcnt lgkmcnt(4)"); mm(st-1)
        A("s_waitcnt lgkmcnt(0)"); mm(9)
        A(f"v_lshrrev_b32 v222, 5, v{vL}\nv_and_b32 v223, 1, v210")
        if not isv:
            A(f"""
            v_lshlrev_b32 v220, 8, v222
            v_lshl_add_u32 v220, v212, 4, v220
            v_lshl_add_u32 v220, v223, 3, v220
            v_add_u32 v220, s51, v220
            v_lshl_add_u32 v221, v212, 3, s51
            v_add_u32 v221, 512, v221
            s_mov_b64 s[52:53], 0xffff
            s_branch {lx}
            {lv}:""")
        else:
            A(f"""
            v_mul_u32_u24 v220, 320, v222
            v_lshl_add_u32 v220, v212, 4, v220
            v_lshl_add_u32 v220, v223, 3, v220
            v_add_u32 v220, s51, v220
            v_add_u32 v221, 256, v220
            s_mov_b32 s52, 0x000f000f
            s_mov_b32 s53, 0x000f000f""")
    lk0 = L("kv0")
    A(f"""
    {lx}:
    v_add_u32 v225, s51, v{vB}
    s_cmp_eq_u32 {sKH}, 0
    s_cbranch_scc1 {lk0}
    ds_write_b128 v225, v[140:143]
    ds_write_b128 v225, v[144:147] offset:1024
    ds_write_b32 v215, v216 offset:32
    s_setprio 0
    s_branch {lq}
    {lk0}:
    s_lshl_b32 s56, {sB}, 2
    s_add_u32 s56, s56, {sTT}
    s_mul_i32 s56, s56, 1280
    s_lshr_b32 s79, {sNB}, 2
    s_mul_i32 s79, s79, 640
    s_add_u32 s56, s56, s79
    s_add_u32 s56, s56, {WS_KV}
    s_lshl_b32 s79, {sXCD}, 5
    s_add_u32 s79, s79, {sIDX}
    s_lshl_b32 s79, s79, 7
    s_add_u32 s79, s79, {WS_F1}
    v_mov_b32 v156, {sT}
    v_mov_b32 v157, {sXCC}
    """)
    ldsspin(217, 219, 1, 32)
    A(f"ds_read_b128 v[148:151], v225 offset:4096\nds_read_b128 v[152:155], v225 offset:5120\ns_waitcnt lgkmcnt(0)")
    for r in range(8): A(f"v_add_f32 v{140+r}, v{140+r}, v{148+r}")
    for r in range(4): A(f"v_cvt_pk_bf16_f32 v{148+r}, v{140+2*r}, v{141+2*r}")
    A(f"""
    ds_write_b64 v220, v[148:149]
    s_mov_b64 exec, s[52:53]
    ds_write_b64 v221, v[150:151]
    s_mov_b32 exec_lo, -1
    s_mov_b32 exec_hi, 0xff
    ds_read_b128 v[152:155], v225
    s_waitcnt lgkmcnt(0)
    buffer_store_dwordx4 v[152:155], v{vB}, {WS}, s56 offen sc1""")
    stamp("kvst")
    A(f"""
    s_waitcnt vmcnt(0)
    s_mov_b64 exec, 1
    buffer_store_dwordx2 v[156:157], off, {WS}, s79 sc1
    s_mov_b64 exec, -1
    s_setprio 0
    {lq}:
    """)
    stamp("kvpub")
    ACC, RING = 40, 60
    def rdq(st, ct):
        for hf in range(2): A(f"ds_read_b64_tr_b16 {vr(RING+20*(st&1)+4*ct+2*hf,2)}, v218 offset:{st*5120+hf*2560+ct*32}")
    for grp, (s0, s1) in enumerate(((0,4),(4,8),(8,10))):
        A(f"s_waitcnt vmcnt({(15,5,0)[grp]})\ns_barrier")
        stamp(f"q{grp}")
        for ct in range(5): rdq(s0, ct)
        for st in range(s0, s1):
            for ct in range(5):
                more = st+1 < s1
                if more: rdq(st+1, ct)
                A(f"s_waitcnt lgkmcnt({10 if more else 2*(4-ct)})")
                d = vr(ACC+4*ct,4)
                A(f"v_mfma_f32_16x16x32_bf16 {d}, {vr(RING+20*(st&1)+4*ct,4)}, {vr(4*st,4)}, {'0' if st == 0 else d}")
    LQP = 102400
    A(f"""
    s_lshl_b32 s78, {sTT}, 4
    v_add_u32 v220, s78, v212
    v_mul_u32_u24 v220, 336, v220
    v_lshl_add_u32 v220, v210, 4, v220
    s_mul_i32 s78, {sKH}, 21504
    s_add_u32 s78, s78, {LQP}
    v_add_u32 v220, s78, v220
    v_and_b32 v221, 31, v{vL}
    v_lshrrev_b32 v222, 5, v{vL}
    s_lshl_b32 s78, {sXCD}, 12
    s_add_u32 s78, s78, {WS_F1}
    v_lshl_add_u32 v248, v221, 7, s78
    """)
    for ct in range(5): A(f"ds_write_b128 v220, {vr(ACC+4*ct,4)} offset:{64*ct}")
    A("s_waitcnt lgkmcnt(0)\ns_barrier")
    stamp("BQ")
    A(f"s_cmp_ge_u32 {sW}, 4\ns_cbranch_scc1 L_loader")

    O_ = (0, 16); S3 = (32, 48, 64); KMb = (80, 84); KTb = (88, 92); Vb = (96, 112); Qm = (128, 134); aK, aT, aV, vIDX = 140, 141, 142, 143
    A(f"""
    s_setprio 1
    v_mul_u32_u24 v223, 336, v221
    s_mul_i32 s78, {sQ}, 80
    s_add_u32 s78, s78, {LQP}
    v_add_u32 v223, s78, v223
    v_lshl_add_u32 v224, v222, 5, v223
    """)
    for q in range(2):
        for p in range(2):
            o = 21504*p + 32*336*q; r = 144 + 24*q + 12*p
            A(f"ds_read_b128 {vr(r,4)}, v224 offset:{o}\nds_read_b128 {vr(r+4,4)}, v224 offset:{o+16}\nds_read_b128 {vr(r+8,4)}, v223 offset:{o+64}")
    A(f"""
    v_bfe_u32 v250, v{vL}, 4, 1
    v_mul_u32_u24 v250, 1280, v250
    v_lshl_add_u32 v{aT}, v212, 3, v250
    v_add_u32 v{aT}, 512, v{aT}
    v_lshl_add_u32 v{aK}, v212, 4, v250
    v_lshl_add_u32 v{aK}, v222, 8, v{aK}
    v_and_b32 v250, 3, v{vL}
    v_bfe_u32 v251, v{vL}, 2, 1
    v_bfe_u32 v252, v{vL}, 3, 1
    v_lshl_add_u32 v253, v251, 3, v250
    v_lshl_add_u32 v253, v252, 2, v253
    s_and_b32 s78, {sQ}, 1
    s_lshl_b32 s79, s78, 2
    v_add_u32 v253, s79, v253
    s_lshl_b32 s79, s78, 4
    s_sub_u32 s79, 16, s79
    v_add_u32 v250, s79, v250
    v_cmp_gt_u32 vcc, 16, v221
    v_mul_u32_u24 v251, 20, v222
    v_cndmask_b32 v253, v250, v253, vcc
    v_add_u32 v253, v253, v251
    v_lshlrev_b32 v{aV}, 4, v253
    v_add_u32 v{aV}, 640, v{aV}
    v_mov_b32 v{vIDX}, 0xDDDDDDDD
    s_mov_b32 s76, 0x000fffff
    s_mov_b32 s77, 0x000fffff
    s_mov_b32 s48, 0x01100000
    s_mov_b32 s49, 0x01100000
    v_mov_b32 v250, {ONES}
    """)
    for r in range(32): A(f"v_cndmask_b32 v{96+r}, 0, v250, s[48:49]")
    for r in range(32): A(f"v_mov_b32 v{r}, 0")
    A(f"s_mov_b32 s79, {f2u(20**-0.5 * math.log2(math.e))}\ns_waitcnt lgkmcnt(0)")
    for q in range(2):
        r0 = 144 + 24*q
        for r in range(12): A(f"v_add_f32 v{r0+r}, v{r0+r}, v{r0+12+r}")
        for r in range(12): A(f"v_mul_f32 v{r0+r}, s79, v{r0+r}")
        for r in range(6): A(f"v_cvt_pk_bf16_f32 v{Qm[q]+r}, v{r0+2*r}, v{r0+1+2*r}")
    A("s_mov_b32 exec_lo, 0")
    for q in range(2): A(f"v_mov_b32 v{Qm[q]+4}, 0\nv_mov_b32 v{Qm[q]+5}, 0")
    A(f"""
    s_mov_b64 exec, -1
    v_mul_u32_u24 v249, 1280, v212
    v_lshl_add_u32 v251, v210, 3, v249
    v_and_b32 v250, 1, v210
    v_lshl_add_u32 v249, v250, 5, v249
    v_lshl_add_u32 v250, v222, 4, v249
    s_lshl_b32 s56, {sB}, 2
    s_add_u32 s56, s56, {sW}
    s_mul_i32 s56, s56, {16*1280}
    s_mul_i32 s57, {sNB}, 160
    s_add_u32 s56, s56, s57
    s_barrier
    """)
    stamp("slot0")
    A(f"""
    buffer_load_dword v255, v248, {WS}, 0 offen offset:4 sc1
    buffer_load_dwordx4 {vr(XR,4)}, v250, {X}, s56 offen
    buffer_load_dwordx2 {vr(XR+4,2)}, v251, {X}, s56 offen offset:64
    buffer_load_dwordx4 {vr(XR+6,4)}, v250, {X}, s56 offen offset:96
    """)
    cur = {"K": 0, "V": 0}
    lg = Q(A, "lgkmcnt", 15)
    def rebase(key, reg, off, span):
        if off + span - cur[key] > 65535:
            A(f"v_add_u32 v{reg}, {off - cur[key]}, v{reg}"); cur[key] = off
        return off - cur[key]
    def rdK(T):
        o = rebase("K", aK, 2560*T, 0); A(f"ds_read_b128 {vr(KMb[T&1],4)}, v{aK} offset:{o}"); lg.add(("K", T))
    tcur = [0]
    def rdT(T):
        if 5*(T+1) - tcur[0] > 255:
            A(f"v_add_u32 v{aT}, {512*(5*T - tcur[0])}, v{aT}"); tcur[0] = 5*T
        A(f"ds_read2st64_b64 {vr(KTb[(T>>1)&1],4)}, v{aT} offset0:{5*T-tcur[0]} offset1:{5*T+5-tcur[0]}"); lg.add(("T", T))
    def rdV(T):
        o = rebase("V", aV, 2560*T, 3840)
        A("s_mov_b64 exec, s[76:77]")
        for i in range(4): A(f"ds_read_b128 {vr(Vb[(T>>1)&1]+4*i,4)}, v{aV} offset:{o+1280*i}")
        A("s_mov_b64 exec, -1"); lg.add(("V", T), 4)
    def m1(u):
        T, q = u >> 1, u & 1; lg.wait(("K", T))
        A(f"v_mfma_f32_32x32x16_bf16 {vr(S3[u%3],16)}, {vr(KMb[T&1],4)}, {vr(Qm[q],4)}, 0")
    def m2(u):
        T, q = u >> 1, u & 1; lg.wait(("T", T & ~1)); S = vr(S3[u%3],16)
        A(f"v_mfma_f32_32x32x8_bf16 {S}, {vr(KTb[(T>>1)&1]+2*(T&1),2)}, {vr(Qm[q]+4,2)}, {S}")
    def sm(u, h):
        T, q = u >> 1, u & 1; lg.wait(("V", T & ~1))
        A(f"v_smfmac_f32_32x32x32_bf16 {vr(O_[q],16)}, {vr(Vb[(T>>1)&1]+8*(T&1)+4*h,4)}, {vr(S3[u%3]+8*h,8)}, v{vIDX}")
    def EX(u, a):
        for r in range(a, a+4): A(f"v_exp_f32 v{S3[u%3]+r}, v{S3[u%3]+r}")
    BAR1, BAR2 = opt.get("bar1", 12), opt.get("bar2", 100)
    rdK(0); rdT(0); rdK(1); rdV(0)
    m1(0); m2(0)
    for u in range(128):
        if u % 16 == 0: stamp(f"a{u//2}")
        T = u >> 1
        if u == BAR1 or u == BAR2: A("s_barrier")
        if u < 127: m1(u+1)
        if u % 2 == 0 and T + 2 < 64: rdK(T+2)
        EX(u, 0)
        if u < 127: m2(u+1)
        if u % 4 == 0 and T + 2 < 64: rdT(T+2)
        EX(u, 4)
        if u > 0: sm(u-1, 0)
        EX(u, 8)
        if u > 0: sm(u-1, 1)
        if u % 4 == 0 and T + 2 < 64: rdV(T+2)
        EX(u, 12)
    sm(127, 0); sm(127, 1)
    stamp("attn")
    A(f"""
    s_waitcnt vmcnt(0)
    v_cmp_ne_u32 vcc, {sXCC}, v255
    s_mov_b32 s48, 0
    s_mov_b32 s49, -1
    s_cmp_eq_u64 vcc, 0
    s_cselect_b32 {sFAST}, {0 if force_slow else 1}, 0
    v_and_b32 v250, 15, v{vL}
    v_bfe_u32 v251, v{vL}, 4, 1
    v_lshrrev_b32 v252, 5, v{vL}
    v_mul_u32_u24 v251, 20480, v251
    v_lshl_add_u32 v251, v250, 4, v251
    v_lshl_add_u32 v252, v252, 8, v251
    s_mul_i32 s57, {sB}, 81920
    s_add_u32 s57, s57, {WS_O}
    s_lshl_b32 s58, {sNB}, 2
    s_add_u32 s58, s58, {sQ}
    s_lshl_b32 s62, {sB}, 7
    s_add_u32 s62, s62, {WS_F2}
    s_lshl_b32 s59, s58, 2
    s_add_u32 s56, s62, s59
    s_mul_i32 s58, s58, 20
    s_add_u32 s59, s58, 4
    s_lshr_b32 s59, s59, 3
    s_lshl_b32 s59, s59, 8
    s_add_u32 s59, s59, s57
    s_and_b32 s60, {sQ}, 1
    s_lshl_b32 s61, s60, 4
    s_sub_u32 s58, s58, s61
    s_add_u32 s58, s58, 16
    s_lshr_b32 s58, s58, 3
    s_lshl_b32 s58, s58, 8
    s_lshl_b32 s60, s60, 3
    s_add_u32 s58, s58, s60
    s_add_u32 s58, s58, s57
    s_add_u32 s60, s58, 40960
    s_add_u32 s61, s59, 40960
    s_mov_b64 s[50:51], 0
    """)
    for q in range(2):
        O = O_[q]
        A(f"v_cndmask_b32 v{144+q}, v{O+12}, v{O+8}, s[48:49]")
        A(f"v_add_f32 v146, |v{O}|, |v{O+1}|\nv_add_f32 v147, |v{O+2}|, |v{O+3}|")
        for r in range(4, 12, 2): A(f"v_add_f32 v146, v146, |v{O+r}|\nv_add_f32 v147, v147, |v{O+r+1}|")
        A(f"""
        v_add_f32 v146, v146, v147
        v_cmp_nle_f32 vcc, {f2u(2.0**-60)}, v{144+q}
        s_or_b64 s[50:51], s[50:51], vcc
        v_cmp_nge_f32 vcc, {f2u(2.0**100)}, v{144+q}
        s_or_b64 s[50:51], s[50:51], vcc
        v_cmp_nge_f32 vcc, {f2u(2.0**126)}, v146
        s_or_b64 s[50:51], s[50:51], vcc""")
    A(f"s_cmp_lg_u64 s[50:51], 0\ns_cbranch_scc{0 if force_fb else 1} L_fallback\nL_fbret:")
    A("v_rcp_f32 v144, v144\nv_rcp_f32 v145, v145")
    for q in range(2):
        for r in range(12): A(f"v_mul_f32 v{O_[q]+r}, v{O_[q]+r}, v{144+q}")
        for r in range(6): A(f"v_cvt_pk_bf16_f32 v{32+6*q+r}, v{O_[q]+2*r}, v{O_[q]+2*r+1}")
    stamp("opre")
    publish([f"buffer_store_dwordx4 v[32:35], v252, {WS}, s59 offen", f"buffer_store_dwordx4 v[38:41], v252, {WS}, s61 offen", "s_mov_b32 exec_hi, 0",
             f"buffer_store_dwordx2 v[36:37], v251, {WS}, s58 offen", f"buffer_store_dwordx2 v[42:43], v251, {WS}, s60 offen"], "s56")
    stamp("oflag")
    A("s_barrier")
    stamp("opub")
    AC3, R3 = 80, (100, 120, 140, 200)
    trA(220, None)
    A(f"""
    v_add_u32 v221, 51200, v220
    s_mul_i32 s58, {sW}, 20480
    s_add_u32 s57, s57, s58
    v_and_b32 v222, 31, v{vL}
    v_lshlrev_b32 v222, 2, v222
    v_permlane16_swap_b32 v{XR}, v{XR+2}
    v_permlane16_swap_b32 v{XR+1}, v{XR+3}
    v_permlane16_swap_b32 v{XR+6}, v{XR+8}
    v_permlane16_swap_b32 v{XR+7}, v{XR+9}
    s_mul_i32 s55, {sW}, {12*40960}
    """)
    lg = Q(A, "lgkmcnt", 15); vm = Q(A, "vmcnt", 63)
    def rd3(st, ct):
        b, o = (220, st*5120) if st < 10 else (221, (st-10)*5120)
        for hf in range(2): A(f"ds_read_b64_tr_b16 {vr(R3[st&3]+4*ct+2*hf,2)}, v{b} offset:{o+hf*2560+ct*32}")
        lg.add((st, ct), 2)
    for st in range(4):
        for ct in range(5): rd3(st, ct)
    poll(222, 223, "s62")
    stamp("S2")
    for st in range(20):
        A(f"buffer_load_dwordx4 {vr(4*st,4)}, v{vB}, {WS}, s57 offen offset:{1024*(st&3)} sc1"); vm.add(st)
        if st & 3 == 3 and st < 19: A("s_add_u32 s57, s57, 4096")
    lg.all()
    for st in range(20):
        vm.wait(st)
        for ct in range(5):
            lg.wait((st, ct)); d = vr(AC3+4*ct,4)
            A(f"v_mfma_f32_16x16x32_bf16 {d}, {vr(R3[st&3]+4*ct,4)}, {vr(4*st,4)}, {'0' if st == 0 else d}")
            if st + 4 < 20: rd3(st+4, ct)
        if 4 <= st < 14:
            e, j = divmod(st-4, 5)
            A(f"s_add_u32 s58, s55, {(8+e)*40960}\nbuffer_load_dwordx4 {vr(160+20*e+4*j,4)}, v{WOFF+j}, {WD}, s58 offen"); vm.add("wd")
    stamp("p3mm")
    A(f"""
    s_barrier
    v_and_b32 v1, 15, v{vL}
    v_lshrrev_b32 v2, 5, v{vL}
    v_bfe_u32 v3, v{vL}, 4, 1
    v_lshlrev_b32 v6, 4, v1
    v_lshl_add_u32 v5, v2, 9, v6
    v_lshl_add_u32 v4, v3, 10, v5
    v_lshl_add_u32 v5, v3, 3, v5
    s_lshl_b32 s56, {sB}, 1
    s_add_u32 s56, s56, {sTT}
    s_lshl_b32 s61, {sKH}, 8
    s_mul_i32 s57, s56, 40960
    s_add_u32 s57, s57, s61
    s_mul_i32 s58, {sNB}, 5120
    s_add_u32 s57, s57, s58
    s_add_u32 s57, s57, {WS_H}
    s_lshl_b32 s58, s56, 11
    s_add_u32 s58, s58, s61
    s_lshr_b32 s59, {sNB}, 1
    s_lshl_b32 s59, s59, 9
    s_add_u32 s58, s58, s59
    s_and_b32 s59, {sNB}, 1
    s_lshl_b32 s59, s59, 3
    s_add_u32 s58, s58, s59
    s_add_u32 s58, s58, {WS_HS}
    s_lshl_b32 s56, s56, 7
    s_lshl_b32 s59, {sNB}, 3
    s_add_u32 s56, s56, s59
    s_lshl_b32 s59, {sKH}, 2
    s_add_u32 s56, s56, s59
    s_add_u32 s56, s56, {WS_F3}
    s_mov_b32 s79, 0xffff0000
    v_mov_b32 v12, 0
    v_mov_b32 v13, 0
    """)
    for c in range(5):
        A(f"""v_lshlrev_b32 v8, 16, v{XR+2*c}
        v_and_b32 v9, s79, v{XR+2*c}
        v_lshlrev_b32 v10, 16, v{XR+2*c+1}
        v_and_b32 v11, s79, v{XR+2*c+1}""")
        for r in range(4): A(f"v_add_f32 v{8+r}, v{8+r}, v{AC3+4*c+r}")
        A(f"v_cvt_pk_bf16_f32 v{XR+2*c}, v8, v9\nv_cvt_pk_bf16_f32 v{XR+2*c+1}, v10, v11")
    for r in range(4): A(f"v_mov_b32 v{16+r}, v{XR+r}")
    for r in range(10): A(f"v_dot2c_f32_bf16 v12, {ONES}, v{XR+r}\nv_dot2c_f32_bf16 v13, v{XR+r}, v{XR+r}")
    A(f"""
    v_permlane16_swap_b32 v16, v18
    v_permlane16_swap_b32 v17, v19
    v_permlane16_swap_b32 v{XR+6}, v{XR+8}
    v_permlane16_swap_b32 v{XR+7}, v{XR+9}
    v_mov_b32 v14, v12
    v_mov_b32 v15, v13
    v_permlane16_swap_b32 v12, v14
    v_permlane16_swap_b32 v13, v15
    v_add_f32 v12, v12, v14
    v_add_f32 v13, v13, v15
    v_mov_b32 v14, v12
    v_mov_b32 v15, v13
    v_permlane32_swap_b32 v12, v14
    v_permlane32_swap_b32 v13, v15
    v_add_f32 v12, v12, v14
    v_add_f32 v13, v13, v15
    """)
    stamp("p3pre")
    publish([f"buffer_store_dwordx4 v[16:19], v4, {WS}, s57 offen",
             f"buffer_store_dwordx4 {vr(XR+6,4)}, v4, {WS}, s57 offen offset:3072",
             f"buffer_store_dwordx2 {vr(XR+4,2)}, v5, {WS}, s57 offen offset:2048",
             "s_mov_b64 exec, 0xffff",
             f"buffer_store_dwordx2 v[12:13], v6, {WS}, s58 offen"], "s56")
    stamp("hpub")
    A("s_setprio 0\ns_branch L_p4")

    A("L_loader:")
    GOFF = 250
    A(f"s_mul_i32 s78, {sIDX}, 96\ns_mul_i32 s79, {sKH}, 98304\ns_add_u32 s78, s78, s79")
    for i in range(3):
        A(f"""
        v_add_u32 v0, {64*i}, v{vL}
        v_mul_u32_u24 v1, 10923, v0
        v_lshrrev_b32 v1, 16, v1
        v_mul_u32_u24 v2, 6, v1
        v_sub_u32 v2, v0, v2
        v_mul_u32_u24 v1, 3072, v1
        v_lshl_add_u32 v1, v2, 4, v1
        v_add_u32 v{GOFF+i}, s78, v1""")
    A(f"""
    v_lshlrev_b32 v253, 7, v{vL}
    s_add_u32 s56, {sQ}, 1
    s_add_u32 s57, {sQ}, 5
    s_min_u32 s57, s57, 7
    s_add_u32 s58, s56, {sXCD}
    s_and_b32 s58, s58, 7
    s_add_u32 s59, s57, {sXCD}
    s_and_b32 s59, s59, 7
    s_mul_i32 s60, s58, 20480
    s_mul_i32 s61, s59, 20480
    s_add_u32 s60, s60, {WS_KV}
    s_add_u32 s61, s61, {WS_KV}
    s_mul_i32 s56, s56, 20480
    s_mul_i32 s57, s57, 20480
    s_lshl_b32 s58, s58, 12
    s_lshl_b32 s59, s59, 12
    s_mov_b32 s48, 0
    s_mov_b32 s49, -1
    v_mov_b32 v3, s58
    v_mov_b32 v4, s59
    v_cndmask_b32 v3, v3, v4, s[48:49]
    v_lshl_add_u32 v3, v221, 7, v3
    v_add_u32 v3, {WS_F1}, v3
    v_mov_b32 v5, s60
    v_mov_b32 v4, s61
    v_cndmask_b32 v5, v5, v4, s[48:49]
    v_lshl_add_u32 v5, v221, 7, v5
    s_mul_i32 s62, {sIDX}, 640
    s_mul_i32 s63, {sXCD}, 20480
    s_mul_i32 s64, {sQ}, 5120
    s_add_u32 s63, s63, s64
    s_add_u32 s63, s63, {WS_KV}
    s_lshl_b32 s65, {sIDX}, 1
    s_add_u32 s65, s65, {sKH}
    s_mul_i32 s65, s65, {48*128}
    s_lshl_b32 s66, {sIDX}, 2
    s_add_u32 s66, s66, {sQ}
    s_mul_i32 s67, s66, {50*128}
    s_mul_i32 s66, s66, {60*128}
    s_mul_i32 s55, {sQ}, {12*40960}
    """)
    def touch(srd_, soff, nl, add=0):
        A(f"s_add_u32 s78, {soff}, {add}\ns_mov_b32 exec_hi, {(1 << (nl-32)) - 1}\nbuffer_load_dword v254, v253, {srd_}, s78 offen\ns_mov_b32 exec_hi, -1")
    NPRE = opt.get("npre", 1)
    for s in range(NPRE): touch(GU, "s65", 48, s*393216)
    poll(248, 6, x2=True)
    stamp("S1")
    for j in range(5): A(f"s_add_u32 m0, s64, {1024*j - 1024*(j&3)}\nbuffer_load_dwordx4 v{vB}, {WS}, s63 offen offset:{1024*(j&3)} sc1 lds" + ("\ns_add_u32 s63, s63, 4096" if j == 3 else ""))
    A(f"""
    buffer_load_dword v8, v3, {WS}, 0 offen sc1
    v_cmp_ne_u32 vcc, {sXCC}, v7
    s_nop 1
    s_cmp_eq_u64 vcc, 0
    s_cselect_b32 {sFAST}, {0 if force_slow else 1}, 0
    s_mov_b32 s50, 0x1f
    s_mov_b32 s51, 0x1f
    s_waitcnt vmcnt(0)
    v_cmp_ne_u32 vcc, {sT}, v8
    s_cbranch_vccnz L_l1
    s_mov_b64 exec, s[50:51]
    buffer_load_dword v254, v5, {WS}, s62 offen sc1
    s_mov_b64 exec, -1
    s_barrier
    s_branch L_l2
    L_l1:
    s_barrier""")
    poll(3, 8)
    A(f"""
    s_mov_b64 exec, s[50:51]
    buffer_load_dword v254, v5, {WS}, s62 offen sc1
    s_mov_b64 exec, -1
    L_l2:""")
    stamp("slot0")
    for s in range(NPRE, 2): touch(GU, "s65", 48, s*393216)
    A("s_waitcnt vmcnt(0)")
    stamp("l_t")
    for (src, dst) in (("s60", "s56"), ("s61", "s57")):
        if src == "s61": A(f"s_cmp_eq_u32 {sQ}, 3\ns_cbranch_scc1 L_l3")
        for j in range(20):
            if j & 3 == 0: A(f"s_add_u32 m0, {dst}, {1024*j}")
            A(f"buffer_load_dwordx4 v{vB}, {WS}, {src} offen offset:{1024*(j&3)} sc1 lds")
            if j & 3 == 3: A(f"s_add_u32 {src}, {src}, 4096")
    A("L_l3:")
    def lgu(s):
        for p in (2*s, 2*s+1):
            A(f"s_mov_b32 s78, {p*2*98304}")
            for i in range(3): A(f"buffer_load_dwordx4 {vr(12*p+4*i,4)}, v{GOFF+i}, {GU}, s78 offen")
    touch(GU, "s65", 48, 2*393216); lgu(0)
    A("s_waitcnt vmcnt(7)"); stamp("l_kv"); A("s_barrier")
    touch(GU, "s65", 48, 3*393216); lgu(1)
    touch(GU, "s65", 48, 4*393216); lgu(2)
    touch(WD, "s66", 60, 0); lgu(3)
    touch(WD, "s66", 60, 983040); lgu(4)
    stamp("l_gu")
    touch(WO, "s67", 50, 0)
    for p in range(6):
        A(f"s_add_u32 s78, s55, {(2+p)*40960}")
        for j in range(5): A(f"buffer_load_dwordx4 {vr(120+20*p+4*j,4)}, v{WOFF+j}, {WD}, s78 offen")
    stamp("l_wd")
    A("s_barrier")
    A(f"s_mul_i32 s56, {sQ}, 5120\ns_mul_i32 s57, {sQ}, 40960")
    for p in range(5):
        for j in range(5): A(f"s_add_u32 m0, s56, {20480*p+1024*j}\nbuffer_load_dwordx4 v{WOFF+j}, {WO}, s57 offen lds")
        A(f"s_add_u32 s57, s57, {4*40960}")
    LGU = 40960
    A(f"s_mul_i32 s78, {sKH}, 6144\ns_lshr_b32 s79, {sQ}, 1\ns_mul_i32 s79, s79, 96\ns_add_u32 s78, s78, s79\ns_add_u32 s78, s78, {LGU+61440}")
    for i in range(3):
        A(f"""
        v_add_u32 v248, {64*i}, v{vL}
        v_mul_u32_u24 v249, 10923, v248
        v_lshrrev_b32 v249, 16, v249
        v_mul_u32_u24 v249, 96, v249
        v_lshl_add_u32 v249, v248, 4, v249
        v_add_u32 v{GOFF+i}, s78, v249""")
    A(f"""
    v_and_b32 v248, 3, v{vL}
    v_lshrrev_b32 v253, 2, v{vL}
    v_mul_u32_u24 v253, 192, v253
    v_lshl_add_u32 v253, v248, 3, v253
    v_add_u32 v253, s78, v253
    s_waitcnt vmcnt(0)""")
    stamp("l_wo")
    A("s_barrier")
    CSA, CSF = 108, 60
    for half in (1, 0):
        for p in range(5):
            for i in range(3): A(f"ds_write_b128 v{GOFF+i}, {vr(12*(5*half+p)+4*i,4)} offset:{12288*p}")
        lg = Q(A, "lgkmcnt", 15)
        if half == 1:
            A("s_waitcnt lgkmcnt(0)")
            for r in range(4): A(f"v_mov_b32 v{104+r}, {ONES}")
        def rdc(p):
            for i in range(3):
                for hf in range(2): A(f"ds_read_b64_tr_b16 {vr(CSF+12*(p%3)+4*i+2*hf,2)}, v253 offset:{12288*p+3072*hf+32*i}")
            lg.add(p, 6)
        rdc(0); rdc(1)
        for p in range(5):
            if p + 2 < 5: rdc(p+2)
            lg.wait(p)
            for i in range(3):
                d = vr(CSA+4*i,4)
                A(f"v_mfma_f32_16x16x32_bf16 {d}, v[104:107], {vr(CSF+12*(p%3)+4*i,4)}, {'0' if (half == 1 and p == 0) else d}")
        if half == 1:
            for i in range(4): A(f"v_subrev_u32 v{GOFF+i}, 61440, v{GOFF+i}")
            stamp("l_g1")
            A("s_barrier")
    A(f"s_mul_i32 s78, {sQ}, 192\nv_lshlrev_b32 v248, 2, v{vL}\nv_add_u32 v248, s78, v248\ns_mov_b64 exec, 0xffff")
    for i in range(3): A(f"ds_write_b32 v248, v{CSA+4*i} offset:{64*i}")
    A("s_mov_b64 exec, -1\ns_waitcnt lgkmcnt(0)\ns_setprio 1")
    stamp("l_g0")

    A("L_p4:")
    AC4, AR4, BR4, NB4 = 0, 48, 72, 11
    aA0, aA, vBh, vNM, vVAR, vRS = 116, 117, 118, 248, 249, 250
    A(f"""
    v_and_b32 v1, 1, v{vL}
    v_bfe_u32 v2, v{vL}, 1, 1
    v_lshl_add_u32 v0, v1, 1, v2
    v_bfe_u32 v1, v{vL}, 2, 2
    v_lshrrev_b32 v2, 5, v{vL}
    v_lshl_add_u32 v3, v2, 3, v1
    v_mul_u32_u24 v3, 192, v3
    v_lshl_add_u32 v3, v0, 3, v3
    v_bfe_u32 v0, v{vL}, 4, 1
    v_mul_u32_u24 v4, 96, v0
    v_add_u32 v3, v3, v4
    v_add_u32 v{aA0}, {LGU}, v3
    v_lshl_add_u32 v0, v0, 1, v2
    v_mul_u32_u24 v0, 192, v0
    v_and_b32 v3, 1, v1
    v_lshl_add_u32 v0, v3, 5, v0
    v_lshrrev_b32 v3, 1, v1
    v_lshl_add_u32 v0, v3, 4, v0
    v_and_b32 v3, 3, v{vL}
    v_lshl_add_u32 v119, v3, 2, v0
    v_and_b32 v5, 15, v{vL}
    v_lshlrev_b32 v5, 2, v5
    v_and_b32 v6, 31, v{vL}
    v_lshlrev_b32 v6, 4, v6
    v_lshl_add_u32 v6, v2, 10, v6
    v_add_u32 v{vBh}, 4096, v{vB}
    s_lshl_b32 s56, {sXCD}, 3
    s_add_u32 s56, s56, {sW}
    s_lshl_b32 s57, s56, 7
    s_add_u32 s57, s57, {WS_F3}
    s_lshl_b32 s58, s56, 11
    s_add_u32 s58, s58, {WS_HS}
    s_mul_i32 s59, s56, 40960
    s_add_u32 s59, s59, {WS_H}
    s_barrier
    ds_read_b32 v251, v119
    ds_read_b32 v252, v119 offset:64
    ds_read_b32 v253, v119 offset:128
    """)
    stamp("GB")
    lg = Q(A, "lgkmcnt", 15); vm = Q(A, "vmcnt", 63)
    def rdA4(st, i):
        if st % 20 == 0 and i == 0: A(f"v_add_u32 v{aA}, {61440*(st//20)}, v{aA0}")
        for hf in range(2): A(f"ds_read_b64_tr_b16 {vr(AR4+12*(st&1)+4*i+2*hf,2)}, v{aA} offset:{(st%20)*3072+hf*768+i*32}")
        lg.add((st, i), 2)
    for i in range(3): rdA4(0, i)
    poll(5, 7, "s57")
    stamp("S3")
    def ldB4(st):
        A(f"buffer_load_dwordx4 {vr(BR4+4*(st%NB4),4)}, v{vB}, {WS}, s59 offen offset:{1024*(st&3)} sc1"); vm.add(st)
        if st & 3 == 3: A("s_add_u32 s59, s59, 4096")
    NI = opt.get("p4init", 6)
    ldB4(0); ldB4(1)
    for i in range(2): A(f"buffer_load_dwordx4 {vr(108+4*i,4)}, v6, {WS}, s58 offen offset:{512*i} sc1"); vm.add("st")
    for st in range(2, NI): ldB4(st)
    nld = NI
    stamp("p4issued")
    for st in range(40):
        vm.wait(st)
        stamp(f"p4s{st}")
        for i in range(3):
            if st < 39: rdA4(st+1, i)
            lg.wait((st, i)); d = vr(AC4+16*i,16)
            A(f"v_mfma_f32_32x32x16_bf16 {d}, {vr(AR4+12*(st&1)+4*i,4)}, {vr(BR4+4*(st%NB4),4)}, {'0' if st == 0 else d}")
        if st == 2:
            A(f"""
            v_add_f32 v{vNM}, v108, v110
            v_add_f32 v{vVAR}, v109, v111
            v_add_f32 v112, v112, v114
            v_add_f32 v113, v113, v115
            v_add_f32 v{vNM}, v{vNM}, v112
            v_add_f32 v{vVAR}, v{vVAR}, v113""")
        lim = min(40, st + 1 + NB4 - (0 if st >= 2 else 99)) if st >= 2 else min(9, NI + 2*(st+1))
        k = 0
        while nld < lim and k < 2: ldB4(nld); nld += 1; k += 1
        if st == 30:
            assert nld == 40
            lz = L("latewd")
            A(f"s_cmp_ge_u32 {sW}, 4\ns_cbranch_scc1 {lz}\ns_mul_i32 s60, {sW}, 10240")
            for e in range(2):
                A(f"s_add_u32 s58, s55, {(10+e)*40960}")
                for j in range(5): A(f"buffer_load_dwordx4 {vr(120+20*e+4*j,4)}, v{WOFF+j}, {WD}, s58 offen")
            for e in range(2):
                A(f"s_add_u32 s58, s55, {e*40960}")
                for j in range(5):
                    if e + j > 0: A(f"s_add_u32 m0, s60, {5120*e+1024*j}\nbuffer_load_dwordx4 v{WOFF+j}, {WD}, s58 offen lds")
            A(f"s_branch {lz}b\n{lz}:\ns_waitcnt vmcnt(0)\n{lz}b:")
            vm.add("wd", 19)
    stamp("p4mm")
    lx_ = L("x")
    A(f"s_cmp_ge_u32 {sW}, 4\ns_cbranch_scc1 {lx_}\ns_barrier\ns_mov_b32 m0, s60\nbuffer_load_dwordx4 v{WOFF}, {WD}, s55 offen lds\n{lx_}:")
    T0 = 72
    A(f"""
    v_mov_b32 v{T0}, v{vNM}
    v_mov_b32 v{T0+1}, v{vVAR}
    v_permlane32_swap_b32 v{vNM}, v{T0}
    v_permlane32_swap_b32 v{vVAR}, v{T0+1}
    v_add_f32 v{vNM}, v{vNM}, v{T0}
    v_add_f32 v{vVAR}, v{vVAR}, v{T0+1}
    v_mul_f32 v{vNM}, {f2u(-1/640)}, v{vNM}
    v_mul_f32 v{vVAR}, {f2u(1/640)}, v{vVAR}
    v_fma_f32 v{vVAR}, -v{vNM}, v{vNM}, v{vVAR}
    v_max_f32 v{vVAR}, 0, v{vVAR}
    v_add_f32 v{vVAR}, {f2u(1e-5)}, v{vVAR}
    v_rsq_f32 v{vRS}, v{vVAR}
    v_cvt_pk_bf16_f32 v{T0}, v{vNM}, v{vNM}
    v_and_b32 v{T0+1}, 0xffff0000, v{T0}
    v_sub_f32 v{T0+1}, v{vNM}, v{T0+1}
    v_cvt_pk_bf16_f32 v48, v{vNM}, v{T0+1}
    v_mov_b32 v50, 0
    v_mov_b32 v51, 0
    v_mov_b32 v49, v48
    """)
    for i in range(3):
        A(f"""v_cvt_pk_bf16_f32 v{52+4*i}, v{251+i}, v{251+i}
        v_and_b32 v{T0+1}, 0xffff0000, v{52+4*i}
        v_sub_f32 v{T0+1}, v{251+i}, v{T0+1}
        v_cvt_pk_bf16_f32 v{53+4*i}, v{T0+1}, v{T0+1}
        v_mov_b32 v{54+4*i}, 0
        v_mov_b32 v{55+4*i}, 0""")
        d = vr(AC4+16*i,16)
        A(f"v_mfma_f32_32x32x16_bf16 {d}, {vr(52+4*i,4)}, v[48:51], {d}")
    c1 = -2*math.sqrt(2/math.pi)*math.log2(math.e); c2 = c1*0.044715
    A(f"""
    v_mul_f32 v64, {f2u(c1)}, v{vRS}
    v_mul_f32 v66, v{vRS}, v{vRS}
    v_mul_f32 v66, v66, v{vRS}
    v_mul_f32 v66, {f2u(c2)}, v66
    v_mov_b32 v68, v{vVAR}
    v_and_b32 v70, 15, v{vL}
    v_bfe_u32 v71, v{vL}, 4, 1
    v_lshrrev_b32 v65, 5, v{vL}
    v_mul_u32_u24 v71, 49152, v71
    v_lshl_add_u32 v71, v70, 4, v71
    v_lshl_add_u32 v71, v65, 8, v71
    s_mul_i32 s58, s56, 98304
    s_mul_i32 s59, {sIDX}, 1536
    s_add_u32 s58, s58, s59
    s_add_u32 s58, s58, {WS_HP}
    s_lshl_b32 s56, s56, 7
    s_lshl_b32 s59, {sIDX}, 2
    s_add_u32 s56, s56, s59
    s_add_u32 s56, s56, {WS_F4}
    """)
    for i in range(3):
        g, u, t = AC4+16*i, AC4+16*i+8, T0
        for r in range(0, 8, 2): A(f"v_pk_mul_f32 {vr(t+r,2)}, {vr(g+r,2)}, {vr(g+r,2)}")
        for r in range(0, 8, 2): A(f"v_pk_fma_f32 {vr(t+r,2)}, {vr(t+r,2)}, v[66:67], v[64:65] op_sel_hi:[1,0,0]")
        for r in range(0, 8, 2): A(f"v_pk_mul_f32 {vr(t+r,2)}, {vr(t+r,2)}, {vr(g+r,2)}")
        for r in range(8): A(f"v_exp_f32 v{t+r}, v{t+r}")
        for r in range(0, 8, 2): A(f"v_pk_mul_f32 {vr(u+r,2)}, {vr(u+r,2)}, {vr(g+r,2)}")
        for r in range(0, 8, 2): A(f"v_pk_fma_f32 {vr(t+r,2)}, {vr(t+r,2)}, v[68:69], v[68:69] op_sel_hi:[1,0,0]")
        for r in range(8): A(f"v_rcp_f32 v{t+r}, v{t+r}")
        for r in range(0, 8, 2): A(f"v_pk_mul_f32 {vr(u+r,2)}, {vr(u+r,2)}, {vr(t+r,2)}")
        for r in range(4): A(f"v_cvt_pk_bf16_f32 v{80+4*i+r}, v{u+2*r}, v{u+2*r+1}")
    stamp("p4pre")
    publish([f"buffer_store_dwordx4 {vr(80+4*i,4)}, v71, {WS}, s58 offen offset:{512*i}" for i in range(3)], "s56")
    stamp("hppub")
    aW, a0, a1 = 248, 249, 250
    A(f"s_mul_i32 s60, {sQ}, 10240\nv_add_u32 v{aW}, s60, v{vB}")
    ly = L("y")
    A(f"s_cmp_lt_u32 {sW}, 4\ns_cbranch_scc1 {ly}\ns_setprio 0\ns_barrier\nv_add_u32 v251, 81920, v{aW}")
    for p in range(6):
        for j in range(5):
            b, o = (aW, 40960) if p < 2 else (251, 40960*((p>>1)-1))
            A(f"ds_write_b128 v{b}, {vr(120+20*p+4*j,4)} offset:{o+5120*(p&1)+1024*j}")
    A(f"""
    v_and_b32 v1, 15, v{vL}
    v_lshrrev_b32 v2, 5, v{vL}
    v_bfe_u32 v3, v{vL}, 4, 1
    v_lshlrev_b32 v5, 4, v1
    v_lshl_add_u32 v5, v2, 9, v5
    v_lshl_add_u32 v5, v3, 3, v5
    s_lshl_b32 s56, {sB}, 1
    s_lshr_b32 s57, {sQ}, 1
    s_add_u32 s56, s56, s57
    s_mul_i32 s57, s56, 40960
    s_lshl_b32 s58, {sKH}, 8
    s_add_u32 s57, s57, s58
    s_mul_i32 s58, {sNB}, 5120
    s_add_u32 s57, s57, s58
    s_add_u32 s57, s57, {WS_H+3072}
    s_waitcnt lgkmcnt(0)
    buffer_load_dwordx2 {vr(XR,2)}, v5, {WS}, s57 offen sc1
    buffer_load_dwordx2 {vr(XR+2,2)}, v5, {WS}, s57 offen offset:1024 sc1
    {ly}:""")
    stamp("wdw")
    AC5, AR5 = 0, 40
    BS = [80+4*i for i in range(10)] + [200+4*i for i in range(6)]
    trA(a0, "s60")
    A(f"""
    v_add_u32 v{a1}, 81920, v{a0}
    v_and_b32 v252, 7, v{vL}
    v_lshlrev_b32 v252, 2, v252
    s_lshl_b32 s56, {sB}, 1
    s_add_u32 s56, s56, {sTH}
    s_mul_i32 s57, s56, 98304
    s_mul_i32 s58, {sQ}, 12288
    s_add_u32 s57, s57, s58
    s_add_u32 s57, s57, {WS_HP}
    s_lshl_b32 s56, s56, 7
    s_lshl_b32 s58, {sQ}, 5
    s_add_u32 s56, s56, s58
    s_add_u32 s56, s56, {WS_F4}
    v_add_u32 v251, 49152, v{vB}
    """)
    poll(252, 253, "s56")
    stamp("S4")
    lg = Q(A, "lgkmcnt", 15); vm = Q(A, "vmcnt", 63)
    def ldB5(u):
        for tt in range(2): A(f"buffer_load_dwordx4 {vr(BS[(2*u+tt)%16],4)}, v{(vB, 251)[tt]}, {WS}, s57 offen offset:{1024*(u&3)} sc1")
        vm.add(u, 2)
        if u & 3 == 3: A("s_add_u32 s57, s57, 4096")
    NI5 = opt.get("p5init", 3)
    for u in range(NI5): ldB5(u)
    nld = NI5
    stamp("p5issued")
    A("s_barrier")
    stamp("p5bar")
    def rdA5(u, ct):
        j = (u >> 1) & 3
        b, o = (a0, j*40960) if j < 2 else (a1, (j-2)*40960)
        for hf in range(2): A(f"ds_read_b64_tr_b16 {vr(AR5+20*(u&1)+4*ct+2*hf,2)}, v{b} offset:{o+(u&1)*5120+hf*2560+ct*32}")
        lg.add((u, ct), 2)
    for g0 in (0, 4, 8):
        if g0 == 8 or g0 == 0:
            for ct in range(5): rdA5(g0, ct)
        for u in range(g0, g0+4):
            k = 0
            while nld < min(12, u + 8) and k < 2: ldB5(nld); nld += 1; k += 1
            vm.wait(u)
            stamp(f"p5s{u}")
            nxt = (u+1 < 12) and (u+1 != 8)
            if g0 == 4:
                lw = L("lw"); e = u & 1; src = (160, 120)[(u-4) >> 1] + 20*e
                A(f"s_cmp_ge_u32 {sW}, 4\ns_cbranch_scc1 {lw}")
                for j in range(5): A(f"ds_write_b128 v{aW}, {vr(src+4*j,4)} offset:{40960*((u-4)>>1)+5120*e+1024*j}")
                A(f"{lw}:")
            for ct in range(5):
                if nxt: rdA5(u+1, ct)
                lg.wait((u, ct))
                for tt in range(2):
                    d = vr(AC5+20*tt+4*ct,4)
                    A(f"v_mfma_f32_16x16x32_bf16 {d}, {vr(AR5+20*(u&1)+4*ct,4)}, {vr(BS[(2*u+tt)%16],4)}, {'0' if u == 0 else d}")
        if g0 == 4: lg.all()
        if g0 < 8: A("s_barrier")
    stamp("p5mm")
    A(f"""
    s_lshl_b32 s78, {sQ}, 1
    s_add_u32 s78, s78, {sTH}
    s_mul_i32 s78, s78, 10240
    s_add_u32 s78, s78, 81920
    v_add_u32 v40, s78, v{vB}
    s_mul_i32 s78, {sQ}, 5120
    s_mul_i32 s79, {sTH}, 3072
    s_add_u32 s78, s78, s79
    s_add_u32 s78, s78, 81920
    v_add_u32 v41, s78, v{vB}
    """)
    for q in range(10): A(f"ds_write_b128 v40, {vr(AC5+4*q,4)} offset:{1024*q}")
    A(f"""
    v_and_b32 v42, 15, v{vL}
    v_lshrrev_b32 v43, 4, v{vL}
    v_mul_u32_u24 v42, 1280, v42
    v_lshl_add_u32 v45, v43, 3, v42
    v_and_b32 v44, 1, v43
    v_lshrrev_b32 v43, 1, v43
    v_lshl_add_u32 v42, v44, 5, v42
    v_lshl_add_u32 v44, v43, 4, v42
    s_lshl_b32 s56, {sB}, 2
    s_add_u32 s56, s56, {sQ}
    s_mul_i32 s56, s56, {16*1280}
    s_mul_i32 s57, {sNB}, 160
    s_add_u32 s56, s56, s57
    s_mul_i32 s57, {sTH}, 96
    s_add_u32 s56, s56, s57
    s_mov_b32 s79, 0xffff0000
    s_waitcnt lgkmcnt(0)
    s_barrier
    """)
    stamp("p5x")
    l5, l6 = L("t5"), L("t6")
    for c in range(3):
        if c == 2: A(f"s_cmp_eq_u32 {sTH}, 1\ns_cbranch_scc1 {l5}")
        for q in range(4): A(f"ds_read_b128 {vr(56+16*c+4*q,4)}, v41 offset:{1024*c+20480*q}")
    A(f"{l5}:")
    for c in range(3):
        A(f"""v_lshlrev_b32 v48, 16, v{XR+2*c}
        v_and_b32 v49, s79, v{XR+2*c}
        v_lshlrev_b32 v50, 16, v{XR+2*c+1}
        v_and_b32 v51, s79, v{XR+2*c+1}
        s_waitcnt lgkmcnt({4 if c == 0 else 0})""")
        for q in range(4):
            for r in range(4): A(f"v_add_f32 v{48+r}, v{48+r}, v{56+16*c+4*q+r}")
        A(f"v_cvt_pk_bf16_f32 v{110+2*c}, v48, v49\nv_cvt_pk_bf16_f32 v{111+2*c}, v50, v51")
        if c == 1:
            A(f"""v_permlane16_swap_b32 v110, v112
            v_permlane16_swap_b32 v111, v113
            buffer_store_dwordx4 v[110:113], v44, {OUT}, s56 offen
            s_cmp_eq_u32 {sTH}, 1
            s_cbranch_scc1 {l6}""")
    A(f"buffer_store_dwordx2 v[114:115], v45, {OUT}, s56 offen offset:64\n{l6}:")
    le = L("ep")
    A(f"""
    s_add_u32 s78, s2, {sW}
    s_cmp_lg_u32 s78, 0
    s_cbranch_scc1 {le}
    v_mov_b32 v46, {sT}
    s_mov_b64 exec, 1
    buffer_store_dword v46, off, {WS}, 0 sc1
    s_mov_b64 exec, -1
    {le}:""")
    if diag:
        A("s_waitcnt vmcnt(0)")
        stamp("end")
        A(f"s_lshl_b32 s78, s2, 3\ns_add_u32 s78, s78, {sW}\ns_lshl_b32 s78, s78, 6\ns_add_u32 s78, s78, {WS_DBG}\ns_mov_b64 exec, 1")
        A(f"s_mov_b32 s99, {sFAST}")
        for i in range(16): A(f"v_mov_b32 v{i}, s{84+i}")
        for i in range(4): A(f"buffer_store_dwordx4 {vr(4*i,4)}, off, {WS}, s78 offset:{16*i}")
    A("L_exit:\ns_endpgm")
    def fm(q):
        S = vr(S3[q],16)
        A(f"v_mfma_f32_32x32x16_bf16 {S}, v[80:83], {vr(Qm[q],4)}, 0\nv_mfma_f32_32x32x8_bf16 {S}, v[88:89], {vr(Qm[q]+4,2)}, {S}")
    A(f"""
    L_fallback:
    v_subrev_u32 v{aK}, {cur['K']}, v{aK}
    v_subrev_u32 v{aT}, {512*tcur[0]}, v{aT}
    v_subrev_u32 v{aV}, {cur['V']}, v{aV}
    v_mov_b32 v144, 0xff800000
    v_mov_b32 v145, 0xff800000
    s_mov_b32 s63, {WS_KV}
    s_nop 7
    L_fb1:
    buffer_load_dwordx4 v[80:83], v{aK}, {WS}, s63 offen sc1
    buffer_load_dwordx2 v[88:89], v{aT}, {WS}, s63 offen sc1
    s_waitcnt vmcnt(0)""")
    fm(0); fm(1)
    for q in range(2):
        for r in range(0, 16, 2): A(f"v_max3_f32 v{144+q}, v{144+q}, v{S3[q]+r}, v{S3[q]+r+1}")
    A(f"""
    s_add_u32 s63, s63, 2560
    s_cmp_lt_u32 s63, {WS_KV+163840}
    s_cbranch_scc1 L_fb1
    v_mov_b32 v146, v144
    v_mov_b32 v147, v145
    v_permlane32_swap_b32 v144, v146
    v_permlane32_swap_b32 v145, v147
    v_max_f32 v144, v144, v146
    v_max_f32 v145, v145, v147
    s_mov_b32 s63, {WS_KV}""")
    for r in range(32): A(f"v_mov_b32 v{r}, 0")
    A(f"""
    s_nop 7
    L_fb2:
    buffer_load_dwordx4 v[80:83], v{aK}, {WS}, s63 offen sc1
    buffer_load_dwordx2 v[88:89], v{aT}, {WS}, s63 offen sc1
    s_mov_b64 exec, s[76:77]
    buffer_load_dwordx4 v[96:99], v{aV}, {WS}, s63 offen sc1
    buffer_load_dwordx4 v[100:103], v{aV}, {WS}, s63 offen offset:1280 sc1
    s_mov_b64 exec, -1
    s_waitcnt vmcnt(0)""")
    fm(0); fm(1)
    for q in range(2):
        for r in range(16): A(f"v_sub_f32 v{S3[q]+r}, v{S3[q]+r}, v{144+q}")
        for r in range(16): A(f"v_exp_f32 v{S3[q]+r}, v{S3[q]+r}")
    for q in range(2):
        for h in range(2): A(f"v_smfmac_f32_32x32x32_bf16 {vr(O_[q],16)}, {vr(96+4*h,4)}, {vr(S3[q]+8*h,8)}, v{vIDX}")
    A(f"""
    s_add_u32 s63, s63, 2560
    s_cmp_lt_u32 s63, {WS_KV+163840}
    s_nop 7
    s_cbranch_scc1 L_fb2
    v_cndmask_b32 v144, v12, v8, s[48:49]
    v_cndmask_b32 v145, v28, v24, s[48:49]
    s_branch L_fbret
    L_end:""")
    hdr = open("cdna_kernels/" + NAME + ".s.ref").read().split("\n")
    k0 = next(i for i, l in enumerate(hdr) if l.startswith(NAME + "_kernel:"))
    k1 = next(i for i, l in enumerate(hdr) if l.startswith(".section .rodata"))
    head = [("; @launch grid=(256,1,1) block=(512,1,1) lds=163840" if l.startswith("; @launch") else l) for l in hdr[:k0+1]]
    if diag: head.insert(1, "; stamps: " + " ".join(names))
    return "\n".join(head) + "\n" + A.text() + "    s_endpgm\n" + "\n".join(hdr[k1:]), A.nops

D0 = "xin kvpub BQ slot0 attn opub S2 hpub GB S3 hppub S4 p5bar end".split()
V = dict(diag=dict(diag=D0), slow=dict(diag=D0, force_slow=True), fb=dict(force_fb=True),
  d1=dict(diag="xin stats kvst kvpub q0 q1 q2 BQ S1 slot0 l_t l_kv a8".split()),
  d2=dict(diag="slot0 a8 a16 a32 a48 a56 attn oflag opub l_kv l_gu l_wd l_wo".split()),
  d3=dict(diag="attn opre oflag opub S2 p3mm p3pre hpub l_g1 l_g0 GB S3 p4issued p4s0".split()),
  d4=dict(diag="GB S3 p4issued p4s0 p4s5 p4s10 p4s20 p4s30 p4mm p4pre hppub wdw S4 p5bar".split()),
  d5=dict(diag="hppub wdw S4 p5issued p5bar p5s0 p5s2 p5s4 p5s6 p5s8 p5s10 p5mm p5x end".split()))
if __name__ == "__main__":
    t, n = gen()
    open("cdna_kernels/" + NAME + ".s", "w").write(t)
    for nm, kw in V.items(): open(f"k_{nm}.s", "w").write(gen(**kw)[0])
    print("ok; nops", n, "lines", t.count("\n"))
```

```python
import sys, math, struct
from asmlib import Asm
NAME = "sequential_preLN__grouped_kv_mqa__glu_gated_geglu__prompt"
WS_F1, WS_F2, WS_F3, WS_F4 = 0x1000, 0x9000, 0xB000, 0xD000
WS_CS = 0xB80000
WS_KV, WS_HS, WS_O, WS_H, WS_HP, WS_DBG, WS_SIZE = 0x10000, 0x40000, 0x80000, 0x300000, 0x580000, 0xC00000, 0x1000000
def f2u(x): return "0x%08x" % struct.unpack("<I", struct.pack("<f", x))[0]
def vr(a, n): return f"v[{a}:{a+n-1}]" if n > 1 else f"v{a}"
ONES = "0x3f803f80"

class Q:
    def __init__(s, A, name, cap): s.A, s.name, s.cap, s.q, s.done = A, name, cap, [], 0
    def add(s, tag, n=1): s.q += [tag]*n
    def wait(s, tag):
        i = max(i for i, x in enumerate(s.q) if x == tag)
        if i < s.done: return
        k = min(len(s.q) - 1 - i, s.cap); s.done = len(s.q) - k
        s.A(f"s_waitcnt {s.name}({k})")
    def all(s): s.A(f"s_waitcnt {s.name}(0)"); s.done = len(s.q)

def gen(diag=False, force_slow=False, force_fb=False, **opt):
    A = Asm()
    X, WQ, WKV, WO, GU, WD, OUT, WS = ("s[8:11]","s[12:15]","s[16:19]","s[20:23]","s[24:27]","s[28:31]","s[32:35]","s[36:39]")
    sW, sXCD, sIDX, sB, sNB = "s3","s4","s5","s6","s7"
    sT, sXCC, sFAST, sTT, sKH, sTH, sQ = "s40","s41","s42","s43","s44","s45","s46"
    names = []
    def stamp(name):
        if not diag or (name not in diag and name != "start"): return
        if name not in names: names.append(name)
        i = names.index(name); assert i < 15
        A(f"{'s_memrealtime' if opt.get('rt') else 's_memtime'} s[82:83]\ns_waitcnt lgkmcnt(0)\ns_mov_b32 s{84+i}, s82")
    WOFF, vL, vB, vT1 = 240, 245, 246, 247
    XR = 230
    lab = [0]
    def L(p):
        lab[0] += 1; return f"L_{p}{lab[0]}"
    def poll(vaddr, vdst, soff="0", x2=False):
        l0, l1 = L("poll"), L("pdone")
        A(f"s_mov_b32 s78, 0\n{l0}:")
        A(f"buffer_load_dword{'x2' if x2 else ''} {vr(vdst, 2 if x2 else 1)}, v{vaddr}, {WS}, {soff} offen sc1")
        A(f"s_add_u32 s78, s78, 1\ns_cmp_gt_u32 s78, 0x8000\ns_cbranch_scc1 {l1}")
        A(f"s_waitcnt vmcnt(0)\nv_cmp_ne_u32 vcc, {sT}, v{vdst}\ns_cbranch_vccnz {l0}")
        A(f"{l1}:\ns_waitcnt vmcnt(0)")
    def ldsspin(vaddr, vdst, val, off=0):
        l0, l1 = L("spin"), L("spind")
        A(f"""s_mov_b32 s78, 0
        {l0}:
        ds_read_b32 v{vdst}, v{vaddr} offset:{off}
        s_add_u32 s78, s78, 1
        s_cmp_gt_u32 s78, 0x40000
        s_cbranch_scc1 {l1}
        s_waitcnt lgkmcnt(0)
        v_cmp_ne_u32 vcc, {val}, v{vdst}
        s_cbranch_vccnz {l0}
        {l1}:""")
    def stores(lst):
        ls, le = L("slow"), L("stend")
        A(f"s_cmp_eq_u32 {sFAST}, 0\ns_cbranch_scc1 {ls}")
        for sc in ("", " sc1"):
            for st in lst: A(st + sc if st.startswith("buffer_store") else st)
            if not sc: A(f"s_branch {le}\n{ls}:")
        A(f"{le}:")
    def flag(addr_s):
        A(f"v_mov_b32 v{vT1}, {sT}\ns_mov_b64 exec, 1\ns_waitcnt vmcnt(0)")
        stores([f"buffer_store_dword v{vT1}, off, {WS}, {addr_s}"])
        A("s_mov_b64 exec, -1")
    ALIAS = opt.get("alias", 1)
    OB, OST = (WS_HP, 49152) if ALIAS else (WS_O, 20480)
    HSRD, HB = (OUT, 0) if ALIAS else (WS, WS_H)
    LCS = 102400
    def csaddr(dst, t):
        A(f"""
        v_bfe_u32 v{t}, v{vL}, 4, 1
        v_lshrrev_b32 v{dst}, 5, v{vL}
        v_lshl_add_u32 v{dst}, v{t}, 1, v{dst}
        v_lshlrev_b32 v{dst}, 8, v{dst}
        v_bfe_u32 v{t}, v{vL}, 2, 1
        v_lshl_add_u32 v{dst}, v{t}, 5, v{dst}
        v_bfe_u32 v{t}, v{vL}, 3, 1
        v_lshl_add_u32 v{dst}, v{t}, 4, v{dst}
        v_and_b32 v{t}, 3, v{vL}
        v_lshl_add_u32 v{dst}, v{t}, 2, v{dst}
        """)
    def srd(base, lo, size):
        A(f"s_mov_b32 s{base}, s{lo}\ns_mov_b32 s{base+1}, s{lo+1}\ns_mov_b32 s{base+2}, {size}\ns_mov_b32 s{base+3}, 0x00020000")
    def trA(dst, kh_term):
        A(f"v_and_b32 v{vT1}, 3, v{vL}\nv_lshrrev_b32 v{dst}, 2, v{vL}\nv_mul_u32_u24 v{dst}, 160, v{dst}\nv_lshl_add_u32 v{dst}, v{vT1}, 3, v{dst}")
        if kh_term: A(f"v_add_u32 v{dst}, {kh_term}, v{dst}")

    LGU = 40960
    AC4, AR4, NA4, BR4, NB4 = 0, 48, opt.get("na4", 3), 84, 7
    aA0, aA, vF4, vST, vNM, vVAR, vRS = 116, 117, 118, 119, 248, 249, 250
    def p4pro():
        A(f"""
        v_and_b32 v109, 1, v{vL}
        v_bfe_u32 v110, v{vL}, 1, 1
        v_lshl_add_u32 v108, v109, 1, v110
        v_bfe_u32 v109, v{vL}, 2, 3
        v_lshrrev_b32 v110, 5, v{vL}
        v_lshl_add_u32 v111, v110, 4, v109
        v_mul_u32_u24 v111, 96, v111
        v_lshl_add_u32 v111, v108, 3, v111
        v_add_u32 v{aA0}, {LGU}, v111
        v_and_b32 v115, 15, v{vL}
        v_lshlrev_b32 v115, 2, v115
        v_and_b32 v108, 31, v{vL}
        v_lshlrev_b32 v{vF4}, 2, v108
        v_lshlrev_b32 v108, 4, v108
        v_lshl_add_u32 v{vST}, v110, 10, v108
        s_lshl_b32 s68, {sXCD}, 2
        s_add_u32 s68, s68, {sQ}
        s_lshl_b32 s68, s68, 1
        s_add_u32 s68, s68, 1
        s_sub_u32 s68, s68, {sTH}
        s_lshl_b32 s57, s68, 7
        s_add_u32 s57, s57, {WS_F3}
        s_lshl_b32 s58, s68, 11
        s_add_u32 s58, s58, {WS_HS}
        s_mul_i32 s59, s68, 40960
        s_add_u32 s59, s59, {HB}
        s_mul_i32 s60, {sW}, 5120
        s_mul_i32 s61, {sW}, 40960
        s_add_u32 s61, s61, {40*40960}
        s_lshl_b32 s62, {sB}, 8
        s_add_u32 s62, s62, {WS_F4}
        s_mul_i32 s63, {sB}, {4*49152}
        s_add_u32 s63, s63, {WS_HP}
        s_lshl_b32 s64, {sW}, 10
        s_add_u32 s64, s64, s63
        s_add_u32 s64, s64, {40*1024}""")
    def tr5(r, wr, aw, ar):
        if wr:
            for j in range(5): A(f"ds_write_b128 v{aw}, {vr(r+4*j,4)} offset:{1024*j}")
        for ct in range(5):
            for hf in range(2): A(f"ds_read_b64_tr_b16 {vr(r+4*ct+2*hf,2)}, v{ar} offset:{hf*2560+ct*32}")
    LWKV, LKX, LST, LFL, LKP, LQP = 102400, 158720, 160768, 161792, 162048, 102400
    XF, ACC, RING, GOFF = 144, 184, 32, 250
    O_ = (0, 16); S3 = (32, 48, 64); KMb = (80, 84); KTb = (88, 92); Vb = (96, 112); Qm = (128, 134); aK, aT, aV, vIDX = 140, 141, 142, 143
    A(f"""
    s_cmp_ge_u32 s2, 256
    s_cbranch_scc1 L_exit
    s_load_dwordx16 s[52:67], s[0:1], 0
    s_load_dwordx8 s[68:75], s[0:1], 64
    s_getpc_b64 s[80:81]
    L_pc:
    v_lshrrev_b32 v1, 6, v0
    v_and_b32 v{vL}, 63, v0
    s_lshr_b32 {sIDX}, s2, 3
    s_lshl_b32 s78, {sIDX}, 11
    v_lshlrev_b32 v253, 7, v{vL}
    v_lshl_add_u32 v2, v1, 8, v253
    v_add_u32 v2, s78, v2
    v_min_u32 v2, L_end-L_pc-4, v2
    s_mov_b64 exec, 3
    global_load_dword v203, v2, s[80:81]
    s_mov_b64 exec, -1
    v_readfirstlane_b32 {sW}, v1
    s_and_b32 {sXCD}, s2, 7
    s_lshr_b32 {sB}, {sIDX}, 3
    s_and_b32 {sNB}, {sIDX}, 7
    s_lshl_b32 s78, {sXCD}, 2
    s_add_u32 {sB}, {sB}, s78
    s_getreg_b32 {sXCC}, hwreg(HW_REG_XCC_ID, 0, 4)
    s_lshr_b32 {sTT}, {sW}, 1
    s_and_b32 {sKH}, {sW}, 1
    s_lshr_b32 {sTH}, {sW}, 2
    s_and_b32 {sQ}, {sW}, 3
    v_lshlrev_b32 v{vB}, 4, v{vL}
    v_mov_b32 v216, 0
    v_lshlrev_b32 v215, 2, v{vL}
    v_add_u32 v215, {LFL}, v215
    ds_write_b32 v215, v216
    s_lshl_b32 s82, {sB}, 2
    s_add_u32 s82, s82, {sTT}
    s_mul_i32 s78, s82, {16*1280}
    s_mul_i32 s79, {sKH}, 640
    s_add_u32 s78, s78, s79
    v_lshrrev_b32 v209, 3, v{vL}
    v_lshrrev_b32 v210, 4, v{vL}
    v_and_b32 v211, 7, v{vL}
    v_xor_b32 v211, v211, v210
    v_mul_u32_u24 v4, 1280, v209
    v_lshl_add_u32 v4, v211, 4, v4
    v_add_u32 v200, s78, v4
    v_xor_b32 v201, 64, v200
    s_mul_i32 s51, {sW}, 10240
    s_cmp_lt_u32 {sW}, 5
    s_cselect_b32 s78, 0, 25600
    s_add_u32 s51, s51, s78
    s_add_u32 s51, s51, 51200
    s_mul_i32 s50, s82, 1280
    s_lshr_b32 s79, {sNB}, 2
    s_mul_i32 s79, s79, 640
    s_add_u32 s50, s50, s79
    s_add_u32 s50, s50, {WS_KV}
    s_and_b32 s47, {sNB}, 3
    """)
    for r in (255, 219, 226, 227, 229, 232, 233, 248, 250, 251, 252, WOFF, WOFF+1, WOFF+2, WOFF+3, WOFF+4): A(f"v_mov_b32 v{r}, 0")
    A("s_waitcnt lgkmcnt(0)")
    stamp("start")
    if opt.get("dbgclk"): A("s_memtime s[84:85]\ns_memrealtime s[86:87]\ns_mov_b32 s92, s72\ns_mov_b32 s93, s73\ns_mov_b32 s94, 256\ns_mov_b32 s95, 0x00020000\ns_waitcnt lgkmcnt(0)")
    if diag:
        for i in range(1, 15): A(f"s_mov_b32 s{84+i}, s84")
    srd(8, 52, 2621440)
    def xloads():
        A("s_movk_i32 s79, 10240")
        for i in range(5):
            A(f"s_add_u32 m0, s51, {1920*i}\nbuffer_load_dwordx4 v200, {X}, 0 offen offset:{128*i} lds")
            A(f"s_add_u32 m0, s51, {1920*i+1024}\nbuffer_load_dwordx4 v201, {X}, s79 offen offset:{128*i} lds")
    def ifkv(lab, kv=True): A(f"s_cmp_{'eq' if kv else 'lg'}_u32 s47, {sTT}\ns_cbranch_scc1 {lab}")
    def srds():
        srd(36, 74, WS_SIZE); srd(12, 54, 819200)
        A(f"s_cmp_lt_u32 {sNB}, 4\ns_cselect_b32 s16, s56, s58\ns_cselect_b32 s17, s57, s59\ns_mov_b32 s18, 25600\ns_mov_b32 s19, 0x00020000")
    def woff():
        A(f"s_mul_i32 s78, {sNB}, 160")
        for j in range(5):
            A(f"""
            v_add_u32 v204, {64*j}, v{vL}
            v_mul_u32_u24 v205, 6554, v204
            v_lshrrev_b32 v205, 16, v205
            v_mul_u32_u24 v206, 10, v205
            v_sub_u32 v206, v204, v206
            v_and_b32 v207, 3, v205
            v_bfe_u32 v208, v205, 2, 2
            v_lshrrev_b32 v204, 4, v205
            v_lshl_add_u32 v207, v208, 3, v207
            v_lshl_add_u32 v207, v204, 2, v207
            v_mul_u32_u24 v207, 1280, v207
            v_lshl_add_u32 v207, v206, 4, v207
            v_add_u32 v{WOFF+j}, s78, v207
            """)
    def wqdma(js=range(5)):
        for j in js: A(f"s_add_u32 m0, s48, {1024*j}\nbuffer_load_dwordx4 v{WOFF+j}, {WQ}, s49 offen lds")
        if 4 in js: A(f"s_add_u32 s49, s49, {3*40960}\ns_add_u32 s48, s48, 30720")
    def wq1(j):
        l = L("wq"); ifkv(l); wqdma([j]); A(l + ":")
    NL = opt.get("nl", 64); MH = (1 << max(96-NL, 1)) - 1
    def tgu(r, q=None):
        A(f"""s_add_u32 s78, s65, {393216*r}
        s_mov_b64 exec, s[72:73]
        buffer_load_dword v254, v253, {GU}, s78 offen
        s_mov_b64 exec, -1""")
        if q: q.add("t")
    def setup(sx):
        trA(220, None)
        A(f"""
        s_mul_i32 s79, {sKH}, 5120
        v_add_u32 v218, s79, v220
        v_add_u32 v205, 61440, v218
        s_lshl_b32 s78, {sTT}, 4
        v_add_u32 v206, s78, v212
        v_mul_u32_u24 v206, 336, v206
        v_lshl_add_u32 v206, v210, 4, v206
        s_mul_i32 s78, {sKH}, 21504
        s_add_u32 s78, s78, {LQP}
        v_add_u32 v206, s78, v206
        s_lshl_b32 s78, {sXCD}, 12
        s_add_u32 s78, s78, {WS_F1}
        v_lshl_add_u32 v248, v221, 7, s78
        s_mov_b32 s54, 0
        """)
        A(f"s_cmp_ge_u32 {sW}, 4\ns_cbranch_scc1 L_b1{sx}")
        A(f"""
        v_mul_u32_u24 v223, 336, v221
        s_mul_i32 s78, {sQ}, 80
        s_add_u32 s78, s78, {LQP}
        v_add_u32 v223, s78, v223
        v_lshl_add_u32 v224, v222, 5, v223
        v_bfe_u32 v250, v{vL}, 4, 1
        v_mul_u32_u24 v250, 1280, v250
        v_lshl_add_u32 v{aT}, v212, 3, v250
        v_add_u32 v{aT}, 512, v{aT}
        v_lshl_add_u32 v{aK}, v212, 4, v250
        v_lshl_add_u32 v{aK}, v222, 8, v{aK}
        v_and_b32 v250, 3, v{vL}
        v_bfe_u32 v251, v{vL}, 2, 1
        v_bfe_u32 v252, v{vL}, 3, 1
        v_lshl_add_u32 v249, v251, 3, v250
        v_lshl_add_u32 v249, v252, 2, v249
        s_and_b32 s78, {sQ}, 1
        s_lshl_b32 s79, s78, 2
        v_add_u32 v249, s79, v249
        s_lshl_b32 s79, s78, 4
        s_sub_u32 s79, 16, s79
        v_add_u32 v250, s79, v250
        v_cmp_gt_u32 vcc, 16, v221
        v_mul_u32_u24 v251, 20, v222
        v_cndmask_b32 v249, v250, v249, vcc
        v_add_u32 v249, v249, v251
        v_lshlrev_b32 v{aV}, 4, v249
        v_add_u32 v{aV}, 640, v{aV}
        v_mov_b32 v{vIDX}, 0xDDDDDDDD
        s_mov_b32 s76, 0x000fffff
        s_mov_b32 s77, 0x000fffff
        s_mov_b32 s52, 0x01100000
        s_mov_b32 s53, 0x01100000
        v_cndmask_b32 v96, 0, v72, s[52:53]
        """)
        for r in range(1, 32): A(f"v_mov_b32 v{96+r}, v96")
        for r in range(32): A(f"v_mov_b32 v{r}, 0")
        A(f"""
        v_mul_u32_u24 v249, 1280, v212
        v_lshl_add_u32 v251, v210, 3, v249
        v_and_b32 v250, 1, v210
        v_lshl_add_u32 v249, v250, 5, v249
        v_lshl_add_u32 v250, v222, 4, v249
        s_lshl_b32 s63, {sB}, 2
        s_add_u32 s63, s63, {sW}
        s_mul_i32 s63, s63, {16*1280}
        s_mul_i32 s57, {sNB}, 160
        s_add_u32 s63, s63, s57
        v_bfe_u32 v226, v{vL}, 4, 1
        v_mul_u32_u24 v226, {OST}, v226
        v_lshl_add_u32 v226, v212, 4, v226
        v_lshl_add_u32 v227, v222, 8, v226
        s_mul_i32 s57, {sB}, {4*OST}
        s_add_u32 s57, s57, {OB}
        s_lshl_b32 s58, {sNB}, 2
        s_add_u32 s58, s58, {sQ}
        s_lshl_b32 s62, {sB}, 7
        s_add_u32 s62, s62, {WS_F2}
        s_lshl_b32 s59, s58, 2
        s_add_u32 s56, s62, s59
        s_mul_i32 s58, s58, 20
        s_add_u32 s59, s58, 4
        s_lshr_b32 s59, s59, 3
        s_lshl_b32 s59, s59, 8
        s_add_u32 s59, s59, s57
        s_and_b32 s60, {sQ}, 1
        s_lshl_b32 s61, s60, 4
        s_sub_u32 s58, s58, s61
        s_add_u32 s58, s58, 16
        s_lshr_b32 s58, s58, 3
        s_lshl_b32 s58, s58, 8
        s_lshl_b32 s60, s60, 3
        s_add_u32 s58, s58, s60
        s_add_u32 s58, s58, s57
        s_add_u32 s60, s58, {2*OST}
        s_add_u32 s61, s59, {2*OST}
        s_mul_i32 s64, {sW}, {OST}
        s_add_u32 s57, s57, s64
        s_add_u32 s57, s57, 16384
        s_mov_b32 s64, 0
        s_mov_b32 s66, {f2u(2.0**-60)}
        s_mov_b32 s67, {f2u(2.0**100)}
        s_mul_i32 s55, {sQ}, {4*40960}
        s_add_u32 s55, s55, {24*40960}
        v_add_u32 v225, 51200, v220
        v_lshlrev_b32 v229, 2, v221
        s_branch L_b2{sx}
        L_b1{sx}:""")
        A(f"s_mul_i32 s78, {sIDX}, 96\ns_mul_i32 s79, {sKH}, 98304\ns_add_u32 s78, s78, s79")
        for i in range(3):
            A(f"""
            v_add_u32 v0, {32*i}, v221
            v_mul_u32_u24 v1, 10923, v0
            v_lshrrev_b32 v1, 16, v1
            v_mul_u32_u24 v2, 6, v1
            v_sub_u32 v2, v0, v2
            v_lshl_add_u32 v1, v222, 4, v1
            v_mul_u32_u24 v1, 3072, v1
            v_lshl_add_u32 v1, v2, 4, v1
            v_add_u32 v{GOFF+i}, s78, v1""")
        A(f"""
        s_mul_i32 s64, {sQ}, 5120
        s_add_u32 s72, {sXCD}, 1
        s_and_b32 s72, s72, 7
        s_add_u32 s73, {sXCD}, {sQ}
        s_add_u32 s73, s73, 2
        s_and_b32 s73, s73, 7
        s_lshr_b32 s57, {sQ}, 1
        s_add_u32 s57, s57, 6
        s_add_u32 s74, {sXCD}, s57
        s_and_b32 s74, s74, 7
        s_add_u32 s78, s64, {WS_KV}
        s_mul_i32 s63, {sXCD}, 20480
        s_add_u32 s63, s63, s78
        s_mul_i32 s60, s72, 20480
        s_add_u32 s60, s60, s78
        s_mul_i32 s61, s73, 20480
        s_add_u32 s61, s61, {WS_KV}
        s_mul_i32 s78, {sKH}, 10240
        s_mul_i32 s59, s74, 20480
        s_add_u32 s59, s59, s78
        s_add_u32 s59, s59, {WS_KV}
        s_mul_i32 s57, s57, 20480
        s_add_u32 s57, s57, s78
        s_mul_i32 s56, {sQ}, 20480
        s_add_u32 s56, s56, 40960
        s_sub_u32 s73, s73, s72
        s_lshl_b32 s73, s73, 12
        s_lshl_b32 s72, s72, 12
        s_add_u32 s72, s72, {WS_F1}
        s_lshl_b32 s74, s74, 12
        s_add_u32 s74, s74, {WS_F1}
        v_lshl_add_u32 v233, v221, 7, s74
        v_mul_lo_u32 v232, v222, s73
        v_lshl_add_u32 v232, v221, 7, v232
        v_add_u32 v232, s72, v232
        s_mul_i32 s62, {sIDX}, 640
        s_add_u32 s62, s62, s61
        s_mul_i32 s58, {sIDX}, 320
        s_add_u32 s58, s58, s59
        s_andn2_b32 s65, {sIDX}, 1
        s_add_u32 s65, s65, {sKH}
        s_mul_i32 s65, s65, {96*128}
        s_mov_b32 s79, {(1 << (min(NL, 63)-32)) - 1}
        s_add_u32 s78, {sIDX}, 1
        s_bitcmp1_b32 s78, 1
        s_cselect_b32 s78, {NL*128}, 0
        s_cselect_b32 s72, {MH & 0xffffffff}, -1
        s_cselect_b32 s73, {MH >> 32}, {-1 if NL >= 64 else 's79'}
        s_add_u32 s65, s65, s78
        s_mul_i32 s74, {sQ}, 192
        s_add_u32 s74, s74, {sIDX}
        s_mul_i32 s74, s74, 1280
        s_lshl_b32 s66, {sIDX}, 2
        s_add_u32 s66, s66, {sQ}
        s_lshl_b32 s78, s66, 9
        v_add_u32 v255, s78, v253
        v_min_u32 v255, L_end-L_pc-4, v255
        s_mul_i32 s67, s66, {50*128}
        s_mul_i32 s66, s66, {60*128}
        s_mul_i32 s55, {sQ}, {6*40960}
        """)
        A(f"v_add_u32 v249, s64, v220\nL_b2{sx}:")
    ifkv("L_a1", False)
    A("s_setprio 2"); xloads(); srds()
    A(f"""
    s_lshr_b32 s78, {sIDX}, 3
    s_lshl_b32 s78, s78, 2
    s_add_u32 s78, s78, s47
    s_lshl_b32 s78, s78, 1
    s_add_u32 s78, s78, {sKH}
    s_mul_i32 s78, s78, {7*128}
    s_mov_b64 exec, 0x7f
    buffer_load_dword v203, v253, {WKV}, s78 offen
    s_mov_b64 exec, -1
    buffer_load_dword v202, off, {WS}, 0 sc1
    s_lshl_b32 s78, {sXCD}, 5
    s_add_u32 s78, s78, {sIDX}
    s_lshl_b32 s78, s78, 7
    s_add_u32 s75, s78, {WS_F1}
    s_mul_i32 s49, {sKH}, 409600
    s_add_u32 s49, s49, {9*40960}
    s_mul_i32 s48, {sKH}, 5120
    s_add_u32 s48, s48, 92160
    s_branch L_a2
    L_a1:""")
    srds()
    A(f"""
    s_sub_u32 s48, {sW}, 2
    s_cmp_gt_u32 {sTT}, s47
    s_cselect_b32 s48, s48, {sW}
    s_mul_i32 s49, {sIDX}, 6
    s_add_u32 s49, s49, s48
    s_add_u32 s78, s49, 224
    s_cmp_lt_u32 s49, 96
    s_cselect_b32 s78, s49, s78
    s_mul_i32 s78, s78, 1280
    s_mov_b64 exec, 0x3ff
    buffer_load_dword v203, v253, {WQ}, s78 offen
    s_mov_b64 exec, -1
    s_mul_i32 s79, s49, {24*128}
    v_add_u32 v204, s79, v253
    v_add_u32 v205, {960*128}, v204
    v_cmp_gt_u32 vcc, {2240*128}, v204
    s_mov_b32 s75, {960*128}
    s_and_b32 s49, s48, 1
    v_cndmask_b32 v219, v205, v204, vcc
    s_mul_i32 s49, s49, 10
    s_lshr_b32 s79, s48, 1
    s_add_u32 s49, s49, s79
    s_mul_i32 s49, s49, 40960
    s_mul_i32 s48, s48, 5120
    L_a2:""")
    woff()
    srd(20, 60, 819200)
    A(f"s_bitcmp1_b32 {sW}, 1\ns_cselect_b32 s24, s66, s64\ns_cselect_b32 s25, s67, s65\ns_mov_b32 s26, 1966080\ns_mov_b32 s27, 0x00020000")
    srd(28, 68, 1966080); srd(32, 70, 2621440)
    A(f"""
    v_and_b32 v212, 15, v{vL}
    v_and_b32 v221, 31, v{vL}
    v_lshrrev_b32 v222, 5, v{vL}
    v_lshrrev_b32 v211, 1, v212
    v_xor_b32 v211, v211, v210
    v_lshlrev_b32 v211, 4, v211
    v_lshl_add_u32 v207, v212, 7, v211
    v_add_u32 v207, s51, v207
    v_xor_b32 v208, 64, v207
    s_lshl_b32 s78, {sTT}, 8
    s_add_u32 s78, s78, {LST}
    v_lshl_add_u32 v213, v212, 3, s78
    s_lshl_b32 s79, {sKH}, 7
    v_add_u32 v214, s79, v213
    s_mov_b32 s68, 0xAAAAAAAA
    s_mov_b32 s69, 0xAAAAAAAA
    s_mov_b32 s70, 0xCCCCCCCC
    s_mov_b32 s71, 0xCCCCCCCC
    s_lshl_b32 s78, {sW}, 2
    s_add_u32 s78, s78, {LFL}
    v_mov_b32 v215, s78
    v_xor_b32 v217, 4, v215
    v_mov_b32 v216, 1
    """)
    for r in range(4): A(f"v_mov_b32 v{72+r}, {ONES}")
    setup("n")
    stamp("setup")
    ifkv("L_c1")
    A("s_barrier")
    xloads()
    A(f"buffer_load_dword v202, off, {WS}, 0 sc1\ns_mov_b64 exec, 0xffffff\nbuffer_load_dword v203, v219, {WQ}, s75 offen\ns_mov_b64 exec, -1")
    A(f"s_waitcnt vmcnt(1)\ns_branch L_c3\nL_c1:\ns_mul_i32 s78, {sKH}, 12288")
    for j in range(13):
        if j & 3 == 0: A(f"s_add_u32 m0, s78, {LWKV}")
        A(f"buffer_load_dwordx4 v{vB}, {WKV}, s78 offen offset:{1024*(j&3)} lds")
        if j & 3 == 3: A("s_add_u32 s78, s78, 4096")
    A("s_barrier\ns_waitcnt vmcnt(13)\nL_c3:")
    stamp("xin")
    for i in range(5): A(f"ds_read_b128 {vr(XF+8*i,4)}, v207 offset:{2048*i}\nds_read_b128 {vr(XF+8*i+4,4)}, v208 offset:{2048*i}")
    A(f"v_readfirstlane_b32 {sT}, v202\ns_add_u32 {sT}, {sT}, 0x9E3779B9")
    for i in range(10):
        A(f"s_waitcnt lgkmcnt({9-i})"); x = vr(XF+4*i, 4)
        A(f"v_mfma_f32_16x16x32_bf16 v[76:79], v[72:75], {x}, {'0' if i == 0 else 'v[76:79]'}")
        A(f"v_mfma_f32_16x16x32_bf16 v[80:83], {x}, {x}, {'0' if i == 0 else 'v[80:83]'}")
    A(f"""
    v_cndmask_b32 v80, v80, v81, s[68:69]
    v_cndmask_b32 v82, v82, v83, s[68:69]
    v_cndmask_b32 v77, v80, v82, s[70:71]
    s_mov_b32 exec_lo, 0x00F0000F
    s_mov_b32 exec_hi, 0xF0000F00
    ds_write_b64 v214, v[76:77]
    s_mov_b64 exec, -1
    """)
    A("ds_write_b32 v215, v216")
    ifkv("L_e1")
    wqdma()
    A("L_e1:")
    ldsspin(217, 219, 1)
    A(f"""
    L_e2:
    ds_read2_b64 v[76:79], v213 offset1:16
    s_waitcnt lgkmcnt(0)
    v_add_f32 v76, v76, v78
    v_add_f32 v77, v77, v79
    v_mul_f32 v76, {f2u(1/640)}, v76
    v_mul_f32 v77, {f2u(1/640)}, v77
    v_fma_f32 v77, -v76, v76, v77
    v_max_f32 v77, 0, v77
    v_add_f32 v77, {f2u(1e-5)}, v77
    v_rsq_f32 v78, v77
    s_mov_b32 s79, 0xffff0000
    v_mul_f32 v79, v76, v78
    """)
    stamp("stats")
    for r0 in range(XF, XF+40, 4):
        for r in range(4): A(f"v_lshlrev_b32 v{80+2*r}, 16, v{r0+r}\nv_and_b32 v{81+2*r}, s79, v{r0+r}")
        if opt.get("pk", 1):
            if r0 == XF: A("v_mov_b32 v76, v78\nv_mov_b32 v77, v78\nv_mul_f32 v78, -1.0, v79\nv_mul_f32 v79, -1.0, v79")
            for r in range(4): A(f"v_pk_fma_f32 {vr(80+2*r,2)}, {vr(80+2*r,2)}, v[76:77], v[78:79]")
        else:
            for r in range(8): A(f"v_fma_f32 v{80+r}, v{80+r}, v78, -v79")
        for r in range(4): A(f"v_cvt_pk_bf16_f32 v{r0+r}, v{80+2*r}, v{81+2*r}")
    stamp("norm")
    ifkv("L_f1", False)
    KF = 32
    A(f"""
    v_bfe_u32 v209, v{vL}, 2, 2
    v_and_b32 v211, 3, v{vL}
    v_lshl_add_u32 v219, v210, 3, v209
    v_mul_u32_u24 v219, 40, v219
    v_lshl_add_u32 v219, v211, 3, v219
    s_mul_i32 s78, {sKH}, 12800
    s_add_u32 s78, s78, {LWKV}
    v_add_u32 v219, s78, v219
    v_and_b32 v211, 1, v210
    v_add_u32 v204, {LKX}, v{vB}
    s_waitcnt vmcnt(0)
    """)
    stamp("wkv")
    lg = Q(A, "lgkmcnt", 15)
    def rdw(st):
        for tl in range(2):
            for hf in range(2): A(f"ds_read_b64_tr_b16 {vr(KF+8*(st&7)+4*tl+2*hf,2)}, v219 offset:{st*1280+hf*160+tl*32}")
        lg.add(st, 4)
    for st in range(4): rdw(st)
    A(f"s_cmp_ge_u32 {sNB}, 4\ns_cbranch_scc1 L_g1")
    sv = (list(lg.q), lg.done)
    for isv in range(2):
        lg.q, lg.done = list(sv[0]), sv[1]
        for st in range(10):
            lg.wait(st)
            for tl in range(2):
                a_, b_ = vr(KF+8*(st&7)+4*tl,4), vr(XF+4*st,4)
                if isv: a_, b_ = b_, a_
                d = vr(ACC+4*tl, 4)
                A(f"v_mfma_f32_16x16x32_bf16 {d}, {a_}, {b_}, {'0' if st == 0 else d}")
            if st + 4 < 10: rdw(st+4)
        if not isv:
            A(f"""
            v_lshlrev_b32 v200, 8, v222
            v_lshl_add_u32 v200, v212, 4, v200
            v_lshl_add_u32 v200, v211, 3, v200
            v_add_u32 v200, {LKP}, v200
            v_lshlrev_b32 v201, 3, v212
            v_add_u32 v201, {LKP+512}, v201
            s_mov_b64 s[52:53], 0xffff
            s_branch L_g2
            L_g1:""")
        else:
            A(f"""
            v_mul_u32_u24 v200, 320, v222
            v_lshl_add_u32 v200, v212, 4, v200
            v_lshl_add_u32 v200, v211, 3, v200
            v_add_u32 v200, {LKP}, v200
            v_add_u32 v201, 256, v200
            s_mov_b32 s52, 0x000f000f
            s_mov_b32 s53, 0x000f000f""")
    A(f"""
    L_g2:
    s_cmp_eq_u32 {sKH}, 0
    s_cbranch_scc1 L_g3
    ds_write_b128 v204, {vr(ACC,4)}
    ds_write_b128 v204, {vr(ACC+4,4)} offset:1024
    ds_write_b32 v215, v216 offset:32
    s_branch L_f3
    L_g3:""")
    ldsspin(217, 219, 1, 32)
    A(f"ds_read_b128 {vr(ACC+8,4)}, v204\nds_read_b128 {vr(ACC+12,4)}, v204 offset:1024\ns_waitcnt lgkmcnt(0)")
    for r in range(8): A(f"v_add_f32 v{ACC+r}, v{ACC+r}, v{ACC+8+r}")
    for r in range(4): A(f"v_cvt_pk_bf16_f32 v{ACC+8+r}, v{ACC+2*r}, v{ACC+1+2*r}")
    A(f"""
    ds_write_b64 v200, {vr(ACC+8,2)}
    s_mov_b64 exec, s[52:53]
    ds_write_b64 v201, {vr(ACC+10,2)}
    s_mov_b32 exec_lo, -1
    s_mov_b32 exec_hi, 0xff
    ds_read_b128 v[132:135], v204 offset:{LKP-LKX}
    s_waitcnt lgkmcnt(0)
    buffer_store_dwordx4 v[132:135], v{vB}, {WS}, s50 offen sc1
    s_mov_b64 exec, -1""")
    stamp("kvst")
    A(f"""
    v_mov_b32 v130, {sT}
    v_mov_b32 v131, {sXCC}
    s_mov_b64 exec, 1
    s_waitcnt vmcnt(0)
    buffer_store_dwordx2 v[130:131], off, {WS}, s75 sc1
    s_mov_b64 exec, -1""")
    stamp("kvpub")
    A(f"L_f3:\ns_branch L_f2\nL_f1:\nv_and_b32 v217, 7, v{vL}\nv_lshlrev_b32 v217, 2, v217\nv_add_u32 v217, {LFL}, v217")
    ldsspin(217, 219, 1)
    stamp("BX")
    wqdma(); A(f"s_waitcnt vmcnt(5)\nL_f2:\ns_setprio 0\ns_cmp_lt_u32 {sW}, 4\ns_cbranch_scc1 L_f4\ns_setprio {opt.get('qprio', 1)}\nL_f4:")
    vm = Q(A, "vmcnt", 63)
    def kvdma(src_, dst, add, j0, j1, tag):
        for j in range(j0, j1):
            if j & 3 == 0 or j == j0: A(f"s_add_u32 m0, {dst}, {add + 1024*(j & ~3)}")
            A(f"buffer_load_dwordx4 v{vB}, {WS}, {src_} offen offset:{1024*(j&3)} {opt.get('kvsc', 'sc1')} lds"); vm.add(tag)
            if j & 3 == 3: A(f"s_add_u32 {src_}, {src_}, 4096")
    def stage1():
        kvdma("s60", "s64", 20480, 0, 5, "s1")
        A(f"s_mov_b64 exec, 0x1f\nbuffer_load_dword v254, v253, {WS}, s62 offen {opt.get('tsc', 'sc1')}\ns_mov_b64 exec, -1"); vm.add("t")
    def rdq(st, ct):
        b_, o = (218, st*10240) if st < 6 else (205, (st-6)*10240)
        for hf in range(2): A(f"ds_read_b64_tr_b16 {vr(RING+20*(st&1)+4*ct+2*hf,2)}, v{b_} offset:{o+hf*2560+ct*32}")
    for grp, (s0, s1) in enumerate(((0,3),(3,6),(6,10))):
        A("s_barrier")
        stamp(f"q{grp}")
        for ct in range(5): rdq(s0, ct)
        for st in range(s0, s1):
            for ct in range(5):
                more = st+1 < s1
                if more: rdq(st+1, ct)
                A(f"s_waitcnt lgkmcnt({10 if more else 2*(4-ct)})")
                d = vr(ACC+4*ct,4)
                A(f"v_mfma_f32_16x16x32_bf16 {d}, {vr(RING+20*(st&1)+4*ct,4)}, {vr(XF+4*st,4)}, {'0' if st == 0 else d}")
            if st == opt.get("r2st", 0): wqdma()
            if st == opt.get("flst", 4):
                A(f"s_cmp_lt_u32 {sW}, 4\ns_cbranch_scc1 L_h1\nbuffer_load_dwordx2 v[234:235], v248, {WS}, 0 offen sc1\nL_h1:")
            if st == opt.get("ckst", 7):
                A(f"s_cmp_lt_u32 {sW}, 4\ns_cbranch_scc1 L_k0\ns_waitcnt vmcnt(0)\nv_cmp_ne_u32 vcc, {sT}, v234\ns_cbranch_vccnz L_k1")
                kvdma("s63", "s64", 0, 0, 5, "s0")
                A(f"buffer_load_dword v236, v232, {WS}, 0 offen sc1\ns_mov_b32 s54, 1"); tgu(0)
                A("L_k0:\nL_k1:")
            if st == opt.get("xrst", 6):
                A(f"""s_cmp_ge_u32 {sW}, 4
                s_cbranch_scc1 L_k5
                buffer_load_dwordx4 {vr(XR,4)}, v250, {X}, s63 offen
                buffer_load_dwordx2 {vr(XR+4,2)}, v251, {X}, s63 offen offset:64
                buffer_load_dwordx4 {vr(XR+6,4)}, v250, {X}, s63 offen offset:96
                buffer_load_dwordx2 v[254:255], v248, {WS}, 0 offen sc1
                L_k5:""")
        if grp == 0: A("s_waitcnt vmcnt(5)")
        if grp == 1: A(f"s_waitcnt vmcnt(1)\ns_cmp_ge_u32 {sW}, 4\ns_cbranch_scc1 L_k2\ns_waitcnt vmcnt(0)\nL_k2:")
    stamp("q3")
    for ct in range(5):
        A(f"ds_write_b128 v206, {vr(ACC+4*ct,4)} offset:{64*ct}")
    A("s_waitcnt lgkmcnt(0)\ns_barrier")
    stamp("BQ")
    A(f"s_cmp_ge_u32 {sW}, 4\ns_cbranch_scc1 L_loader")

    A("s_setprio 1")
    for q in range(2):
        for p in range(2):
            o = 21504*p + 32*336*q; r = 144 + 24*q + 12*p
            A(f"ds_read_b128 {vr(r,4)}, v224 offset:{o}\nds_read_b128 {vr(r+4,4)}, v224 offset:{o+16}\nds_read_b128 {vr(r+8,4)}, v223 offset:{o+64}")
    A(f"s_mov_b32 s48, 0\ns_mov_b32 s49, -1\nv_mov_b32 v192, {f2u(20**-0.5 * math.log2(math.e))}\nv_cndmask_b32 v194, v192, 0, s[48:49]\nv_mov_b32 v193, v192\nv_mov_b32 v195, v194")
    for q in range(2):
        r0 = 144 + 24*q
        A(f"s_waitcnt lgkmcnt({6-6*q})")
        for r in range(0, 12, 2): A(f"v_pk_add_f32 {vr(r0+r,2)}, {vr(r0+r,2)}, {vr(r0+12+r,2)}")
        for r in range(0, 12, 2): A(f"v_pk_mul_f32 {vr(r0+r,2)}, {vr(r0+r,2)}, {vr(192 if r < 8 else 194,2)}")
        for r in range(6): A(f"v_cvt_pk_bf16_f32 v{Qm[q]+r}, v{r0+2*r}, v{r0+1+2*r}")
    stamp("qrdy")
    A("s_barrier")
    stamp("slot0")
    cur = {"K": 0, "V": 0}
    lg = Q(A, "lgkmcnt", 15)
    def rebase(key, reg, off, span):
        if off + span - cur[key] > 65535:
            A(f"v_add_u32 v{reg}, {off - cur[key]}, v{reg}"); cur[key] = off
        return off - cur[key]
    def rdK(T):
        o = rebase("K", aK, 2560*T, 0); A(f"ds_read_b128 {vr(KMb[T&1],4)}, v{aK} offset:{o}"); lg.add(("K", T))
    tcur = [0]
    def rdT(T):
        if 5*(T+1) - tcur[0] > 255:
            A(f"v_add_u32 v{aT}, {512*(5*T - tcur[0])}, v{aT}"); tcur[0] = 5*T
        A(f"ds_read2st64_b64 {vr(KTb[(T>>1)&1],4)}, v{aT} offset0:{5*T-tcur[0]} offset1:{5*T+5-tcur[0]}"); lg.add(("T", T))
    def rdV(T):
        o = rebase("V", aV, 2560*T, 3840)
        A("s_mov_b64 exec, s[76:77]")
        for i in range(4): A(f"ds_read_b128 {vr(Vb[(T>>1)&1]+4*i,4)}, v{aV} offset:{o+1280*i}")
        A("s_mov_b64 exec, -1"); lg.add(("V", T), 4)
    def m1(u):
        T, q = u >> 1, u & 1; lg.wait(("K", T))
        A(f"v_mfma_f32_32x32x16_bf16 {vr(S3[u%3],16)}, {vr(KMb[T&1],4)}, {vr(Qm[q],4)}, 0")
    def m2(u):
        T, q = u >> 1, u & 1; lg.wait(("T", T & ~1)); S = vr(S3[u%3],16)
        if opt.get("x") != "nom2": A(f"v_mfma_f32_32x32x8_bf16 {S}, {vr(KTb[(T>>1)&1]+2*(T&1),2)}, {vr(Qm[q]+4,2)}, {S}")
    def sm(u, h):
        T, q = u >> 1, u & 1; lg.wait(("V", T & ~1))
        if opt.get("x") == "nosm": return
        if opt.get("x") == "dense":
            b = S3[u%3]+8*h
            for r in range(4): A(f"v_cvt_pk_bf16_f32 v{b+r}, v{b+2*r}, v{b+2*r+1}")
            A(f"s_nop 0\nv_mfma_f32_32x32x16_bf16 {vr(O_[q],16)}, {vr(Vb[(T>>1)&1]+8*(T&1)+4*h,4)}, {vr(b,4)}, {vr(O_[q],16)}"); return
        A(f"v_smfmac_f32_32x32x32_bf16 {vr(O_[q],16)}, {vr(Vb[(T>>1)&1]+8*(T&1)+4*h,4)}, {vr(S3[u%3]+8*h,8)}, v{vIDX}")
    def EX(u, a):
        for r in range(a, a+4): A(f"v_exp_f32 v{S3[u%3]+r}, v{S3[u%3]+r}" if opt.get("x") != "noexp" else "s_nop 1")
    BARS = (12, 28, opt.get("bar2", 98))
    rdK(0); rdT(0); rdK(1); rdV(0)
    m1(0); m2(0)
    for u in range(128):
        if u % 2 == 0: stamp(f"a{u//2}")
        T = u >> 1
        if u == 28: A(f"""
    s_waitcnt vmcnt(0)
    v_cmp_ne_u32 vcc, {sT}, v254
    s_cbranch_vccz L_xok
    buffer_load_dword v255, v248, {WS}, 0 offen offset:4 sc1
    s_waitcnt vmcnt(0)
    L_xok:
    v_cmp_ne_u32 vcc, {sXCC}, v255
    s_cmp_eq_u64 vcc, 0
    s_cselect_b32 {sFAST}, {0 if force_slow else 1}, 0
""")
        if u in BARS: A("s_barrier")
        if u < 127: m1(u+1)
        if u % 2 == 0 and T + 2 < 64: rdK(T+2)
        EX(u, 0)
        if u < 127: m2(u+1)
        if u % 4 == 0 and T + 2 < 64: rdT(T+2)
        EX(u, 4)
        if u > 0: sm(u-1, 0)
        EX(u, 8)
        if u > 0: sm(u-1, 1)
        if u % 4 == 0 and T + 2 < 64: rdV(T+2)
        EX(u, 12)
    sm(127, 0); sm(127, 1)
    A("s_barrier")
    stamp("attn")
    A(f"""
    L_fbret:
    v_cndmask_b32 v144, v12, v8, s[48:49]
    v_cndmask_b32 v146, v28, v24, s[48:49]
    v_rcp_f32 v148, v144
    v_rcp_f32 v150, v146
    v_mov_b32 v149, v148
    v_mov_b32 v151, v150
    """)
    for q in range(2):
        for r in range(0, 12, 2): A(f"v_pk_mul_f32 {vr(O_[q]+r,2)}, {vr(O_[q]+r,2)}, {vr(148+2*q,2)}")
        for r in range(6): A(f"v_cvt_pk_bf16_f32 v{32+6*q+r}, v{O_[q]+2*r}, v{O_[q]+2*r+1}")
    stores([f"buffer_store_dwordx4 v[32:35], v227, {WS}, s59 offen", f"buffer_store_dwordx4 v[38:41], v227, {WS}, s61 offen", "s_mov_b32 exec_hi, 0",
            f"buffer_store_dwordx2 v[36:37], v226, {WS}, s58 offen", f"buffer_store_dwordx2 v[42:43], v226, {WS}, s60 offen"])
    A("s_mov_b32 exec_hi, -1")
    stamp("opre")
    for r in range(0, 12, 2): A(f"v_pk_add_f32 {vr(r,2)}, {vr(r,2)}, {vr(16+r,2)}")
    A(f"""
    v_min_f32 v148, v144, v146
    v_max_f32 v149, v144, v146
    v_pk_add_f32 v[0:1], v[0:1], v[2:3]
    v_pk_add_f32 v[4:5], v[4:5], v[6:7]
    v_pk_add_f32 v[8:9], v[8:9], v[10:11]
    v_cmp_nle_f32 s[50:51], s66, v148
    v_pk_add_f32 v[0:1], v[0:1], v[4:5]
    v_cmp_nge_f32 s[52:53], s67, v149
    v_pk_add_f32 v[0:1], v[0:1], v[8:9]
    v_add_f32 v144, v144, v146
    v_add_f32 v0, v0, v1
    v_add_f32 v0, |v0|, v144
    s_or_b64 s[50:51], s[50:51], s[52:53]
    v_cmp_nge_f32 vcc, {f2u(2.0**126)}, v0
    s_or_b64 s[50:51], s[50:51], vcc
    s_cmp_{'eq' if force_fb else 'lg'}_u64 s[50:51], 0
    s_cselect_b32 s65, 1, 0
    s_cmp_gt_u32 s65, {1 if opt.get("x") else "s64"}
    s_cbranch_scc1 L_fallback
    """)
    AC3, R3 = 80, (100, 120, 140, 200)
    lg = Q(A, "lgkmcnt", 15); vm = Q(A, "vmcnt", 63)
    def rd3(st, ct):
        b, o = (220, st*5120) if st < 10 else (225, (st-10)*5120)
        for hf in range(2): A(f"ds_read_b64_tr_b16 {vr(R3[st&3]+4*ct+2*hf,2)}, v{b} offset:{o+hf*2560+ct*32}")
        lg.add((st, ct), 2)
    for st in (19, 18):
        for ct in range(5): rd3(st, ct)
    flag("s56")
    stamp("oflag")
    for e in range(opt.get("nw1", 2)):
        for j in range(5): A(f"buffer_load_dwordx4 {vr(160+20*e+4*j,4)}, v{WOFF+j}, {WD}, s55 offen")
        A("s_add_u32 s55, s55, 40960")
    for st in (17, 16):
        for ct in range(5): rd3(st, ct)
    A(f"""
    v_permlane16_swap_b32 v{XR}, v{XR+2}
    v_permlane16_swap_b32 v{XR+1}, v{XR+3}
    v_permlane16_swap_b32 v{XR+6}, v{XR+8}
    v_permlane16_swap_b32 v{XR+7}, v{XR+9}
    s_mov_b32 s79, 0xffff0000
    v_and_b32 v221, 15, v{vL}
    v_lshrrev_b32 v222, 5, v{vL}
    v_bfe_u32 v223, v{vL}, 4, 1
    v_lshlrev_b32 v228, 4, v221
    v_lshl_add_u32 v227, v222, 9, v228
    v_lshl_add_u32 v226, v223, 10, v227
    v_lshl_add_u32 v227, v223, 3, v227
    s_lshl_b32 s56, {sB}, 1
    s_add_u32 s56, s56, {sTT}
    s_lshl_b32 s61, {sKH}, 8
    s_mul_i32 s60, s56, 40960
    s_add_u32 s60, s60, s61
    s_mul_i32 s58, {sNB}, 5120
    s_add_u32 s60, s60, s58
    s_add_u32 s60, s60, {HB}
    s_lshl_b32 s58, s56, 11
    s_add_u32 s58, s58, s61
    s_lshr_b32 s59, {sNB}, 1
    s_lshl_b32 s59, s59, 9
    s_add_u32 s58, s58, s59
    s_and_b32 s59, {sNB}, 1
    s_lshl_b32 s59, s59, 3
    s_add_u32 s58, s58, s59
    s_add_u32 s58, s58, {WS_HS}
    s_lshl_b32 s56, s56, 7
    s_lshl_b32 s59, {sNB}, 3
    s_add_u32 s56, s56, s59
    s_lshl_b32 s59, {sKH}, 2
    s_add_u32 s56, s56, s59
    s_add_u32 s56, s56, {WS_F3}
    """)
    for r in range(10): A(f"v_lshlrev_b32 v{AC3+2*r}, 16, v{XR+r}\nv_and_b32 v{AC3+2*r+1}, s79, v{XR+r}")
    poll(229, 223, "s62")
    stamp("S2")
    def ld3(st):
        A(f"buffer_load_dwordx4 {vr(4*st,4)}, v{vB}, {WS}, s57 offen offset:{1024*(st&3)} sc1"); vm.add(st)
        if st & 3 == 0 and st > 0: A("s_sub_u32 s57, s57, 4096")
    NI3, DEP3 = opt.get("p3init", 4), opt.get("p3dep", 9); n3 = [19 - NI3]
    for st in range(19, 19-NI3, -1): ld3(st)
    lg.all()
    stamp("p3i")
    for st in range(19, -1, -1):
        vm.wait(st)
        stamp(f"p3s{st}")
        for ct in range(5):
            lg.wait((st, ct)); d = vr(AC3+4*ct,4)
            if st == 8 and ct == 4: A("s_barrier")
            A(f"v_mfma_f32_16x16x32_bf16 {d}, {vr(R3[st&3]+4*ct,4)}, {vr(4*st,4)}, {d}")
            if ct in (0, 2) and n3[0] >= max(0, st - DEP3): ld3(n3[0]); n3[0] -= 1
            if st - 4 >= 0: rd3(st-4, ct)
    stamp("p3mm")
    for r in range(10): A(f"v_cvt_pk_bf16_f32 v{16+r}, v{AC3+2*r}, v{AC3+2*r+1}")
    A(f"""
    v_permlane16_swap_b32 v16, v18
    v_permlane16_swap_b32 v17, v19
    v_permlane16_swap_b32 v22, v24
    v_permlane16_swap_b32 v23, v25""")
    stores([f"buffer_store_dwordx4 v[16:19], v226, {HSRD}, s60 offen",
            f"buffer_store_dwordx2 v[20:21], v227, {HSRD}, s60 offen offset:2048",
            f"buffer_store_dwordx4 v[22:25], v226, {HSRD}, s60 offen offset:3072"])
    A(f"v_pk_add_f32 v[12:13], {vr(AC3,2)}, {vr(AC3+2,2)}\nv_pk_mul_f32 v[14:15], {vr(AC3,2)}, {vr(AC3,2)}")
    for r in range(1, 10):
        if r > 1: A(f"v_pk_add_f32 v[12:13], v[12:13], {vr(AC3+2*r,2)}")
        A(f"v_pk_fma_f32 v[14:15], {vr(AC3+2*r,2)}, {vr(AC3+2*r,2)}, v[14:15]")
    A(f"""
    v_add_f32 v12, v12, v13
    v_add_f32 v13, v14, v15
    v_mov_b32 v14, v12
    v_mov_b32 v15, v13
    v_permlane16_swap_b32 v12, v14
    v_permlane16_swap_b32 v13, v15
    v_pk_add_f32 v[12:13], v[12:13], v[14:15]
    v_mov_b32 v14, v12
    v_mov_b32 v15, v13
    v_permlane32_swap_b32 v12, v14
    v_permlane32_swap_b32 v13, v15
    v_pk_add_f32 v[12:13], v[12:13], v[14:15]
    s_mov_b64 exec, 0xffff
    """)
    stores([f"buffer_store_dwordx2 v[12:13], v228, {WS}, s58 offen"])
    A("s_mov_b64 exec, -1")
    stamp("p3pre")
    for r in range(10): A(f"v_cvt_pk_bf16_f32 v{XR+r}, v{AC3+2*r}, v{AC3+2*r+1}")
    p4pro()
    flag("s56")
    stamp("hpub")
    A("s_barrier")
    A(f"s_setprio 3\nv_add_u32 v113, s60, v{vB}\nv_add_u32 v114, s60, v220")
    for r in (160, 180): tr5(r, 1, 113, 114)
    A("s_setprio 1")
    for r in (120, 140):
        A("s_waitcnt lgkmcnt(0)")
        for j in range(5): A(f"s_add_u32 m0, s60, {1024*j}\nbuffer_load_dwordx4 v{WOFF+j}, {WD}, s55 offen lds")
        A("s_add_u32 s55, s55, 40960\ns_waitcnt vmcnt(0)")
        tr5(r, 0, 113, 114)
    A("s_branch L_p4")

    A("L_loader:\ns_setprio 2")
    def touch(srd_, soff, nl, add=0, dst=254):
        A(f"s_add_u32 s78, {soff}, {add}\ns_mov_b32 exec_hi, {(1 << (nl-32)) - 1}\nbuffer_load_dword v{dst}, v253, {srd_}, s78 offen\ns_mov_b32 exec_hi, -1"); vm.add("t")
    A("s_cmp_eq_u32 s54, 1\ns_cbranch_scc1 L_l0")
    poll(248, 234, x2=True)
    kvdma("s63", "s64", 0, 0, 5, "s0")
    A(f"buffer_load_dword v236, v232, {WS}, 0 offen sc1"); tgu(0)
    A("L_l0:\ns_waitcnt vmcnt(2)\ns_barrier")
    stamp("slot0")
    A(f"""
    s_waitcnt vmcnt(1)
    v_cmp_ne_u32 vcc, {sT}, v236
    s_cbranch_vccz L_l1""")
    poll(232, 236)
    A("L_l1:")
    vm.q, vm.done = [], 0
    stage1()
    A(f"""
    L_l2:
    v_cmp_ne_u32 vcc, {sXCC}, v235
    s_nop 1
    s_cmp_eq_u64 vcc, 0
    s_cselect_b32 {sFAST}, {0 if force_slow else 1}, 0""")
    A(f"buffer_load_dword v237, v233, {WS}, 0 offen sc1"); vm.add("fb")
    NB0 = opt.get("nb0", 6)
    kvdma("s61", "s56", 0, 0, NB0, "s2")
    vm.wait("fb")
    stamp("l_s1")
    A(f"v_cmp_ne_u32 vcc, {sT}, v237\ns_mov_b64 exec, 7\ns_cbranch_vccnz L_l4\nbuffer_load_dword v254, v253, {WS}, s58 offen {opt.get('tsc', 'sc1')}\nL_l4:\ns_mov_b64 exec, -1")
    NB1 = opt.get("nb1", 16)
    kvdma("s61", "s56", 0, NB0, NB1, "s2")
    stamp("l_b1"); A("s_barrier"); stamp("l_b1x")
    kvdma("s61", "s56", 0, NB1, 20, "s2")
    A(f"v_cmp_ne_u32 vcc, {sT}, v237\ns_cbranch_vccz L_l3")
    poll(233, 237)
    A("L_l3:"); stamp("l_f6")
    kvdma("s59", "s57", 0, 0, 10, "s6")
    def lgu(s):
        for p in (2*s, 2*s+1):
            A(f"s_mov_b32 s78, {p*2*98304}")
            for i in range(3): A(f"buffer_load_dwordx4 {vr(12*p+4*i,4)}, v{GOFF+i}, {GU}, s78 offen")
        vm.add(("g", s), 6)
    def wdma(p):
        for j in range(5): A(f"s_add_u32 m0, s64, {1024*j}\nbuffer_load_dwordx4 v{WOFF+j}, {WD}, s55 offen lds")
        A("s_add_u32 s55, s55, 40960"); vm.add(("w", p), 5)
    def wrd(p):
        vm.wait(("w", p)); tr5(120+20*p, 0, 0, 249); A("s_waitcnt lgkmcnt(0)")
    def ctouch(): A("s_mov_b64 exec, 15\nglobal_load_dword v254, v255, s[80:81]\ns_mov_b64 exec, -1"); vm.add("t")
    def twd(ps):
        for p in ps: A(f"s_add_u32 s78, s74, {40960*p}\ns_mov_b64 exec, 0x3ff\nbuffer_load_dword v254, v253, {WD}, s78 offen\ns_mov_b64 exec, -1"); vm.add("t")
    lgu(0); twd([0]); tgu(1, vm); twd([1])
    vm.wait("s6"); stamp("l_kv"); A("s_barrier")
    for p in range(4):
        wdma(p)
        if p < 3: tgu(p+2, vm)
        else: touch(WO, "s67", 50, 0)
        twd([p+2])
        if p in opt.get("ct", (1, 3)): ctouch()
        lgu(p+1)
        wrd(p); stamp(f"l_r{p}")
    stamp("l_gu")
    wdma(4); wrd(4)
    A(f"""
    s_cmp_eq_u32 {sFAST}, 0
    s_cbranch_scc1 L_npt
    s_lshl_b32 s78, {sXCD}, 5
    s_add_u32 s78, s78, {sIDX}
    s_lshl_b32 s78, s78, 2
    s_add_u32 s78, s78, {sQ}
    s_mul_i32 s79, s78, 6144
    s_add_u32 s79, s79, {WS_HP}
    v_add_u32 v248, s79, v253
    s_lshl_b32 s79, s78, 7
    s_add_u32 s79, s79, {WS_HS}
    v_writelane_b32 v248, s79, 48
    s_mul_i32 s78, s78, 2560
    s_add_u32 s79, s78, {HB}
    s_add_u32 s78, s78, {WS_O}
    s_mov_b32 exec_hi, 0x1ffff
    buffer_load_dword v254, v248, {WS}, 0 offen sc1
    s_mov_b64 exec, 0xfffff
    buffer_load_dword v254, v253, {HSRD}, s79 offen sc1""")
    if not ALIAS: A(f"buffer_load_dword v254, v253, {WS}, s78 offen sc1")
    A(f"s_mov_b64 exec, -1\nL_npt:")
    vm.q, vm.done = [], 0
    A(f"s_mul_i32 s57, {sQ}, 40960")
    stamp("l_wd")
    A("s_barrier")
    def wo(p):
        A(f"s_add_u32 s78, s57, {4*40960*p}")
        for j in range(5): A(f"s_add_u32 m0, s64, {20480*p+1024*j}\nbuffer_load_dwordx4 v{WOFF+j}, {WO}, s78 offen lds")
        vm.add("wo", 5)
    wo(4); wo(3)
    wdma(5); wo(2); wrd(5); wo(1); wo(0)
    if 5 in opt.get("ct", (5,)): A("s_mov_b64 exec, 15\nglobal_load_dword v247, v255, s[80:81]\ns_mov_b64 exec, -1"); vm.add("t")
    touch(WD, "s66", 60, 983040, 247)
    GI = 249
    vm.wait("wo")
    stamp("l_wo")
    A("s_setprio 0\ns_barrier")
    A(f"""
    s_mul_i32 s78, {sKH}, 6144
    s_lshr_b32 s79, {sQ}, 1
    s_mul_i32 s79, s79, 384
    s_add_u32 s78, s78, s79
    s_add_u32 s78, s78, {LGU+61440}""")
    for i in range(3):
        A(f"""
        v_and_b32 v248, 31, v{vL}
        v_add_u32 v248, {32*i}, v248
        v_mul_u32_u24 v252, 10923, v248
        v_lshrrev_b32 v252, 18, v252
        v_mul_u32_u24 v252, 384, v252
        v_lshl_add_u32 v252, v248, 4, v252
        v_lshrrev_b32 v248, 5, v{vL}
        v_mul_u32_u24 v248, 3072, v248
        v_add3_u32 v{GI+i}, v248, v252, s78""")
    for p in (9, 8, 7, 6):
        for i in range(3): A(f"ds_write_b128 v{GI+i}, {vr(12*p+4*i,4)} offset:{12288*(p-5)}")
    SEL, CSA = 252, 108
    A(f"""
    v_bfe_u32 v248, v{vL}, 3, 1
    v_bfe_u32 v255, v{vL}, 4, 1
    v_cmp_eq_u32 vcc, v248, v255
    v_and_b32 v248, 1, v{vL}
    v_lshlrev_b32 v248, 4, v248
    v_mov_b32 v{SEL}, 0x3f80
    v_lshlrev_b32 v248, v248, v{SEL}
    v_bfe_u32 v255, v{vL}, 1, 2
    v_cndmask_b32 v248, 0, v248, vcc""")
    for r in range(4): A(f"v_cmp_eq_u32 vcc, {r}, v255\nv_cndmask_b32 v{SEL+r}, 0, v248, vcc")
    A("s_waitcnt lgkmcnt(0)")
    for p in range(9, -1, -1):
        for i in range(3):
            d = vr(CSA+4*i,4)
            A(f"v_mfma_f32_16x16x32_bf16 {d}, {vr(SEL,4)}, {vr(12*p+4*i,4)}, {'0' if p == 9 else d}")
    A(f"""
    s_mul_i32 s78, {sQ}, 3072
    s_add_u32 s78, s78, {LGU+61440}
    v_lshlrev_b32 v100, 2, v{vL}
    v_add_u32 v101, s78, v100
    v_and_b32 v248, 15, v{vL}
    v_lshrrev_b32 v102, 5, v{vL}
    v_lshl_add_u32 v248, v102, 4, v248
    v_and_b32 v102, 16, v{vL}
    v_lshl_add_u32 v248, v248, 5, v102
    v_add_u32 v248, s78, v248
    s_lshl_b32 s79, s2, 2
    s_add_u32 s79, s79, {sQ}
    s_lshl_b32 s79, s79, 8
    s_add_u32 s79, s79, {WS_CS}""")
    for i in range(3): A(f"ds_write_b128 v248, {vr(CSA+4*i,4)} offset:{1024*i}")
    for r in range(16): A(f"ds_read_b32 v{84+r}, v101 offset:{192*r}")
    for i in range(3): A(f"v_subrev_u32 v{GI+i}, 61440, v{GI+i}")
    A("s_waitcnt lgkmcnt(0)")
    for s in (8, 4, 2, 1):
        for r in range(s): A(f"v_add_f32 v{84+r}, v{84+r}, v{84+s+r}")
    A(f"buffer_store_dword v84, v100, {WS}, s79 offen\ns_waitcnt vmcnt(0)\nbuffer_load_dword v254, v100, {WS}, s79 offen sc1")
    p4pro()
    stamp("l_g1")
    A("s_barrier")
    for p in range(6):
        for i in range(3): A(f"ds_write_b128 v{GI+i}, {vr(12*p+4*i,4)} offset:{12288*p}")
    A("s_waitcnt lgkmcnt(0)\ns_setprio 2")
    stamp("l_g0")
    A("s_barrier")

    A("L_p4:")
    stamp("GB")
    lg = Q(A, "lgkmcnt", 15); vm = Q(A, "vmcnt", 63)
    def rdA4(st, i):
        if st % 20 == 0 and i == 0: A(f"v_add_u32 v{aA}, {61440*(st//20)}, v{aA0}")
        for hf in range(2): A(f"ds_read_b64_tr_b16 {vr(AR4+12*(st%NA4)+4*i+2*hf,2)}, v{aA} offset:{(st%20)*3072+hf*768+i*32}")
        lg.add((st, i), 2)
    for st in range(NA4-1):
        for i in range(3): rdA4(st, i)
    poll(115, 114, "s57")
    stamp("S3")
    def ldB4(st):
        A(f"buffer_load_dwordx4 {vr(BR4+4*(st%NB4),4)}, v{vB}, {HSRD}, s59 offen offset:{1024*(st&3)} sc1"); vm.add(st)
        if st & 3 == 3: A("s_add_u32 s59, s59, 4096")
    NI, DEP = opt.get("p4init", 3), opt.get("p4dep", 6)
    for st in range(NI): ldB4(st)
    nld = NI
    stamp("p4issued")
    SST, SDM = 8, 40 - DEP
    for st in range(40):
        vm.wait(st)
        stamp(f"p4s{st}")
        for i in range(3):
            if st + NA4 - 1 < 40: rdA4(st+NA4-1, i)
            lg.wait((st, i)); d = vr(AC4+16*i,16)
            A(f"v_mfma_f32_32x32x16_bf16 {d}, {vr(AR4+12*(st%NA4)+4*i,4)}, {vr(BR4+4*(st%NB4),4)}, {'0' if st == 0 else d}")
            if i < 2 and nld < min(40, st + 1 + DEP): ldB4(nld); nld += 1
        if st == 2: A(f"s_mul_i32 s65, {sKH}, 49152\nv_add_u32 v251, s65, v{vB}\ns_sub_u32 s65, 49152, s65\nv_add_u32 v252, s65, v{vB}")
        if st == 3: csaddr(250, 247)
        if st == 4:
            A(f"s_lshl_b32 s78, s2, 10\ns_add_u32 s78, s78, {WS_CS}")
            for i in range(3): A(f"buffer_load_dword v{253+i}, v250, {WS}, s78 offen offset:{64*i} sc1"); vm.add("cs")
        if st in (16, 24):
            vm.wait(("st", st))
            if st == 16: A(f"v_add_f32 v{vNM}, v112, v114\nv_add_f32 v{vVAR}, v113, v115")
            else: A(f"v_add_f32 v112, v112, v114\nv_add_f32 v113, v113, v115\nv_add_f32 v{vNM}, v{vNM}, v112\nv_add_f32 v{vVAR}, v{vVAR}, v113")
        if st in (8, 16): A(f"buffer_load_dwordx4 v[112:115], v{vST}, {WS}, s58 offen offset:{64*(st-8)} sc1"); vm.add(("st", st+8))
        if SDM <= st < SDM + 5:
            j = st - SDM
            A(f"s_add_u32 m0, s60, {1024*j}\nbuffer_load_dwordx4 v{WOFF+j}, {WD}, s61 offen lds"); vm.add("dma")
        if st == 36: A(f"buffer_load_dword v112, v{vF4}, {WS}, s62 offen sc1"); vm.add("f4")
    assert nld == 40
    stamp("p4mm")
    F0, AC5 = 0, 20
    BL = {1: [[60+8*u for u in range(7)]]*2, 0: [[92, 100, 108, 200, 208], [60, 68, 76, 84, 216]]}
    WR = {1: [F0] + [120+20*u for u in range(6)], 0: [F0, 160, 180, 120, 140]}
    def ldB5(role, ps, vmq):
        if ps == 0: A(f"s_mul_i32 s65, {sQ}, {(6, 4)[1-role]*1024}\ns_add_u32 s65, s65, s63" + ("" if role else f"\ns_add_u32 s65, s65, {24*1024}"))
        else: A(f"s_add_u32 s64, s64, 98304\ns_add_u32 s65, s65, {98304 - (4096 if role else 0)}")
        for u in range(len(WR[role])):
            if u == 5: A("s_add_u32 s65, s65, 4096")
            for tt in range(2):
                A(f"buffer_load_dwordx4 {vr(BL[role][ps][u]+4*tt,4)}, v{251+tt}, {WS}, {'s64' if u == 0 else 's65'} offen offset:{1024*((u-1)&3) if u else 0} sc1")
            vmq.add((ps, u), 2)
    lx_, ly_ = L("x"), L("y")
    A(f"s_cmp_ge_u32 {sW}, 4\ns_cbranch_scc1 {lx_}")
    vm.wait("f4")
    A(f"v_cmp_ne_u32 vcc, {sT}, v112\ns_cbranch_vccz {ly_}")
    poll(vF4, 112, "s62")
    A(f"{ly_}:")
    ldB5(0, 0, Q(A, "vmcnt", 63))
    A(f"{lx_}:")
    T0 = 72
    A(f"""
    v_mov_b32 v{T0}, v{vNM}
    v_mov_b32 v{T0+1}, v{vVAR}
    v_permlane32_swap_b32 v{vNM}, v{T0}
    v_permlane32_swap_b32 v{vVAR}, v{T0+1}
    v_add_f32 v{vNM}, v{vNM}, v{T0}
    v_add_f32 v{vVAR}, v{vVAR}, v{T0+1}
    v_mul_f32 v{vNM}, {f2u(-1/640)}, v{vNM}
    v_mul_f32 v{vVAR}, {f2u(1/640)}, v{vVAR}
    v_fma_f32 v{vVAR}, -v{vNM}, v{vNM}, v{vVAR}
    v_max_f32 v{vVAR}, 0, v{vVAR}
    v_add_f32 v{vVAR}, {f2u(1e-5)}, v{vVAR}
    v_rsq_f32 v{vRS}, v{vVAR}
    v_cvt_pk_bf16_f32 v{T0}, v{vNM}, v{vNM}
    v_and_b32 v{T0+1}, 0xffff0000, v{T0}
    v_sub_f32 v{T0+1}, v{vNM}, v{T0+1}
    v_cvt_pk_bf16_f32 v48, v{vNM}, v{T0+1}
    v_mov_b32 v50, 0
    v_mov_b32 v51, 0
    v_mov_b32 v49, v48
    """)
    for i in range(3):
        A(f"""v_cvt_pk_bf16_f32 v{52+4*i}, v{253+i}, v{253+i}
        v_and_b32 v{T0+1}, 0xffff0000, v{52+4*i}
        v_sub_f32 v{T0+1}, v{253+i}, v{T0+1}
        v_cvt_pk_bf16_f32 v{53+4*i}, v{T0+1}, v{T0+1}
        v_mov_b32 v{54+4*i}, 0
        v_mov_b32 v{55+4*i}, 0""")
        d = vr(AC4+16*i,16)
        A(f"v_mfma_f32_32x32x16_bf16 {d}, {vr(52+4*i,4)}, v[48:51], {d}")
    c1 = -2*math.sqrt(2/math.pi)*math.log2(math.e); c2 = c1*0.044715
    A(f"""
    v_mul_f32 v64, {f2u(c1)}, v{vRS}
    v_mul_f32 v66, v{vRS}, v{vRS}
    v_mul_f32 v66, v66, v{vRS}
    v_mul_f32 v66, {f2u(c2)}, v66
    v_and_b32 v70, 15, v{vL}
    v_bfe_u32 v71, v{vL}, 4, 1
    v_lshrrev_b32 v65, 5, v{vL}
    v_mul_u32_u24 v71, 49152, v71
    v_lshl_add_u32 v71, v70, 4, v71
    v_lshl_add_u32 v71, v65, 8, v71
    s_mul_i32 s58, s68, 98304
    s_mul_i32 s59, {sIDX}, 1536
    s_add_u32 s58, s58, s59
    s_add_u32 s58, s58, {WS_HP}
    s_lshl_b32 s56, s68, 7
    s_lshl_b32 s59, {sIDX}, 2
    s_add_u32 s56, s56, s59
    s_add_u32 s56, s56, {WS_F4}
    """)
    for i in range(3):
        g, u, t = AC4+16*i, AC4+16*i+8, T0
        for r in range(8): A(f"v_mul_f32 v{t+r}, v{g+r}, v{g+r}")
        for r in range(8): A(f"v_fma_f32 v{t+r}, v{t+r}, v66, v64")
        for r in range(8): A(f"v_mul_f32 v{t+r}, v{t+r}, v{g+r}")
        for r in range(8): A(f"v_exp_f32 v{t+r}, v{t+r}")
        for r in range(8): A(f"v_mul_f32 v{u+r}, v{u+r}, v{g+r}")
        for r in range(8): A(f"v_fma_f32 v{t+r}, v{t+r}, v{vVAR}, v{vVAR}")
        for r in range(8): A(f"v_rcp_f32 v{t+r}, v{t+r}")
        for r in range(8): A(f"v_mul_f32 v{u+r}, v{u+r}, v{t+r}")
        for r in range(4): A(f"v_cvt_pk_bf16_f32 v{80+4*i+r}, v{u+2*r}, v{u+2*r+1}")
    stamp("p4pre")
    stores([f"buffer_store_dwordx4 {vr(80+4*i,4)}, v71, {WS}, s58 offen offset:{512*i}" for i in range(3)])
    aW, a0, aP0, aP1 = 248, 249, 250, 253
    A(f"v_add_u32 v{aW}, s60, v{vB}")
    trA(a0, "s60")
    A(f"""
    s_mul_i32 s78, {sKH}, 40960
    s_add_u32 s79, s78, 40960
    v_add_u32 v{aP0}, s79, v{aW}
    s_sub_u32 s79, 81920, s78
    v_add_u32 v{aP1}, s79, v{aW}
    s_waitcnt vmcnt(3)
    s_cmp_ge_u32 {sW}, 4
    s_cbranch_scc1 L_p5l""")
    def mm5(role, ps, vmq, hook=None):
        for u in range(len(WR[role])):
            if vmq: vmq.wait((ps, u))
            stamp(f"p5s{ps}{u}")
            for ct in range(5):
                for tt in range(2):
                    d = vr(AC5+20*tt+4*ct,4)
                    A(f"v_mfma_f32_16x16x32_bf16 {d}, {vr(WR[role][u]+4*ct,4)}, {vr(BL[role][ps][u]+4*tt,4)}, {d if (u or (tt == 0 and not role)) else '0'}")
            if hook: hook(u)
    def flush(ps):
        for tt in range(2):
            for ct in range(5): A(f"ds_write_b128 v{(aP0, aP1)[tt]}, {vr(AC5+20*tt+4*ct,4)} offset:{1024*ct}")
        if ps == 0:
            A(f"s_mul_i32 s78, {sKH}, 122880\nv_add_u32 v{aP0}, s78, v{aW}\ns_sub_u32 s78, 122880, s78\nv_add_u32 v{aP1}, s78, v{aW}")
    def resid(ps):
        A(f"s_cmp_eq_u32 {sTT}, {ps}\ns_cselect_b32 s78, 0xffff0000, 0\ns_cselect_b32 s79, 0x10000, 0")
        for r in range(10): A(f"v_mul_u32_u24 v{AC5+2*r}, s79, v{XR+r}\nv_and_b32 v{AC5+2*r+1}, s78, v{XR+r}")
    A("s_add_u32 s62, s62, 128")
    tr5(F0, 0, aW, a0)
    resid(0)
    flag("s56")
    stamp("hppub")
    A("s_barrier")
    stamp("BG")
    A("s_waitcnt lgkmcnt(0)")
    def hk(u):
        if u == 2: A(f"buffer_load_dword v112, v{vF4}, {WS}, s62 offen sc1")
    mm5(0, 0, None, hk)
    stamp("p5a")
    lz = L("z")
    A(f"s_waitcnt vmcnt(0)\nv_cmp_ne_u32 vcc, {sT}, v112\ns_cbranch_vccz {lz}")
    flush(0)
    poll(vF4, 112, "s62")
    vm = Q(A, "vmcnt", 63); ldB5(0, 1, vm)
    A(f"s_branch {lz}b\n{lz}:")
    vm = Q(A, "vmcnt", 63); ldB5(0, 1, vm)
    flush(0)
    A(f"{lz}b:")
    stamp("S4")
    resid(1)
    mm5(0, 1, vm)
    A("s_branch L_p5e\nL_p5l:")
    tr5(F0, 0, aW, a0)
    flag("s56")
    stamp("hppub")
    A("s_setprio 0")
    poll(vF4, 112, "s62")
    stamp("S4e")
    vm = Q(A, "vmcnt", 63); ldB5(1, 0, vm)
    A("s_add_u32 s62, s62, 128\ns_waitcnt lgkmcnt(0)")
    mm5(1, 0, vm)
    stamp("p5a")
    A("s_barrier")
    stamp("BG")
    flush(0)
    A("s_setprio 1")
    poll(vF4, 112, "s62")
    stamp("S4")
    ldB5(1, 1, vm)
    mm5(1, 1, vm)
    A("L_p5e:")
    stamp("p5mm")
    flush(1)
    A(f"""
    s_add_u32 s78, {sQ}, 1
    s_cmp_eq_u32 {sQ}, 2
    s_cselect_b32 s78, 0, s78
    s_min_u32 s78, s78, 3
    s_mul_i32 s78, s78, 40960
    s_mul_i32 s79, {sTH}, 3072
    s_add_u32 s78, s78, s79
    v_add_u32 v1, s78, v{vB}
    v_and_b32 v2, 15, v{vL}
    v_lshrrev_b32 v3, 4, v{vL}
    v_mul_u32_u24 v2, 1280, v2
    v_lshl_add_u32 v5, v3, 3, v2
    v_and_b32 v4, 1, v3
    v_lshrrev_b32 v3, 1, v3
    v_lshl_add_u32 v2, v4, 5, v2
    v_lshl_add_u32 v4, v3, 4, v2
    s_lshl_b32 s56, {sB}, 2
    s_add_u32 s56, s56, {sQ}
    s_mul_i32 s56, s56, {16*1280}
    s_mul_i32 s57, {sNB}, 160
    s_add_u32 s56, s56, s57
    s_mul_i32 s57, {sTH}, 96
    s_add_u32 s56, s56, s57
    s_waitcnt lgkmcnt(0)
    s_barrier
    """)
    stamp("p5x")
    l5, l6 = L("t5"), L("t6")
    for c in range(3):
        if c == 2: A(f"s_cmp_eq_u32 {sTH}, 1\ns_cbranch_scc1 {l5}")
        for q in range(8): A(f"ds_read_b128 {vr(64+32*c+4*q,4)}, v1 offset:{1024*c+5120*q}")
    A(f"{l5}:")
    for c in range(3):
        r = 64+32*c
        A(f"s_waitcnt lgkmcnt({8 if c == 0 else 0})")
        for s in (16, 8, 4):
            for k in range(0, s, 2): A(f"v_pk_add_f32 {vr(r+k,2)}, {vr(r+k,2)}, {vr(r+s+k,2)}")
        A(f"v_cvt_pk_bf16_f32 v{10+2*c}, v{r}, v{r+1}\nv_cvt_pk_bf16_f32 v{11+2*c}, v{r+2}, v{r+3}")
        if c == 1:
            A("v_permlane16_swap_b32 v10, v12\nv_permlane16_swap_b32 v11, v13")
            stores([f"buffer_store_dwordx4 v[10:13], v4, {OUT}, s56 offen"])
            A(f"s_cmp_eq_u32 {sTH}, 1\ns_cbranch_scc1 {l6}")
    stores([f"buffer_store_dwordx2 v[14:15], v5, {OUT}, s56 offen offset:64"])
    A(f"{l6}:")
    le = L("ep")
    A(f"""
    s_add_u32 s78, s2, {sW}
    s_cmp_lg_u32 s78, 0
    s_cbranch_scc1 {le}
    v_mov_b32 v46, {sT}
    s_mov_b64 exec, 1
    buffer_store_dword v46, off, {WS}, 0 sc1
    s_mov_b64 exec, -1
    {le}:""")
    if opt.get("dbgclk"):
        A(f"""s_waitcnt vmcnt(0)
        s_and_b32 s78, s2, 63
        s_add_u32 s78, s78, {sW}
        s_cmp_lg_u32 s78, 0
        s_cbranch_scc1 L_exit
        s_memtime s[88:89]
        s_memrealtime s[90:91]
        s_waitcnt lgkmcnt(0)
        s_sub_u32 s88, s88, s84
        v_mov_b32 v0, s88
        v_mov_b32 v1, s86
        v_mov_b32 v2, s90
        v_mov_b32 v3, {sFAST}
        s_lshr_b32 s78, s2, 2
        s_mov_b64 exec, 1
        buffer_store_dwordx4 v[0:3], off, s[92:95], s78""")
    if diag:
        A("s_waitcnt vmcnt(0)")
        stamp("end")
        A(f"s_lshl_b32 s78, s2, 3\ns_add_u32 s78, s78, {sW}\ns_lshl_b32 s78, s78, 6\ns_add_u32 s78, s78, {WS_DBG}\ns_mov_b64 exec, 1")
        A(f"s_mov_b32 s99, {sFAST}")
        for i in range(16): A(f"v_mov_b32 v{i}, s{84+i}")
        for i in range(4): A(f"buffer_store_dwordx4 {vr(4*i,4)}, off, {WS}, s78 offset:{16*i}")
    A("L_exit:\ns_endpgm")
    def fm(q):
        S = vr(S3[q],16)
        A(f"v_mfma_f32_32x32x16_bf16 {S}, v[80:83], {vr(Qm[q],4)}, 0\nv_mfma_f32_32x32x8_bf16 {S}, v[88:89], {vr(Qm[q]+4,2)}, {S}")
    A(f"""
    L_fallback:
    v_subrev_u32 v{aK}, {cur['K']}, v{aK}
    v_subrev_u32 v{aT}, {512*tcur[0]}, v{aT}
    v_subrev_u32 v{aV}, {cur['V']}, v{aV}
    v_mov_b32 v144, 0xff800000
    v_mov_b32 v145, 0xff800000
    s_mov_b32 s63, {WS_KV}
    s_nop 7
    L_fb1:
    buffer_load_dwordx4 v[80:83], v{aK}, {WS}, s63 offen sc1
    buffer_load_dwordx2 v[88:89], v{aT}, {WS}, s63 offen sc1
    s_waitcnt vmcnt(0)""")
    fm(0); fm(1)
    for q in range(2):
        for r in range(0, 16, 2): A(f"v_max3_f32 v{144+q}, v{144+q}, v{S3[q]+r}, v{S3[q]+r+1}")
    A(f"""
    s_add_u32 s63, s63, 2560
    s_cmp_lt_u32 s63, {WS_KV+163840}
    s_cbranch_scc1 L_fb1
    v_mov_b32 v146, v144
    v_mov_b32 v147, v145
    v_permlane32_swap_b32 v144, v146
    v_permlane32_swap_b32 v145, v147
    v_max_f32 v144, v144, v146
    v_max_f32 v145, v145, v147
    s_mov_b32 s63, {WS_KV}""")
    for r in range(32): A(f"v_mov_b32 v{r}, 0")
    A(f"""
    s_nop 7
    L_fb2:
    buffer_load_dwordx4 v[80:83], v{aK}, {WS}, s63 offen sc1
    buffer_load_dwordx2 v[88:89], v{aT}, {WS}, s63 offen sc1
    s_mov_b64 exec, s[76:77]
    buffer_load_dwordx4 v[96:99], v{aV}, {WS}, s63 offen sc1
    buffer_load_dwordx4 v[100:103], v{aV}, {WS}, s63 offen offset:1280 sc1
    s_mov_b64 exec, -1
    s_waitcnt vmcnt(0)""")
    fm(0); fm(1)
    for q in range(2):
        for r in range(16): A(f"v_sub_f32 v{S3[q]+r}, v{S3[q]+r}, v{144+q}")
        for r in range(16): A(f"v_exp_f32 v{S3[q]+r}, v{S3[q]+r}")
    for q in range(2):
        for h in range(2): A(f"v_smfmac_f32_32x32x32_bf16 {vr(O_[q],16)}, {vr(96+4*h,4)}, {vr(S3[q]+8*h,8)}, v{vIDX}")
    A(f"""
    s_add_u32 s63, s63, 2560
    s_cmp_lt_u32 s63, {WS_KV+163840}
    s_nop 7
    s_cbranch_scc1 L_fb2
    s_mov_b32 s64, 1
    s_nop 7
    s_branch L_fbret
    L_end:""")
    hdr = open("cdna_kernels/" + NAME + ".s.ref").read().split("\n")
    k0 = next(i for i, l in enumerate(hdr) if l.startswith(NAME + "_kernel:"))
    k1 = next(i for i, l in enumerate(hdr) if l.startswith(".section .rodata"))
    head = [("; @launch grid=(256,1,1) block=(512,1,1) lds=163840" if l.startswith("; @launch") else l) for l in hdr[:k0+1]]
    if diag: head.insert(1, "; stamps: " + " ".join(names))
    return "\n".join(head) + "\n" + A.text() + "    s_endpgm\n" + "\n".join(hdr[k1:]), A.nops

D0 = "xin kvpub BQ slot0 attn S2 hpub S3 p4mm hppub p5a S4 p5mm end".split()
D2 = "BQ slot0 l_s1 a8 l_kv a16 a32 l_gu l_wd a48 a56 l_wo attn".split()
D3 = "attn opre oflag S2 p3s10 p3mm p3pre hpub l_wo l_g1 l_g0 GB S3 p4s0".split()
D4 = "GB S3 p4s0 p4s20 p4mm p4pre hppub S4e p5a BG S4 p5mm p5x end".split()
D5 = "xin BQ slot0 a16 a32 a48 attn hpub p4s0 p4s20 p4mm hppub p5mm end".split()
D6 = "BQ slot0 l_s1 a16 a48 a56 l_kv l_r0 l_r1 l_r2 l_gu l_wd l_wo attn".split()
V = dict(t1=dict(bar2=92), t2=dict(bar2=86), t3=dict(ckst=6, flst=3), e4=dict(diag=D0, ct=()), e1=dict(diag=D6), e2=dict(diag="slot0 a0 a2 a4 a6 a7 a10 a14 a15 a18 l_s1 l_b1 l_f6 l_kv".split(), nb1=16), e3=dict(diag="a44 a46 a48 a49 a50 a52 a54 a56 a58 a60 a62 attn l_wd l_wo".split(), nb1=16), clk=dict(dbgclk=1), diag=dict(diag=D0), na=dict(diag=D0, alias=0), slow=dict(diag=D0, force_slow=True), fb=dict(force_fb=True),
  d2=dict(diag=D2), d3=dict(diag=D3), d4=dict(diag=D4), r1=dict(diag=D5), r2=dict(diag=D5, rt=1),
  d1=dict(diag="setup xin BX stats norm wkv kvst kvpub q0 q1 q2 q3 BQ slot0".split()))
if __name__ == "__main__":
    t, n = gen()
    open("cdna_kernels/" + NAME + ".s", "w").write(t)
    for nm, kw in V.items(): open(f"k_{nm}.s", "w").write(gen(**kw)[0])
    print("ok; nops", n, "lines", t.count("\n"))
```

```python
import sys, math, struct
from asmlib import Asm
NAME = "sequential_preLN__grouped_kv_mqa__glu_gated_geglu__prompt"
WS_F1, WS_F2, WS_F3, WS_F4 = 0x1000, 0x9000, 0xB000, 0xD000
WS_CS = 0xB80000
WS_KV, WS_HS, WS_O, WS_H, WS_HP, WS_DBG, WS_SIZE = 0x10000, 0x40000, 0x80000, 0x300000, 0x580000, 0xC00000, 0x1000000
def f2u(x): return "0x%08x" % struct.unpack("<I", struct.pack("<f", x))[0]
def vr(a, n): return f"v[{a}:{a+n-1}]" if n > 1 else f"v{a}"
ONES = "0x3f803f80"

class Q:
    def __init__(s, A, name, cap): s.A, s.name, s.cap, s.q, s.done = A, name, cap, [], 0
    def add(s, tag, n=1): s.q += [tag]*n
    def wait(s, tag):
        i = max(i for i, x in enumerate(s.q) if x == tag)
        if i < s.done: return
        k = min(len(s.q) - 1 - i, s.cap); s.done = len(s.q) - k
        s.A(f"s_waitcnt {s.name}({k})")
    def all(s): s.A(f"s_waitcnt {s.name}(0)"); s.done = len(s.q)

def gen(diag=False, force_slow=False, force_fb=False, **opt):
    A = Asm()
    X, WQ, WKV, WO, GU, WD, OUT, WS = ("s[8:11]","s[12:15]","s[16:19]","s[20:23]","s[24:27]","s[28:31]","s[32:35]","s[36:39]")
    sW, sXCD, sIDX, sB, sNB = "s3","s4","s5","s6","s7"
    sT, sXCC, sFAST, sTT, sKH, sTH, sQ = "s40","s41","s42","s43","s44","s45","s46"
    names = []
    def stamp(name):
        if not diag or (name not in diag and name != "start"): return
        if name not in names: names.append(name)
        i = names.index(name); assert i < 15
        A(f"{'s_memrealtime' if opt.get('rt') else 's_memtime'} s[82:83]\ns_waitcnt lgkmcnt(0)\ns_mov_b32 s{84+i}, s82")
    WOFF, vL, vB, vT1 = 240, 245, 246, 247
    XR = 230
    lab = [0]
    def L(p):
        lab[0] += 1; return f"L_{p}{lab[0]}"
    def poll(vaddr, vdst, soff="0", x2=False):
        l0, l1 = L("poll"), L("pdone")
        A(f"s_mov_b32 s78, 0\n{l0}:")
        A(f"buffer_load_dword{'x2' if x2 else ''} {vr(vdst, 2 if x2 else 1)}, v{vaddr}, {WS}, {soff} offen sc1")
        A(f"s_add_u32 s78, s78, 1\ns_cmp_gt_u32 s78, 0x8000\ns_cbranch_scc1 {l1}")
        A(f"s_waitcnt vmcnt(0)\nv_cmp_ne_u32 vcc, {sT}, v{vdst}\ns_cbranch_vccnz {l0}")
        A(f"{l1}:\ns_waitcnt vmcnt(0)")
    def ldsspin(vaddr, vdst, val, off=0):
        l0, l1 = L("spin"), L("spind")
        A(f"""s_mov_b32 s78, 0
        {l0}:
        ds_read_b32 v{vdst}, v{vaddr} offset:{off}
        s_add_u32 s78, s78, 1
        s_cmp_gt_u32 s78, 0x40000
        s_cbranch_scc1 {l1}
        s_waitcnt lgkmcnt(0)
        v_cmp_ne_u32 vcc, {val}, v{vdst}
        s_cbranch_vccnz {l0}
        {l1}:""")
    def stores(lst):
        ls, le = L("slow"), L("stend")
        A(f"s_cmp_eq_u32 {sFAST}, 0\ns_cbranch_scc1 {ls}")
        for sc in ("", " sc1"):
            for st in lst: A(st + sc if st.startswith("buffer_store") else st)
            if not sc: A(f"s_branch {le}\n{ls}:")
        A(f"{le}:")
    def flag(addr_s):
        A(f"v_mov_b32 v{vT1}, {sT}\ns_mov_b64 exec, 1\ns_waitcnt vmcnt(0)")
        stores([f"buffer_store_dword v{vT1}, off, {WS}, {addr_s}"])
        A("s_mov_b64 exec, -1")
    ALIAS = opt.get("alias", 1)
    OB, OST = (WS_HP, 49152) if ALIAS else (WS_O, 20480)
    HSRD, HB = (OUT, 0) if ALIAS else (WS, WS_H)
    LCS = 102400
    def csaddr(dst, t):
        A(f"""
        v_bfe_u32 v{t}, v{vL}, 4, 1
        v_lshrrev_b32 v{dst}, 5, v{vL}
        v_lshl_add_u32 v{dst}, v{t}, 1, v{dst}
        v_lshlrev_b32 v{dst}, 8, v{dst}
        v_bfe_u32 v{t}, v{vL}, 2, 1
        v_lshl_add_u32 v{dst}, v{t}, 5, v{dst}
        v_bfe_u32 v{t}, v{vL}, 3, 1
        v_lshl_add_u32 v{dst}, v{t}, 4, v{dst}
        v_and_b32 v{t}, 3, v{vL}
        v_lshl_add_u32 v{dst}, v{t}, 2, v{dst}
        """)
    def srd(base, lo, size):
        A(f"s_mov_b32 s{base}, s{lo}\ns_mov_b32 s{base+1}, s{lo+1}\ns_mov_b32 s{base+2}, {size}\ns_mov_b32 s{base+3}, 0x00020000")
    def trA(dst, kh_term):
        A(f"v_and_b32 v{vT1}, 3, v{vL}\nv_lshrrev_b32 v{dst}, 2, v{vL}\nv_mul_u32_u24 v{dst}, 160, v{dst}\nv_lshl_add_u32 v{dst}, v{vT1}, 3, v{dst}")
        if kh_term: A(f"v_add_u32 v{dst}, {kh_term}, v{dst}")

    LGU = 40960
    AC4, AR4, NA4, BR4, NB4 = 0, 48, opt.get("na4", 3), 84, 7
    aA0, aA, vF4, vST, vNM, vVAR, vRS = 116, 117, 118, 119, 248, 249, 250
    def p4pro():
        A(f"""
        v_and_b32 v109, 1, v{vL}
        v_bfe_u32 v110, v{vL}, 1, 1
        v_lshl_add_u32 v108, v109, 1, v110
        v_bfe_u32 v109, v{vL}, 2, 3
        v_lshrrev_b32 v110, 5, v{vL}
        v_lshl_add_u32 v111, v110, 4, v109
        v_mul_u32_u24 v111, 96, v111
        v_lshl_add_u32 v111, v108, 3, v111
        v_add_u32 v{aA0}, {LGU}, v111
        v_and_b32 v115, 15, v{vL}
        v_lshlrev_b32 v115, 2, v115
        v_and_b32 v108, 31, v{vL}
        v_lshlrev_b32 v{vF4}, 2, v108
        v_lshlrev_b32 v108, 4, v108
        v_lshl_add_u32 v{vST}, v110, 10, v108
        s_lshl_b32 s68, {sXCD}, 2
        s_add_u32 s68, s68, {sQ}
        s_lshl_b32 s68, s68, 1
        s_add_u32 s68, s68, 1
        s_sub_u32 s68, s68, {sTH}
        s_lshl_b32 s57, s68, 7
        s_add_u32 s57, s57, {WS_F3}
        s_lshl_b32 s58, s68, 11
        s_add_u32 s58, s58, {WS_HS}
        s_mul_i32 s59, s68, 40960
        s_add_u32 s59, s59, {HB}
        s_mul_i32 s60, {sW}, 5120
        s_mul_i32 s61, {sW}, 40960
        s_add_u32 s61, s61, {40*40960}
        s_lshl_b32 s62, {sB}, 8
        s_add_u32 s62, s62, {WS_F4}
        s_mul_i32 s63, {sB}, {4*49152}
        s_add_u32 s63, s63, {WS_HP}
        s_lshl_b32 s64, {sW}, 10
        s_add_u32 s64, s64, s63
        s_add_u32 s64, s64, {40*1024}""")
    def tr5(r, wr, aw, ar):
        if wr:
            for j in range(5): A(f"ds_write_b128 v{aw}, {vr(r+4*j,4)} offset:{1024*j}")
        for ct in range(5):
            for hf in range(2): A(f"ds_read_b64_tr_b16 {vr(r+4*ct+2*hf,2)}, v{ar} offset:{hf*2560+ct*32}")
    LWKV, LKX, LST, LFL, LKP, LQP = 102400, 158720, 160768, 161792, 162048, 102400
    XF, ACC, RING, GOFF = 144, 184, 32, 250
    O_ = (0, 16); S3 = (32, 48, 64); KMb = (80, 84); KTb = (88, 92); Vb = (96, 112); Qm = (128, 134); aK, aT, aV, vIDX = 140, 141, 142, 143
    A(f"""
    s_cmp_ge_u32 s2, 256
    s_cbranch_scc1 L_exit
    s_load_dwordx16 s[52:67], s[0:1], 0
    s_load_dwordx8 s[68:75], s[0:1], 64
    s_getpc_b64 s[80:81]
    L_pc:
    v_lshrrev_b32 v1, 6, v0
    v_and_b32 v{vL}, 63, v0
    s_lshr_b32 {sIDX}, s2, 3
    s_lshl_b32 s78, {sIDX}, 11
    v_lshlrev_b32 v253, 7, v{vL}
    v_lshl_add_u32 v2, v1, 8, v253
    v_add_u32 v2, s78, v2
    v_min_u32 v2, L_end-L_pc-4, v2
    s_mov_b64 exec, 3
    global_load_dword v203, v2, s[80:81]
    s_mov_b64 exec, -1
    v_readfirstlane_b32 {sW}, v1
    s_and_b32 {sXCD}, s2, 7
    s_lshr_b32 {sB}, {sIDX}, 3
    s_and_b32 {sNB}, {sIDX}, 7
    s_lshl_b32 s78, {sXCD}, 2
    s_add_u32 {sB}, {sB}, s78
    s_getreg_b32 {sXCC}, hwreg(HW_REG_XCC_ID, 0, 4)
    s_lshr_b32 {sTT}, {sW}, 1
    s_and_b32 {sKH}, {sW}, 1
    s_lshr_b32 {sTH}, {sW}, 2
    s_and_b32 {sQ}, {sW}, 3
    v_lshlrev_b32 v{vB}, 4, v{vL}
    v_mov_b32 v216, 0
    v_lshlrev_b32 v215, 2, v{vL}
    v_add_u32 v215, {LFL}, v215
    ds_write_b32 v215, v216
    s_lshl_b32 s82, {sB}, 2
    s_add_u32 s82, s82, {sTT}
    s_mul_i32 s78, s82, {16*1280}
    s_mul_i32 s79, {sKH}, 640
    s_add_u32 s78, s78, s79
    v_lshrrev_b32 v209, 3, v{vL}
    v_lshrrev_b32 v210, 4, v{vL}
    v_and_b32 v211, 7, v{vL}
    v_xor_b32 v211, v211, v210
    v_mul_u32_u24 v4, 1280, v209
    v_lshl_add_u32 v4, v211, 4, v4
    v_add_u32 v200, s78, v4
    v_xor_b32 v201, 64, v200
    s_mul_i32 s51, {sW}, 10240
    s_cmp_lt_u32 {sW}, 5
    s_cselect_b32 s78, 0, 25600
    s_add_u32 s51, s51, s78
    s_add_u32 s51, s51, 51200
    s_mul_i32 s50, s82, 1280
    s_lshr_b32 s79, {sNB}, 2
    s_mul_i32 s79, s79, 640
    s_add_u32 s50, s50, s79
    s_add_u32 s50, s50, {WS_KV}
    s_and_b32 s47, {sNB}, 3
    """)
    for r in (255, 219, 226, 227, 229, 232, 233, 248, 250, 251, 252, WOFF, WOFF+1, WOFF+2, WOFF+3, WOFF+4): A(f"v_mov_b32 v{r}, 0")
    A("s_waitcnt lgkmcnt(0)")
    stamp("start")
    if opt.get("dbgclk"): A("s_memtime s[84:85]\ns_memrealtime s[86:87]\ns_mov_b32 s92, s72\ns_mov_b32 s93, s73\ns_mov_b32 s94, 256\ns_mov_b32 s95, 0x00020000\ns_waitcnt lgkmcnt(0)")
    if diag:
        for i in range(1, 15): A(f"s_mov_b32 s{84+i}, s84")
    srd(8, 52, 2621440)
    def xloads():
        A("s_movk_i32 s79, 10240")
        for i in range(5):
            A(f"s_add_u32 m0, s51, {1920*i}\nbuffer_load_dwordx4 v200, {X}, 0 offen offset:{128*i} lds")
            A(f"s_add_u32 m0, s51, {1920*i+1024}\nbuffer_load_dwordx4 v201, {X}, s79 offen offset:{128*i} lds")
    def ifkv(lab, kv=True): A(f"s_cmp_{'eq' if kv else 'lg'}_u32 s47, {sTT}\ns_cbranch_scc1 {lab}")
    def srds():
        srd(36, 74, WS_SIZE); srd(12, 54, 819200)
        A(f"s_cmp_lt_u32 {sNB}, 4\ns_cselect_b32 s16, s56, s58\ns_cselect_b32 s17, s57, s59\ns_mov_b32 s18, 25600\ns_mov_b32 s19, 0x00020000")
    def woff():
        A(f"s_mul_i32 s78, {sNB}, 160")
        for j in range(5):
            A(f"""
            v_add_u32 v204, {64*j}, v{vL}
            v_mul_u32_u24 v205, 6554, v204
            v_lshrrev_b32 v205, 16, v205
            v_mul_u32_u24 v206, 10, v205
            v_sub_u32 v206, v204, v206
            v_and_b32 v207, 3, v205
            v_bfe_u32 v208, v205, 2, 2
            v_lshrrev_b32 v204, 4, v205
            v_lshl_add_u32 v207, v208, 3, v207
            v_lshl_add_u32 v207, v204, 2, v207
            v_mul_u32_u24 v207, 1280, v207
            v_lshl_add_u32 v207, v206, 4, v207
            v_add_u32 v{WOFF+j}, s78, v207
            """)
    def wqdma(js=range(5)):
        for j in js: A(f"s_add_u32 m0, s48, {1024*j}\nbuffer_load_dwordx4 v{WOFF+j}, {WQ}, s49 offen lds")
        if 4 in js: A(f"s_add_u32 s49, s49, {3*40960}\ns_add_u32 s48, s48, 30720")
    def wq1(j):
        l = L("wq"); ifkv(l); wqdma([j]); A(l + ":")
    NL = opt.get("nl", 64); MH = (1 << max(96-NL, 1)) - 1
    def tgu(r, q=None):
        A(f"""s_add_u32 s78, s65, {393216*r}
        s_mov_b64 exec, s[72:73]
        buffer_load_dword v254, v253, {GU}, s78 offen
        s_mov_b64 exec, -1""")
        if q: q.add("t")
    def setup(sx):
        trA(220, None)
        A(f"""
        s_mul_i32 s79, {sKH}, 5120
        v_add_u32 v218, s79, v220
        v_add_u32 v205, 61440, v218
        s_lshl_b32 s78, {sTT}, 4
        v_add_u32 v206, s78, v212
        v_mul_u32_u24 v206, 336, v206
        v_lshl_add_u32 v206, v210, 4, v206
        s_mul_i32 s78, {sKH}, 21504
        s_add_u32 s78, s78, {LQP}
        v_add_u32 v206, s78, v206
        s_lshl_b32 s78, {sXCD}, 12
        s_add_u32 s78, s78, {WS_F1}
        v_lshl_add_u32 v248, v221, 7, s78
        s_mov_b32 s54, 0
        """)
        A(f"s_cmp_ge_u32 {sW}, 4\ns_cbranch_scc1 L_b1{sx}")
        A(f"""
        v_mul_u32_u24 v223, 336, v221
        s_mul_i32 s78, {sQ}, 80
        s_add_u32 s78, s78, {LQP}
        v_add_u32 v223, s78, v223
        v_lshl_add_u32 v224, v222, 5, v223
        v_bfe_u32 v250, v{vL}, 4, 1
        v_mul_u32_u24 v250, 1280, v250
        v_lshl_add_u32 v{aT}, v212, 3, v250
        v_add_u32 v{aT}, 512, v{aT}
        v_lshl_add_u32 v{aK}, v212, 4, v250
        v_lshl_add_u32 v{aK}, v222, 8, v{aK}
        v_and_b32 v250, 3, v{vL}
        v_bfe_u32 v251, v{vL}, 2, 1
        v_bfe_u32 v252, v{vL}, 3, 1
        v_lshl_add_u32 v249, v251, 3, v250
        v_lshl_add_u32 v249, v252, 2, v249
        s_and_b32 s78, {sQ}, 1
        s_lshl_b32 s79, s78, 2
        v_add_u32 v249, s79, v249
        s_lshl_b32 s79, s78, 4
        s_sub_u32 s79, 16, s79
        v_add_u32 v250, s79, v250
        v_cmp_gt_u32 vcc, 16, v221
        v_mul_u32_u24 v251, 20, v222
        v_cndmask_b32 v249, v250, v249, vcc
        v_add_u32 v249, v249, v251
        v_lshlrev_b32 v{aV}, 4, v249
        v_add_u32 v{aV}, 640, v{aV}
        v_mov_b32 v{vIDX}, 0xDDDDDDDD
        s_mov_b32 s76, 0x000fffff
        s_mov_b32 s77, 0x000fffff
        s_mov_b32 s52, 0x01100000
        s_mov_b32 s53, 0x01100000
        v_cndmask_b32 v96, 0, v72, s[52:53]
        """)
        for r in range(1, 32): A(f"v_mov_b32 v{96+r}, v96")
        for r in range(32): A(f"v_mov_b32 v{r}, 0")
        A(f"""
        v_mul_u32_u24 v249, 1280, v212
        v_lshl_add_u32 v251, v210, 3, v249
        v_and_b32 v250, 1, v210
        v_lshl_add_u32 v249, v250, 5, v249
        v_lshl_add_u32 v250, v222, 4, v249
        s_lshl_b32 s63, {sB}, 2
        s_add_u32 s63, s63, {sW}
        s_mul_i32 s63, s63, {16*1280}
        s_mul_i32 s57, {sNB}, 160
        s_add_u32 s63, s63, s57
        v_bfe_u32 v226, v{vL}, 4, 1
        v_mul_u32_u24 v226, {OST}, v226
        v_lshl_add_u32 v226, v212, 4, v226
        v_lshl_add_u32 v227, v222, 8, v226
        s_mul_i32 s57, {sB}, {4*OST}
        s_add_u32 s57, s57, {OB}
        s_lshl_b32 s58, {sNB}, 2
        s_add_u32 s58, s58, {sQ}
        s_lshl_b32 s62, {sB}, 7
        s_add_u32 s62, s62, {WS_F2}
        s_lshl_b32 s59, s58, 2
        s_add_u32 s56, s62, s59
        s_mul_i32 s58, s58, 20
        s_add_u32 s59, s58, 4
        s_lshr_b32 s59, s59, 3
        s_lshl_b32 s59, s59, 8
        s_add_u32 s59, s59, s57
        s_and_b32 s60, {sQ}, 1
        s_lshl_b32 s61, s60, 4
        s_sub_u32 s58, s58, s61
        s_add_u32 s58, s58, 16
        s_lshr_b32 s58, s58, 3
        s_lshl_b32 s58, s58, 8
        s_lshl_b32 s60, s60, 3
        s_add_u32 s58, s58, s60
        s_add_u32 s58, s58, s57
        s_add_u32 s60, s58, {2*OST}
        s_add_u32 s61, s59, {2*OST}
        s_mul_i32 s64, {sW}, {OST}
        s_add_u32 s57, s57, s64
        s_add_u32 s57, s57, 16384
        s_mov_b32 s64, 0
        s_mov_b32 s66, {f2u(2.0**-60)}
        s_mov_b32 s67, {f2u(2.0**100)}
        s_mul_i32 s55, {sQ}, {4*40960}
        s_add_u32 s55, s55, {24*40960}
        v_add_u32 v225, 51200, v220
        v_lshlrev_b32 v229, 2, v221
        s_branch L_b2{sx}
        L_b1{sx}:""")
        A(f"s_mul_i32 s78, {sIDX}, 96\ns_mul_i32 s79, {sKH}, 98304\ns_add_u32 s78, s78, s79")
        for i in range(3):
            A(f"""
            v_add_u32 v0, {32*i}, v221
            v_mul_u32_u24 v1, 10923, v0
            v_lshrrev_b32 v1, 16, v1
            v_mul_u32_u24 v2, 6, v1
            v_sub_u32 v2, v0, v2
            v_lshl_add_u32 v1, v222, 4, v1
            v_mul_u32_u24 v1, 3072, v1
            v_lshl_add_u32 v1, v2, 4, v1
            v_add_u32 v{GOFF+i}, s78, v1""")
        A(f"""
        s_mul_i32 s64, {sQ}, 5120
        s_add_u32 s72, {sXCD}, 1
        s_and_b32 s72, s72, 7
        s_add_u32 s73, {sXCD}, {sQ}
        s_add_u32 s73, s73, 2
        s_and_b32 s73, s73, 7
        s_lshr_b32 s57, {sQ}, 1
        s_add_u32 s57, s57, 6
        s_add_u32 s74, {sXCD}, s57
        s_and_b32 s74, s74, 7
        s_add_u32 s78, s64, {WS_KV}
        s_mul_i32 s63, {sXCD}, 20480
        s_add_u32 s63, s63, s78
        s_mul_i32 s60, s72, 20480
        s_add_u32 s60, s60, s78
        s_mul_i32 s61, s73, 20480
        s_add_u32 s61, s61, {WS_KV}
        s_mul_i32 s78, {sKH}, 10240
        s_mul_i32 s59, s74, 20480
        s_add_u32 s59, s59, s78
        s_add_u32 s59, s59, {WS_KV}
        s_mul_i32 s57, s57, 20480
        s_add_u32 s57, s57, s78
        s_mul_i32 s56, {sQ}, 20480
        s_add_u32 s56, s56, 40960
        s_sub_u32 s73, s73, s72
        s_lshl_b32 s73, s73, 12
        s_lshl_b32 s72, s72, 12
        s_add_u32 s72, s72, {WS_F1}
        s_lshl_b32 s74, s74, 12
        s_add_u32 s74, s74, {WS_F1}
        v_lshl_add_u32 v233, v221, 7, s74
        v_mul_lo_u32 v232, v222, s73
        v_lshl_add_u32 v232, v221, 7, v232
        v_add_u32 v232, s72, v232
        s_mul_i32 s62, {sIDX}, 640
        s_add_u32 s62, s62, s61
        s_mul_i32 s58, {sIDX}, 320
        s_add_u32 s58, s58, s59
        s_andn2_b32 s65, {sIDX}, 1
        s_add_u32 s65, s65, {sKH}
        s_mul_i32 s65, s65, {96*128}
        s_mov_b32 s79, {(1 << (min(NL, 63)-32)) - 1}
        s_add_u32 s78, {sIDX}, 1
        s_bitcmp1_b32 s78, 1
        s_cselect_b32 s78, {NL*128}, 0
        s_cselect_b32 s72, {MH & 0xffffffff}, -1
        s_cselect_b32 s73, {MH >> 32}, {-1 if NL >= 64 else 's79'}
        s_add_u32 s65, s65, s78
        s_mul_i32 s74, {sQ}, 192
        s_add_u32 s74, s74, {sIDX}
        s_mul_i32 s74, s74, 1280
        s_lshl_b32 s66, {sIDX}, 2
        s_add_u32 s66, s66, {sQ}
        s_lshl_b32 s78, s66, 9
        v_add_u32 v255, s78, v253
        v_min_u32 v255, L_end-L_pc-4, v255
        s_mul_i32 s67, s66, {50*128}
        s_mul_i32 s66, s66, {60*128}
        s_mul_i32 s55, {sQ}, {6*40960}
        """)
        A(f"v_add_u32 v249, s64, v220\nL_b2{sx}:")
    ifkv("L_a1", False)
    A("s_setprio 2"); xloads(); srds()
    A(f"""
    s_lshr_b32 s78, {sIDX}, 3
    s_lshl_b32 s78, s78, 2
    s_add_u32 s78, s78, s47
    s_lshl_b32 s78, s78, 1
    s_add_u32 s78, s78, {sKH}
    s_mul_i32 s78, s78, {7*128}
    s_mov_b64 exec, 0x7f
    buffer_load_dword v203, v253, {WKV}, s78 offen
    s_mov_b64 exec, -1
    buffer_load_dword v202, off, {WS}, 0 sc1
    s_lshl_b32 s78, {sXCD}, 5
    s_add_u32 s78, s78, {sIDX}
    s_lshl_b32 s78, s78, 7
    s_add_u32 s75, s78, {WS_F1}
    s_mul_i32 s49, {sKH}, 409600
    s_add_u32 s49, s49, {9*40960}
    s_mul_i32 s48, {sKH}, 5120
    s_add_u32 s48, s48, 92160
    s_branch L_a2
    L_a1:""")
    srds()
    A(f"""
    s_sub_u32 s48, {sW}, 2
    s_cmp_gt_u32 {sTT}, s47
    s_cselect_b32 s48, s48, {sW}
    s_mul_i32 s49, {sIDX}, 6
    s_add_u32 s49, s49, s48
    s_add_u32 s78, s49, 224
    s_cmp_lt_u32 s49, 96
    s_cselect_b32 s78, s49, s78
    s_mul_i32 s78, s78, 1280
    s_mov_b64 exec, 0x3ff
    buffer_load_dword v203, v253, {WQ}, s78 offen
    s_mov_b64 exec, -1
    s_mul_i32 s79, s49, {24*128}
    v_add_u32 v204, s79, v253
    v_add_u32 v205, {960*128}, v204
    v_cmp_gt_u32 vcc, {2240*128}, v204
    s_mov_b32 s75, {960*128}
    s_and_b32 s49, s48, 1
    v_cndmask_b32 v219, v205, v204, vcc
    s_mul_i32 s49, s49, 10
    s_lshr_b32 s79, s48, 1
    s_add_u32 s49, s49, s79
    s_mul_i32 s49, s49, 40960
    s_mul_i32 s48, s48, 5120
    L_a2:""")
    woff()
    srd(20, 60, 819200)
    A(f"s_bitcmp1_b32 {sW}, 1\ns_cselect_b32 s24, s66, s64\ns_cselect_b32 s25, s67, s65\ns_mov_b32 s26, 1966080\ns_mov_b32 s27, 0x00020000")
    srd(28, 68, 1966080); srd(32, 70, 2621440)
    A(f"""
    v_and_b32 v212, 15, v{vL}
    v_and_b32 v221, 31, v{vL}
    v_lshrrev_b32 v222, 5, v{vL}
    v_lshrrev_b32 v211, 1, v212
    v_xor_b32 v211, v211, v210
    v_lshlrev_b32 v211, 4, v211
    v_lshl_add_u32 v207, v212, 7, v211
    v_add_u32 v207, s51, v207
    v_xor_b32 v208, 64, v207
    s_lshl_b32 s78, {sTT}, 8
    s_add_u32 s78, s78, {LST}
    v_lshl_add_u32 v213, v212, 3, s78
    s_lshl_b32 s79, {sKH}, 7
    v_add_u32 v214, s79, v213
    s_mov_b32 s68, 0xAAAAAAAA
    s_mov_b32 s69, 0xAAAAAAAA
    s_mov_b32 s70, 0xCCCCCCCC
    s_mov_b32 s71, 0xCCCCCCCC
    s_lshl_b32 s78, {sW}, 2
    s_add_u32 s78, s78, {LFL}
    v_mov_b32 v215, s78
    v_xor_b32 v217, 4, v215
    v_mov_b32 v216, 1
    """)
    for r in range(4): A(f"v_mov_b32 v{72+r}, {ONES}")
    setup("n")
    stamp("setup")
    ifkv("L_c1")
    A("s_barrier")
    xloads()
    A(f"buffer_load_dword v202, off, {WS}, 0 sc1\ns_mov_b64 exec, 0xffffff\nbuffer_load_dword v203, v219, {WQ}, s75 offen\ns_mov_b64 exec, -1")
    A(f"s_waitcnt vmcnt(1)\ns_branch L_c3\nL_c1:\ns_mul_i32 s78, {sKH}, 12288")
    for j in range(13):
        if j & 3 == 0: A(f"s_add_u32 m0, s78, {LWKV}")
        A(f"buffer_load_dwordx4 v{vB}, {WKV}, s78 offen offset:{1024*(j&3)} lds")
        if j & 3 == 3: A("s_add_u32 s78, s78, 4096")
    A("s_barrier\ns_waitcnt vmcnt(13)\nL_c3:")
    stamp("xin")
    for i in range(5): A(f"ds_read_b128 {vr(XF+8*i,4)}, v207 offset:{2048*i}\nds_read_b128 {vr(XF+8*i+4,4)}, v208 offset:{2048*i}")
    A(f"v_readfirstlane_b32 {sT}, v202\ns_add_u32 {sT}, {sT}, 0x9E3779B9")
    for i in range(10):
        A(f"s_waitcnt lgkmcnt({9-i})"); x = vr(XF+4*i, 4)
        A(f"v_mfma_f32_16x16x32_bf16 v[76:79], v[72:75], {x}, {'0' if i == 0 else 'v[76:79]'}")
        A(f"v_mfma_f32_16x16x32_bf16 v[80:83], {x}, {x}, {'0' if i == 0 else 'v[80:83]'}")
    A(f"""
    v_cndmask_b32 v80, v80, v81, s[68:69]
    v_cndmask_b32 v82, v82, v83, s[68:69]
    v_cndmask_b32 v77, v80, v82, s[70:71]
    s_mov_b32 exec_lo, 0x00F0000F
    s_mov_b32 exec_hi, 0xF0000F00
    ds_write_b64 v214, v[76:77]
    s_mov_b64 exec, -1
    """)
    A("ds_write_b32 v215, v216")
    ifkv("L_e1")
    wqdma()
    A("L_e1:")
    ldsspin(217, 219, 1)
    A(f"""
    L_e2:
    ds_read2_b64 v[76:79], v213 offset1:16
    s_waitcnt lgkmcnt(0)
    v_add_f32 v76, v76, v78
    v_add_f32 v77, v77, v79
    v_mul_f32 v76, {f2u(1/640)}, v76
    v_mul_f32 v77, {f2u(1/640)}, v77
    v_fma_f32 v77, -v76, v76, v77
    v_max_f32 v77, 0, v77
    v_add_f32 v77, {f2u(1e-5)}, v77
    v_rsq_f32 v78, v77
    s_mov_b32 s79, 0xffff0000
    v_mul_f32 v79, v76, v78
    """)
    stamp("stats")
    for r0 in range(XF, XF+40, 4):
        for r in range(4): A(f"v_lshlrev_b32 v{80+2*r}, 16, v{r0+r}\nv_and_b32 v{81+2*r}, s79, v{r0+r}")
        if opt.get("pk", 1):
            if r0 == XF: A("v_mov_b32 v76, v78\nv_mov_b32 v77, v78\nv_mul_f32 v78, -1.0, v79\nv_mul_f32 v79, -1.0, v79")
            for r in range(4): A(f"v_pk_fma_f32 {vr(80+2*r,2)}, {vr(80+2*r,2)}, v[76:77], v[78:79]")
        else:
            for r in range(8): A(f"v_fma_f32 v{80+r}, v{80+r}, v78, -v79")
        for r in range(4): A(f"v_cvt_pk_bf16_f32 v{r0+r}, v{80+2*r}, v{81+2*r}")
    stamp("norm")
    ifkv("L_f1", False)
    KF = 32
    A(f"""
    v_bfe_u32 v209, v{vL}, 2, 2
    v_and_b32 v211, 3, v{vL}
    v_lshl_add_u32 v219, v210, 3, v209
    v_mul_u32_u24 v219, 40, v219
    v_lshl_add_u32 v219, v211, 3, v219
    s_mul_i32 s78, {sKH}, 12800
    s_add_u32 s78, s78, {LWKV}
    v_add_u32 v219, s78, v219
    v_and_b32 v211, 1, v210
    v_add_u32 v204, {LKX}, v{vB}
    s_waitcnt vmcnt(0)
    """)
    stamp("wkv")
    lg = Q(A, "lgkmcnt", 15)
    def rdw(st):
        for tl in range(2):
            for hf in range(2): A(f"ds_read_b64_tr_b16 {vr(KF+8*(st&7)+4*tl+2*hf,2)}, v219 offset:{st*1280+hf*160+tl*32}")
        lg.add(st, 4)
    for st in range(4): rdw(st)
    A(f"s_cmp_ge_u32 {sNB}, 4\ns_cbranch_scc1 L_g1")
    sv = (list(lg.q), lg.done)
    for isv in range(2):
        lg.q, lg.done = list(sv[0]), sv[1]
        for st in range(10):
            lg.wait(st)
            for tl in range(2):
                a_, b_ = vr(KF+8*(st&7)+4*tl,4), vr(XF+4*st,4)
                if isv: a_, b_ = b_, a_
                d = vr(ACC+4*tl, 4)
                A(f"v_mfma_f32_16x16x32_bf16 {d}, {a_}, {b_}, {'0' if st == 0 else d}")
            if st + 4 < 10: rdw(st+4)
        if not isv:
            A(f"""
            v_lshlrev_b32 v200, 8, v222
            v_lshl_add_u32 v200, v212, 4, v200
            v_lshl_add_u32 v200, v211, 3, v200
            v_add_u32 v200, {LKP}, v200
            v_lshlrev_b32 v201, 3, v212
            v_add_u32 v201, {LKP+512}, v201
            s_mov_b64 s[52:53], 0xffff
            s_branch L_g2
            L_g1:""")
        else:
            A(f"""
            v_mul_u32_u24 v200, 320, v222
            v_lshl_add_u32 v200, v212, 4, v200
            v_lshl_add_u32 v200, v211, 3, v200
            v_add_u32 v200, {LKP}, v200
            v_add_u32 v201, 256, v200
            s_mov_b32 s52, 0x000f000f
            s_mov_b32 s53, 0x000f000f""")
    A(f"""
    L_g2:
    s_cmp_eq_u32 {sKH}, 0
    s_cbranch_scc1 L_g3
    ds_write_b128 v204, {vr(ACC,4)}
    ds_write_b128 v204, {vr(ACC+4,4)} offset:1024
    ds_write_b32 v215, v216 offset:32
    s_branch L_f3
    L_g3:""")
    ldsspin(217, 219, 1, 32)
    A(f"ds_read_b128 {vr(ACC+8,4)}, v204\nds_read_b128 {vr(ACC+12,4)}, v204 offset:1024\ns_waitcnt lgkmcnt(0)")
    for r in range(8): A(f"v_add_f32 v{ACC+r}, v{ACC+r}, v{ACC+8+r}")
    for r in range(4): A(f"v_cvt_pk_bf16_f32 v{ACC+8+r}, v{ACC+2*r}, v{ACC+1+2*r}")
    A(f"""
    ds_write_b64 v200, {vr(ACC+8,2)}
    s_mov_b64 exec, s[52:53]
    ds_write_b64 v201, {vr(ACC+10,2)}
    s_mov_b32 exec_lo, -1
    s_mov_b32 exec_hi, 0xff
    ds_read_b128 v[132:135], v204 offset:{LKP-LKX}
    s_waitcnt lgkmcnt(0)
    buffer_store_dwordx4 v[132:135], v{vB}, {WS}, s50 offen sc1
    s_mov_b64 exec, -1""")
    stamp("kvst")
    A(f"""
    v_mov_b32 v130, {sT}
    v_mov_b32 v131, {sXCC}
    s_mov_b64 exec, 1
    s_waitcnt vmcnt(0)
    buffer_store_dwordx2 v[130:131], off, {WS}, s75 sc1
    s_mov_b64 exec, -1""")
    stamp("kvpub")
    A(f"L_f3:\ns_branch L_f2\nL_f1:\nv_and_b32 v217, 7, v{vL}\nv_lshlrev_b32 v217, 2, v217\nv_add_u32 v217, {LFL}, v217")
    ldsspin(217, 219, 1)
    stamp("BX")
    wqdma(); A(f"s_waitcnt vmcnt(5)\nL_f2:\ns_setprio 0\ns_cmp_lt_u32 {sW}, 4\ns_cbranch_scc1 L_f4\ns_setprio {opt.get('qprio', 1)}\nL_f4:")
    vm = Q(A, "vmcnt", 63)
    def kvdma(src_, dst, add, j0, j1, tag):
        for j in range(j0, j1):
            if j & 3 == 0 or j == j0: A(f"s_add_u32 m0, {dst}, {add + 1024*(j & ~3)}")
            A(f"buffer_load_dwordx4 v{vB}, {WS}, {src_} offen offset:{1024*(j&3)} {opt.get('kvsc', 'sc1')} lds"); vm.add(tag)
            if j & 3 == 3: A(f"s_add_u32 {src_}, {src_}, 4096")
    def stage1():
        kvdma("s60", "s64", 20480, 0, 5, "s1")
        A(f"s_mov_b64 exec, 0x1f\nbuffer_load_dword v254, v253, {WS}, s62 offen {opt.get('tsc', 'sc1')}\ns_mov_b64 exec, -1"); vm.add("t")
    def rdq(st, ct):
        b_, o = (218, st*10240) if st < 6 else (205, (st-6)*10240)
        for hf in range(2): A(f"ds_read_b64_tr_b16 {vr(RING+20*(st&1)+4*ct+2*hf,2)}, v{b_} offset:{o+hf*2560+ct*32}")
    for grp, (s0, s1) in enumerate(((0,3),(3,6),(6,10))):
        A("s_barrier")
        stamp(f"q{grp}")
        for ct in range(5): rdq(s0, ct)
        for st in range(s0, s1):
            for ct in range(5):
                more = st+1 < s1
                if more: rdq(st+1, ct)
                A(f"s_waitcnt lgkmcnt({10 if more else 2*(4-ct)})")
                d = vr(ACC+4*ct,4)
                A(f"v_mfma_f32_16x16x32_bf16 {d}, {vr(RING+20*(st&1)+4*ct,4)}, {vr(XF+4*st,4)}, {'0' if st == 0 else d}")
            if st == opt.get("r2st", 0): wqdma()
            if st == opt.get("flst", 4):
                A(f"s_cmp_lt_u32 {sW}, 4\ns_cbranch_scc1 L_h1\nbuffer_load_dwordx2 v[234:235], v248, {WS}, 0 offen sc1\nL_h1:")
            if st == opt.get("ckst", 7):
                A(f"s_cmp_lt_u32 {sW}, 4\ns_cbranch_scc1 L_k0\ns_waitcnt vmcnt(0)\nv_cmp_ne_u32 vcc, {sT}, v234\ns_cbranch_vccnz L_k1")
                kvdma("s63", "s64", 0, 0, 5, "s0")
                A(f"buffer_load_dword v236, v232, {WS}, 0 offen sc1\ns_mov_b32 s54, 1"); tgu(0)
                A("L_k0:\nL_k1:")
            if st == opt.get("xrst", 6):
                A(f"""s_cmp_ge_u32 {sW}, 4
                s_cbranch_scc1 L_k5
                buffer_load_dwordx4 {vr(XR,4)}, v250, {X}, s63 offen
                buffer_load_dwordx2 {vr(XR+4,2)}, v251, {X}, s63 offen offset:64
                buffer_load_dwordx4 {vr(XR+6,4)}, v250, {X}, s63 offen offset:96
                buffer_load_dwordx2 v[254:255], v248, {WS}, 0 offen sc1
                L_k5:""")
        if grp == 0: A("s_waitcnt vmcnt(5)")
        if grp == 1: A(f"s_waitcnt vmcnt(1)\ns_cmp_ge_u32 {sW}, 4\ns_cbranch_scc1 L_k2\ns_waitcnt vmcnt(0)\nL_k2:")
    stamp("q3")
    for ct in range(5):
        A(f"ds_write_b128 v206, {vr(ACC+4*ct,4)} offset:{64*ct}")
    A("s_waitcnt lgkmcnt(0)\ns_barrier")
    stamp("BQ")
    A(f"s_cmp_ge_u32 {sW}, 4\ns_cbranch_scc1 L_loader")

    A("s_setprio 1")
    for q in range(2):
        for p in range(2):
            o = 21504*p + 32*336*q; r = 144 + 24*q + 12*p
            A(f"ds_read_b128 {vr(r,4)}, v224 offset:{o}\nds_read_b128 {vr(r+4,4)}, v224 offset:{o+16}\nds_read_b128 {vr(r+8,4)}, v223 offset:{o+64}")
    A(f"s_mov_b32 s48, 0\ns_mov_b32 s49, -1\nv_mov_b32 v192, {f2u(20**-0.5 * math.log2(math.e))}\nv_cndmask_b32 v194, v192, 0, s[48:49]\nv_mov_b32 v193, v192\nv_mov_b32 v195, v194")
    for q in range(2):
        r0 = 144 + 24*q
        A(f"s_waitcnt lgkmcnt({6-6*q})")
        for r in range(0, 12, 2): A(f"v_pk_add_f32 {vr(r0+r,2)}, {vr(r0+r,2)}, {vr(r0+12+r,2)}")
        for r in range(0, 12, 2): A(f"v_pk_mul_f32 {vr(r0+r,2)}, {vr(r0+r,2)}, {vr(192 if r < 8 else 194,2)}")
        for r in range(6): A(f"v_cvt_pk_bf16_f32 v{Qm[q]+r}, v{r0+2*r}, v{r0+1+2*r}")
    stamp("qrdy")
    A("s_barrier")
    stamp("slot0")
    cur = {"K": 0, "V": 0}
    lg = Q(A, "lgkmcnt", 15)
    def rebase(key, reg, off, span):
        if off + span - cur[key] > 65535:
            A(f"v_add_u32 v{reg}, {off - cur[key]}, v{reg}"); cur[key] = off
        return off - cur[key]
    def rdK(T):
        o = rebase("K", aK, 2560*T, 0); A(f"ds_read_b128 {vr(KMb[T&1],4)}, v{aK} offset:{o}"); lg.add(("K", T))
    tcur = [0]
    def rdT(T):
        if 5*(T+1) - tcur[0] > 255:
            A(f"v_add_u32 v{aT}, {512*(5*T - tcur[0])}, v{aT}"); tcur[0] = 5*T
        A(f"ds_read2st64_b64 {vr(KTb[(T>>1)&1],4)}, v{aT} offset0:{5*T-tcur[0]} offset1:{5*T+5-tcur[0]}"); lg.add(("T", T))
    def rdV(T):
        o = rebase("V", aV, 2560*T, 3840)
        A("s_mov_b64 exec, s[76:77]")
        for i in range(4): A(f"ds_read_b128 {vr(Vb[(T>>1)&1]+4*i,4)}, v{aV} offset:{o+1280*i}")
        A("s_mov_b64 exec, -1"); lg.add(("V", T), 4)
    def m1(u):
        T, q = u >> 1, u & 1; lg.wait(("K", T))
        A(f"v_mfma_f32_32x32x16_bf16 {vr(S3[u%3],16)}, {vr(KMb[T&1],4)}, {vr(Qm[q],4)}, 0")
    def m2(u):
        T, q = u >> 1, u & 1; lg.wait(("T", T & ~1)); S = vr(S3[u%3],16)
        if opt.get("x") != "nom2": A(f"v_mfma_f32_32x32x8_bf16 {S}, {vr(KTb[(T>>1)&1]+2*(T&1),2)}, {vr(Qm[q]+4,2)}, {S}")
    def sm(u, h):
        T, q = u >> 1, u & 1; lg.wait(("V", T & ~1))
        if opt.get("x") == "nosm": return
        if opt.get("x") == "dense":
            b = S3[u%3]+8*h
            for r in range(4): A(f"v_cvt_pk_bf16_f32 v{b+r}, v{b+2*r}, v{b+2*r+1}")
            A(f"s_nop 0\nv_mfma_f32_32x32x16_bf16 {vr(O_[q],16)}, {vr(Vb[(T>>1)&1]+8*(T&1)+4*h,4)}, {vr(b,4)}, {vr(O_[q],16)}"); return
        A(f"v_smfmac_f32_32x32x32_bf16 {vr(O_[q],16)}, {vr(Vb[(T>>1)&1]+8*(T&1)+4*h,4)}, {vr(S3[u%3]+8*h,8)}, v{vIDX}")
    def EX(u, a):
        for r in range(a, a+4): A(f"v_exp_f32 v{S3[u%3]+r}, v{S3[u%3]+r}" if opt.get("x") != "noexp" else "s_nop 1")
    BARS = (12, 28, opt.get("bar2", 94))
    rdK(0); rdT(0); rdK(1); rdV(0)
    m1(0); m2(0)
    for u in range(128):
        if u % 2 == 0: stamp(f"a{u//2}")
        T = u >> 1
        if u == 28: A(f"""
    s_waitcnt vmcnt(0)
    v_cmp_ne_u32 vcc, {sT}, v254
    s_cbranch_vccz L_xok
    buffer_load_dword v255, v248, {WS}, 0 offen offset:4 sc1
    s_waitcnt vmcnt(0)
    L_xok:
    v_cmp_ne_u32 vcc, {sXCC}, v255
    s_cmp_eq_u64 vcc, 0
    s_cselect_b32 {sFAST}, {0 if force_slow else 1}, 0
""")
        if u in BARS: A("s_barrier")
        if u < 127: m1(u+1)
        if u % 2 == 0 and T + 2 < 64: rdK(T+2)
        EX(u, 0)
        if u < 127: m2(u+1)
        if u % 4 == 0 and T + 2 < 64: rdT(T+2)
        EX(u, 4)
        if u > 0: sm(u-1, 0)
        EX(u, 8)
        if u > 0: sm(u-1, 1)
        if u % 4 == 0 and T + 2 < 64: rdV(T+2)
        EX(u, 12)
    sm(127, 0); sm(127, 1)
    A("s_barrier")
    stamp("attn")
    A(f"""
    L_fbret:
    v_cndmask_b32 v144, v12, v8, s[48:49]
    v_cndmask_b32 v146, v28, v24, s[48:49]
    v_rcp_f32 v148, v144
    v_rcp_f32 v150, v146
    v_mov_b32 v149, v148
    v_mov_b32 v151, v150
    """)
    for q in range(2):
        for r in range(0, 12, 2): A(f"v_pk_mul_f32 {vr(O_[q]+r,2)}, {vr(O_[q]+r,2)}, {vr(148+2*q,2)}")
        for r in range(6): A(f"v_cvt_pk_bf16_f32 v{32+6*q+r}, v{O_[q]+2*r}, v{O_[q]+2*r+1}")
    stores([f"buffer_store_dwordx4 v[32:35], v227, {WS}, s59 offen", f"buffer_store_dwordx4 v[38:41], v227, {WS}, s61 offen", "s_mov_b32 exec_hi, 0",
            f"buffer_store_dwordx2 v[36:37], v226, {WS}, s58 offen", f"buffer_store_dwordx2 v[42:43], v226, {WS}, s60 offen"])
    A("s_mov_b32 exec_hi, -1")
    stamp("opre")
    for r in range(0, 12, 2): A(f"v_pk_add_f32 {vr(r,2)}, {vr(r,2)}, {vr(16+r,2)}")
    A(f"""
    v_min_f32 v148, v144, v146
    v_max_f32 v149, v144, v146
    v_pk_add_f32 v[0:1], v[0:1], v[2:3]
    v_pk_add_f32 v[4:5], v[4:5], v[6:7]
    v_pk_add_f32 v[8:9], v[8:9], v[10:11]
    v_cmp_nle_f32 s[50:51], s66, v148
    v_pk_add_f32 v[0:1], v[0:1], v[4:5]
    v_cmp_nge_f32 s[52:53], s67, v149
    v_pk_add_f32 v[0:1], v[0:1], v[8:9]
    v_add_f32 v144, v144, v146
    v_add_f32 v0, v0, v1
    v_add_f32 v0, |v0|, v144
    s_or_b64 s[50:51], s[50:51], s[52:53]
    v_cmp_nge_f32 vcc, {f2u(2.0**126)}, v0
    s_or_b64 s[50:51], s[50:51], vcc
    s_cmp_{'eq' if force_fb else 'lg'}_u64 s[50:51], 0
    s_cselect_b32 s65, 1, 0
    s_cmp_gt_u32 s65, {1 if opt.get("x") else "s64"}
    s_cbranch_scc1 L_fallback
    """)
    AC3, R3 = 80, (100, 120, 140, 200)
    lg = Q(A, "lgkmcnt", 15); vm = Q(A, "vmcnt", 63)
    def rd3(st, ct):
        b, o = (220, st*5120) if st < 10 else (225, (st-10)*5120)
        for hf in range(2): A(f"ds_read_b64_tr_b16 {vr(R3[st&3]+4*ct+2*hf,2)}, v{b} offset:{o+hf*2560+ct*32}")
        lg.add((st, ct), 2)
    for st in (19, 18):
        for ct in range(5): rd3(st, ct)
    flag("s56")
    stamp("oflag")
    for e in range(opt.get("nw1", 2)):
        for j in range(5): A(f"buffer_load_dwordx4 {vr(160+20*e+4*j,4)}, v{WOFF+j}, {WD}, s55 offen")
        A("s_add_u32 s55, s55, 40960")
    for st in (17, 16):
        for ct in range(5): rd3(st, ct)
    A(f"""
    v_permlane16_swap_b32 v{XR}, v{XR+2}
    v_permlane16_swap_b32 v{XR+1}, v{XR+3}
    v_permlane16_swap_b32 v{XR+6}, v{XR+8}
    v_permlane16_swap_b32 v{XR+7}, v{XR+9}
    s_mov_b32 s79, 0xffff0000
    v_and_b32 v221, 15, v{vL}
    v_lshrrev_b32 v222, 5, v{vL}
    v_bfe_u32 v223, v{vL}, 4, 1
    v_lshlrev_b32 v228, 4, v221
    v_lshl_add_u32 v227, v222, 9, v228
    v_lshl_add_u32 v226, v223, 10, v227
    v_lshl_add_u32 v227, v223, 3, v227
    s_lshl_b32 s56, {sB}, 1
    s_add_u32 s56, s56, {sTT}
    s_lshl_b32 s61, {sKH}, 8
    s_mul_i32 s60, s56, 40960
    s_add_u32 s60, s60, s61
    s_mul_i32 s58, {sNB}, 5120
    s_add_u32 s60, s60, s58
    s_add_u32 s60, s60, {HB}
    s_lshl_b32 s58, s56, 11
    s_add_u32 s58, s58, s61
    s_lshr_b32 s59, {sNB}, 1
    s_lshl_b32 s59, s59, 9
    s_add_u32 s58, s58, s59
    s_and_b32 s59, {sNB}, 1
    s_lshl_b32 s59, s59, 3
    s_add_u32 s58, s58, s59
    s_add_u32 s58, s58, {WS_HS}
    s_lshl_b32 s56, s56, 7
    s_lshl_b32 s59, {sNB}, 3
    s_add_u32 s56, s56, s59
    s_lshl_b32 s59, {sKH}, 2
    s_add_u32 s56, s56, s59
    s_add_u32 s56, s56, {WS_F3}
    """)
    for r in range(10): A(f"v_lshlrev_b32 v{AC3+2*r}, 16, v{XR+r}\nv_and_b32 v{AC3+2*r+1}, s79, v{XR+r}")
    poll(229, 223, "s62")
    stamp("S2")
    def ld3(st):
        A(f"buffer_load_dwordx4 {vr(4*st,4)}, v{vB}, {WS}, s57 offen offset:{1024*(st&3)} sc1"); vm.add(st)
        if st & 3 == 0 and st > 0: A("s_sub_u32 s57, s57, 4096")
    NI3, DEP3 = opt.get("p3init", 8), opt.get("p3dep", 12); n3 = [19 - NI3]
    for st in range(19, 19-NI3, -1): ld3(st)
    lg.all()
    stamp("p3i")
    for st in range(19, -1, -1):
        vm.wait(st)
        stamp(f"p3s{st}")
        for ct in range(5):
            lg.wait((st, ct)); d = vr(AC3+4*ct,4)
            if st == 8 and ct == 4: A("s_barrier")
            A(f"v_mfma_f32_16x16x32_bf16 {d}, {vr(R3[st&3]+4*ct,4)}, {vr(4*st,4)}, {d}")
            if ct in (0, 2) and n3[0] >= max(0, st - DEP3): ld3(n3[0]); n3[0] -= 1
            if st - 4 >= 0: rd3(st-4, ct)
    stamp("p3mm")
    for r in range(10): A(f"v_cvt_pk_bf16_f32 v{16+r}, v{AC3+2*r}, v{AC3+2*r+1}")
    A(f"""
    v_permlane16_swap_b32 v16, v18
    v_permlane16_swap_b32 v17, v19
    v_permlane16_swap_b32 v22, v24
    v_permlane16_swap_b32 v23, v25""")
    stores([f"buffer_store_dwordx4 v[16:19], v226, {HSRD}, s60 offen",
            f"buffer_store_dwordx2 v[20:21], v227, {HSRD}, s60 offen offset:2048",
            f"buffer_store_dwordx4 v[22:25], v226, {HSRD}, s60 offen offset:3072"])
    A(f"v_pk_add_f32 v[12:13], {vr(AC3,2)}, {vr(AC3+2,2)}\nv_pk_mul_f32 v[14:15], {vr(AC3,2)}, {vr(AC3,2)}")
    for r in range(1, 10):
        if r > 1: A(f"v_pk_add_f32 v[12:13], v[12:13], {vr(AC3+2*r,2)}")
        A(f"v_pk_fma_f32 v[14:15], {vr(AC3+2*r,2)}, {vr(AC3+2*r,2)}, v[14:15]")
    A(f"""
    v_add_f32 v12, v12, v13
    v_add_f32 v13, v14, v15
    v_mov_b32 v14, v12
    v_mov_b32 v15, v13
    v_permlane16_swap_b32 v12, v14
    v_permlane16_swap_b32 v13, v15
    v_pk_add_f32 v[12:13], v[12:13], v[14:15]
    v_mov_b32 v14, v12
    v_mov_b32 v15, v13
    v_permlane32_swap_b32 v12, v14
    v_permlane32_swap_b32 v13, v15
    v_pk_add_f32 v[12:13], v[12:13], v[14:15]
    s_mov_b64 exec, 0xffff
    """)
    stores([f"buffer_store_dwordx2 v[12:13], v228, {WS}, s58 offen"])
    A("s_mov_b64 exec, -1")
    stamp("p3pre")
    for r in range(10): A(f"v_cvt_pk_bf16_f32 v{XR+r}, v{AC3+2*r}, v{AC3+2*r+1}")
    p4pro()
    flag("s56")
    stamp("hpub")
    A("s_barrier")
    def ldma():
        for j in range(5): A(f"s_add_u32 m0, s60, {1024*j}\nbuffer_load_dwordx4 v{WOFF+j}, {WD}, s55 offen lds")
        A("s_add_u32 s55, s55, 40960")
    ldma()
    A(f"v_add_u32 v222, s60, v{vB}\nv_add_u32 v223, s60, v220")
    A("s_branch L_p4")

    A("L_loader:\ns_setprio 2")
    def touch(srd_, soff, nl, add=0, dst=254):
        A(f"s_add_u32 s78, {soff}, {add}\ns_mov_b32 exec_hi, {(1 << (nl-32)) - 1}\nbuffer_load_dword v{dst}, v253, {srd_}, s78 offen\ns_mov_b32 exec_hi, -1"); vm.add("t")
    A("s_cmp_eq_u32 s54, 1\ns_cbranch_scc1 L_l0")
    poll(248, 234, x2=True)
    kvdma("s63", "s64", 0, 0, 5, "s0")
    A(f"buffer_load_dword v236, v232, {WS}, 0 offen sc1"); tgu(0)
    A("L_l0:\ns_waitcnt vmcnt(2)\ns_barrier")
    stamp("slot0")
    A(f"""
    s_waitcnt vmcnt(1)
    v_cmp_ne_u32 vcc, {sT}, v236
    s_cbranch_vccz L_l1""")
    poll(232, 236)
    A("L_l1:")
    vm.q, vm.done = [], 0
    stage1()
    A(f"""
    L_l2:
    v_cmp_ne_u32 vcc, {sXCC}, v235
    s_nop 1
    s_cmp_eq_u64 vcc, 0
    s_cselect_b32 {sFAST}, {0 if force_slow else 1}, 0""")
    A(f"buffer_load_dword v237, v233, {WS}, 0 offen sc1"); vm.add("fb")
    NB0 = opt.get("nb0", 6)
    kvdma("s61", "s56", 0, 0, NB0, "s2")
    vm.wait("fb")
    stamp("l_s1")
    A(f"v_cmp_ne_u32 vcc, {sT}, v237\ns_mov_b64 exec, 7\ns_cbranch_vccnz L_l4\nbuffer_load_dword v254, v253, {WS}, s58 offen {opt.get('tsc', 'sc1')}\nL_l4:\ns_mov_b64 exec, -1")
    NB1 = opt.get("nb1", 16)
    kvdma("s61", "s56", 0, NB0, NB1, "s2")
    stamp("l_b1"); A("s_barrier"); stamp("l_b1x")
    kvdma("s61", "s56", 0, NB1, 20, "s2")
    A(f"v_cmp_ne_u32 vcc, {sT}, v237\ns_cbranch_vccz L_l3")
    poll(233, 237)
    A("L_l3:"); stamp("l_f6")
    kvdma("s59", "s57", 0, 0, 10, "s6")
    def lgu(s):
        for p in (2*s, 2*s+1):
            A(f"s_mov_b32 s78, {p*2*98304}")
            for i in range(3): A(f"buffer_load_dwordx4 {vr(12*p+4*i,4)}, v{GOFF+i}, {GU}, s78 offen")
        vm.add(("g", s), 6)
    def wdma(p):
        for j in range(5): A(f"s_add_u32 m0, s64, {1024*j}\nbuffer_load_dwordx4 v{WOFF+j}, {WD}, s55 offen lds")
        A("s_add_u32 s55, s55, 40960"); vm.add(("w", p), 5)
    def wrd(p):
        vm.wait(("w", p)); tr5(120+20*p, 0, 0, 249); A("s_waitcnt lgkmcnt(0)")
    def ctouch(): A("s_mov_b64 exec, 15\nglobal_load_dword v254, v255, s[80:81]\ns_mov_b64 exec, -1"); vm.add("t")
    def twd(ps):
        for p in ps: A(f"s_add_u32 s78, s74, {40960*p}\ns_mov_b64 exec, 0x3ff\nbuffer_load_dword v254, v253, {WD}, s78 offen\ns_mov_b64 exec, -1"); vm.add("t")
    lgu(0); twd([0]); tgu(1, vm); twd([1])
    vm.wait("s6"); stamp("l_kv"); A("s_barrier")
    for p in range(4):
        wdma(p)
        if p < 3: tgu(p+2, vm)
        else: touch(WO, "s67", 50, 0)
        twd([p+2])
        if p in opt.get("ct", (1, 3)): ctouch()
        lgu(p+1)
        wrd(p); stamp(f"l_r{p}")
    stamp("l_gu")
    wdma(4); wrd(4)
    A(f"""
    s_cmp_eq_u32 {sFAST}, 0
    s_cbranch_scc1 L_npt
    s_lshl_b32 s78, {sXCD}, 5
    s_add_u32 s78, s78, {sIDX}
    s_lshl_b32 s78, s78, 2
    s_add_u32 s78, s78, {sQ}
    s_lshr_b32 s79, s78, 3
    s_mul_i32 s79, s79, 49152
    s_add_u32 s79, s79, {WS_HP}
    s_and_b32 s76, s78, 7
    s_mul_i32 s77, s76, 3584
    s_mul_i32 s76, s76, 2560
    s_add_u32 s76, s76, s79
    s_add_u32 s79, s79, s77
    s_add_u32 s79, s79, 20480
    v_add_u32 v248, s79, v253
    s_lshl_b32 s79, s78, 7
    s_add_u32 s79, s79, {WS_HS}
    v_writelane_b32 v248, s79, 28
    s_mul_i32 s78, s78, 2560
    s_add_u32 s77, s78, {HB}
    s_add_u32 s78, s78, {WS_O}
    s_mov_b64 exec, 0xfffff
    buffer_load_dword v254, v253, {WS}, s76 offen sc1""")
    if not ALIAS: A(f"buffer_load_dword v254, v253, {WS}, s78 offen sc1")
    HO = opt.get("ho", 1)
    t1 = f"s_mov_b64 exec, 0xfffff\nbuffer_load_dword v247, v253, {HSRD}, s77 offen sc1"
    t2 = f"s_mov_b64 exec, 0x1fffffff\nbuffer_load_dword v247, v248, {WS}, 0 offen sc1"
    if HO < 2: A(t1)
    if HO < 1: A(t2)
    A(f"s_mov_b64 exec, -1\nL_npt:")
    vm.q, vm.done = [], 0
    A(f"s_mul_i32 s57, {sQ}, 40960")
    stamp("l_wd")
    A("s_barrier")
    def wo(p):
        A(f"s_add_u32 s78, s57, {4*40960*p}")
        for j in range(5): A(f"s_add_u32 m0, s64, {20480*p+1024*j}\nbuffer_load_dwordx4 v{WOFF+j}, {WO}, s78 offen lds")
        vm.add("wo", 5)
    wo(4); wo(3)
    wdma(5); wo(2); wrd(5); wo(1); wo(0)
    if 5 in opt.get("ct", (5,)): A("s_mov_b64 exec, 15\nglobal_load_dword v247, v255, s[80:81]\ns_mov_b64 exec, -1"); vm.add("t")
    touch(WD, "s66", 60, 983040, 247)
    GI = 249
    A(f"s_cmp_eq_u32 {sFAST}, 0\ns_cbranch_scc1 L_npu")
    if HO >= 2: A(t1)
    if HO >= 1: A(t2)
    A(f"s_mov_b64 exec, -1\ns_waitcnt vmcnt({2+HO})\ns_branch L_npv\nL_npu:\ns_waitcnt vmcnt(2)\nL_npv:")
    stamp("l_wo")
    A("s_setprio 0\ns_barrier")
    A(f"""
    s_mul_i32 s78, {sKH}, 6144
    s_lshr_b32 s79, {sQ}, 1
    s_mul_i32 s79, s79, 384
    s_add_u32 s78, s78, s79
    s_add_u32 s78, s78, {LGU+61440}""")
    for i in range(3):
        A(f"""
        v_and_b32 v248, 31, v{vL}
        v_add_u32 v248, {32*i}, v248
        v_mul_u32_u24 v252, 10923, v248
        v_lshrrev_b32 v252, 18, v252
        v_mul_u32_u24 v252, 384, v252
        v_lshl_add_u32 v252, v248, 4, v252
        v_lshrrev_b32 v248, 5, v{vL}
        v_mul_u32_u24 v248, 3072, v248
        v_add3_u32 v{GI+i}, v248, v252, s78""")
    for p in (9, 8, 7, 6):
        for i in range(3): A(f"ds_write_b128 v{GI+i}, {vr(12*p+4*i,4)} offset:{12288*(p-5)}")
    SEL, CSA = 252, 108
    A(f"""
    v_bfe_u32 v248, v{vL}, 3, 1
    v_bfe_u32 v255, v{vL}, 4, 1
    v_cmp_eq_u32 vcc, v248, v255
    v_and_b32 v248, 1, v{vL}
    v_lshlrev_b32 v248, 4, v248
    v_mov_b32 v{SEL}, 0x3f80
    v_lshlrev_b32 v248, v248, v{SEL}
    v_bfe_u32 v255, v{vL}, 1, 2
    v_cndmask_b32 v248, 0, v248, vcc""")
    for r in range(4): A(f"v_cmp_eq_u32 vcc, {r}, v255\nv_cndmask_b32 v{SEL+r}, 0, v248, vcc")
    A("s_waitcnt lgkmcnt(0)")
    for p in range(9, -1, -1):
        for i in range(3):
            d = vr(CSA+4*i,4)
            A(f"v_mfma_f32_16x16x32_bf16 {d}, {vr(SEL,4)}, {vr(12*p+4*i,4)}, {'0' if p == 9 else d}")
    A(f"""
    s_mul_i32 s78, {sQ}, 3072
    s_add_u32 s78, s78, {LGU+61440}
    v_lshlrev_b32 v100, 2, v{vL}
    v_add_u32 v101, s78, v100
    v_and_b32 v248, 15, v{vL}
    v_lshrrev_b32 v102, 5, v{vL}
    v_lshl_add_u32 v248, v102, 4, v248
    v_and_b32 v102, 16, v{vL}
    v_lshl_add_u32 v248, v248, 5, v102
    v_add_u32 v248, s78, v248
    s_lshl_b32 s79, s2, 2
    s_add_u32 s79, s79, {sQ}
    s_lshl_b32 s79, s79, 8
    s_add_u32 s79, s79, {WS_CS}""")
    for i in range(3): A(f"ds_write_b128 v248, {vr(CSA+4*i,4)} offset:{1024*i}")
    for r in range(16): A(f"ds_read_b32 v{84+r}, v101 offset:{192*r}")
    for i in range(3): A(f"v_subrev_u32 v{GI+i}, 61440, v{GI+i}")
    A("s_waitcnt lgkmcnt(0)")
    for s in (8, 4, 2, 1):
        for r in range(s): A(f"v_add_f32 v{84+r}, v{84+r}, v{84+s+r}")
    A(f"buffer_store_dword v84, v100, {WS}, s79 offen\ns_waitcnt vmcnt(0)\nbuffer_load_dword v254, v100, {WS}, s79 offen sc1")
    p4pro()
    stamp("l_g1")
    A("s_barrier")
    for p in range(6):
        for i in range(3): A(f"ds_write_b128 v{GI+i}, {vr(12*p+4*i,4)} offset:{12288*p}")
    A("s_waitcnt lgkmcnt(0)\ns_setprio 2")
    stamp("l_g0")
    A("s_barrier")

    A("L_p4:")
    stamp("GB")
    lg = Q(A, "lgkmcnt", 15); vm = Q(A, "vmcnt", 63)
    def rdA4(st, i):
        if st % 20 == 0 and i == 0: A(f"v_add_u32 v{aA}, {61440*(st//20)}, v{aA0}")
        for hf in range(2): A(f"ds_read_b64_tr_b16 {vr(AR4+12*(st%NA4)+4*i+2*hf,2)}, v{aA} offset:{(st%20)*3072+hf*768+i*32}")
        lg.add((st, i), 2)
    for st in range(NA4-1):
        for i in range(3): rdA4(st, i)
    poll(115, 114, "s57")
    stamp("S3")
    def ldB4(st):
        A(f"buffer_load_dwordx4 {vr(BR4+4*(st%NB4),4)}, v{vB}, {HSRD}, s59 offen offset:{1024*(st&3)} sc1"); vm.add(st)
        if st & 3 == 3: A("s_add_u32 s59, s59, 4096")
    NI, DEP = opt.get("p4init", 3), opt.get("p4dep", 6)
    for st in range(NI): ldB4(st)
    nld = NI
    stamp("p4issued")
    SST, SDM = 8, 40 - DEP
    for st in range(40):
        vm.wait(st)
        stamp(f"p4s{st}")
        for i in range(3):
            if st + NA4 - 1 < 40: rdA4(st+NA4-1, i)
            lg.wait((st, i)); d = vr(AC4+16*i,16)
            A(f"v_mfma_f32_32x32x16_bf16 {d}, {vr(AR4+12*(st%NA4)+4*i,4)}, {vr(BR4+4*(st%NB4),4)}, {'0' if st == 0 else d}")
            if i < 2 and nld < min(40, st + 1 + DEP): ldB4(nld); nld += 1
        if st == 2: A(f"s_mul_i32 s65, {sKH}, 49152\nv_add_u32 v251, s65, v{vB}\ns_sub_u32 s65, 49152, s65\nv_add_u32 v252, s65, v{vB}")
        if st == 3: csaddr(250, 247)
        if st == 4:
            A(f"s_lshl_b32 s78, s2, 10\ns_add_u32 s78, s78, {WS_CS}")
            for i in range(3): A(f"buffer_load_dword v{253+i}, v250, {WS}, s78 offen offset:{64*i} sc1"); vm.add("cs")
        if st in (16, 24):
            vm.wait(("st", st))
            if st == 16: A(f"v_add_f32 v{vNM}, v112, v114\nv_add_f32 v{vVAR}, v113, v115")
            else: A(f"v_add_f32 v112, v112, v114\nv_add_f32 v113, v113, v115\nv_add_f32 v{vNM}, v{vNM}, v112\nv_add_f32 v{vVAR}, v{vVAR}, v113")
        if st in (8, 16): A(f"buffer_load_dwordx4 v[112:115], v{vST}, {WS}, s58 offen offset:{64*(st-8)} sc1"); vm.add(("st", st+8))
        if SDM <= st < SDM + 5:
            j = st - SDM
            A(f"s_add_u32 m0, s60, {1024*j}\nbuffer_load_dwordx4 v{WOFF+j}, {WD}, s61 offen lds"); vm.add("dma")
        LS = opt.get("ls", (5, 9, 17, 21, 25))
        if st in LS:
            A(f"s_cmp_ge_u32 {sW}, 4\ns_cbranch_scc1 L_ls{st}")
            k = LS.index(st)
            if k == 1: ldma()
            else: tr5((120, 0, 140, 160, 180)[k], k > 2, 222, 223)
            A(f"L_ls{st}:")
        c1 = -2*math.sqrt(2/math.pi)*math.log2(math.e); c2 = c1*0.044715
        if st == 28: A(f"""
            v_mov_b32 v114, v{vNM}
            v_mov_b32 v115, v{vVAR}
            v_permlane32_swap_b32 v{vNM}, v114
            v_permlane32_swap_b32 v{vVAR}, v115
            v_add_f32 v{vNM}, v{vNM}, v114
            v_add_f32 v{vVAR}, v{vVAR}, v115
            v_mul_f32 v{vNM}, {f2u(-1/640)}, v{vNM}
            v_mul_f32 v{vVAR}, {f2u(1/640)}, v{vVAR}""")
        if st == 29: A(f"""
            v_fma_f32 v{vVAR}, -v{vNM}, v{vNM}, v{vVAR}
            v_max_f32 v{vVAR}, 0, v{vVAR}
            v_add_f32 v{vVAR}, {f2u(1e-5)}, v{vVAR}
            v_rsq_f32 v{vRS}, v{vVAR}
            v_cvt_pk_bf16_f32 v114, v{vNM}, v{vNM}
            v_and_b32 v115, 0xffff0000, v114
            v_sub_f32 v115, v{vNM}, v115""")
        if st == 30: A(f"""
            v_mul_f32 v119, {f2u(c1)}, v{vRS}
            v_mul_f32 v116, v{vRS}, v{vRS}
            v_mul_f32 v116, v116, v{vRS}
            v_mul_f32 v116, {f2u(c2)}, v116
            s_mul_i32 s58, s68, 98304
            s_mul_i32 s78, {sIDX}, 1536
            s_add_u32 s58, s58, s78
            s_add_u32 s58, s58, {WS_HP}
            s_lshl_b32 s56, s68, 7
            s_lshl_b32 s78, {sIDX}, 2
            s_add_u32 s56, s56, s78
            s_add_u32 s56, s56, {WS_F4}""")
        if st == 31: A(f"""
            v_and_b32 v112, 15, v{vL}
            v_bfe_u32 v113, v{vL}, 4, 1
            v_lshrrev_b32 v114, 5, v{vL}
            v_mul_u32_u24 v113, 49152, v113
            v_lshl_add_u32 v113, v112, 4, v113
            v_lshl_add_u32 v113, v114, 8, v113""")
        if st == 35: A(f"v_cvt_pk_bf16_f32 v104, v{vNM}, v115\nv_mov_b32 v106, 0\nv_mov_b32 v107, 0\nv_mov_b32 v105, v104")
        if st == 38:
            A("v_mov_b32 v117, v113")
            for i in range(3):
                A(f"""v_cvt_pk_bf16_f32 v{60+4*i}, v{253+i}, v{253+i}
                v_and_b32 v114, 0xffff0000, v{60+4*i}
                v_sub_f32 v114, v{253+i}, v114
                v_cvt_pk_bf16_f32 v{61+4*i}, v114, v114
                v_mov_b32 v{62+4*i}, 0
                v_mov_b32 v{63+4*i}, 0""")
        if st == opt.get("f4st", 39): A(f"buffer_load_dword v112, v{vF4}, {WS}, s62 offen sc1"); vm.add("f4")
    assert nld == 40
    stamp("p4mm")
    F0, AC5 = 0, 20
    BL = {1: [[60+8*u for u in range(7)]]*2, 0: [[92, 100, 108, 200, 208], [60, 68, 76, 84, 216]]}
    WR = {1: [F0] + [120+20*u for u in range(6)], 0: [F0, 160, 180, 120, 140]}
    def ldB5(role, ps, vmq):
        if ps == 0: A(f"s_mul_i32 s65, {sQ}, {(6, 4)[1-role]*1024}\ns_add_u32 s65, s65, s63" + ("" if role else f"\ns_add_u32 s65, s65, {24*1024}"))
        else: A(f"s_add_u32 s64, s64, 98304\ns_add_u32 s65, s65, {98304 - (4096 if role else 0)}")
        for u in range(len(WR[role])):
            if u == 5: A("s_add_u32 s65, s65, 4096")
            for tt in range(2):
                A(f"buffer_load_dwordx4 {vr(BL[role][ps][u]+4*tt,4)}, v{251+tt}, {WS}, {'s64' if u == 0 else 's65'} offen offset:{1024*((u-1)&3) if u else 0} sc1")
            vmq.add((ps, u), 2)
    for i in range(3):
        d = vr(AC4+16*i,16)
        A(f"v_mfma_f32_32x32x16_bf16 {d}, {vr(60+4*i,4)}, v[104:107], {d}")
    A(f"s_cmp_lt_u32 {sW}, 4\ns_cbranch_scc1 L_ep\ns_setprio 0\nL_ep:")
    def f4chk():
        lx_, ly_ = L("x"), L("y")
        A(f"s_cmp_ge_u32 {sW}, 4\ns_cbranch_scc1 {lx_}")
        vm.wait("f4")
        A(f"v_cmp_ne_u32 vcc, {sT}, v112\ns_cbranch_vccz {ly_}")
        poll(vF4, 112, "s62")
        A(f"{ly_}:")
        ldB5(0, 0, Q(A, "vmcnt", 63))
        A(f"{lx_}:")
    T0 = 72
    for i in range(3):
        g, u, t = AC4+16*i, AC4+16*i+8, T0
        if i == opt.get("f4i", 1): f4chk()
        for r in range(8): A(f"v_mul_f32 v{t+r}, v{g+r}, v{g+r}")
        for r in range(8): A(f"v_fma_f32 v{t+r}, v{t+r}, v116, v119")
        for r in range(8): A(f"v_mul_f32 v{t+r}, v{t+r}, v{g+r}")
        for r in range(8): A(f"v_exp_f32 v{t+r}, v{t+r}")
        for r in range(8): A(f"v_mul_f32 v{u+r}, v{u+r}, v{g+r}")
        for r in range(8): A(f"v_fma_f32 v{t+r}, v{t+r}, v{vVAR}, v{vVAR}")
        for r in range(8): A(f"v_rcp_f32 v{t+r}, v{t+r}")
        for r in range(8): A(f"v_mul_f32 v{u+r}, v{u+r}, v{t+r}")
        for r in range(4): A(f"v_cvt_pk_bf16_f32 v{80+4*i+r}, v{u+2*r}, v{u+2*r+1}")
    stamp("p4pre")
    stores([f"buffer_store_dwordx4 {vr(80+4*i,4)}, v117, {WS}, s58 offen offset:{512*i}" for i in range(3)])
    aW, a0, aP0, aP1 = 248, 249, 250, 253
    A(f"v_add_u32 v{aW}, s60, v{vB}")
    trA(a0, "s60")
    A(f"""
    s_mul_i32 s78, {sKH}, 40960
    s_add_u32 s79, s78, 40960
    v_add_u32 v{aP0}, s79, v{aW}
    s_sub_u32 s79, 81920, s78
    v_add_u32 v{aP1}, s79, v{aW}
    s_waitcnt vmcnt(3)
    s_cmp_ge_u32 {sW}, 4
    s_cbranch_scc1 L_p5l""")
    def mm5(role, ps, vmq, hook=None):
        for u in range(len(WR[role])):
            if vmq: vmq.wait((ps, u))
            stamp(f"p5s{ps}{u}")
            for ct in range(5):
                for tt in range(2):
                    d = vr(AC5+20*tt+4*ct,4)
                    A(f"v_mfma_f32_16x16x32_bf16 {d}, {vr(WR[role][u]+4*ct,4)}, {vr(BL[role][ps][u]+4*tt,4)}, {d if (u or (tt == 0 and not role)) else '0'}")
            if hook: hook(u)
    def flush(ps, mid=""):
        for tt in range(2):
            if tt: A(mid)
            for ct in range(5): A(f"ds_write_b128 v{(aP0, aP1)[tt]}, {vr(AC5+20*tt+4*ct,4)} offset:{1024*ct}")
        if ps == 0:
            A(f"s_mul_i32 s78, {sKH}, 122880\nv_add_u32 v{aP0}, s78, v{aW}\ns_sub_u32 s78, 122880, s78\nv_add_u32 v{aP1}, s78, v{aW}")
    def resid(ps):
        A(f"s_cmp_eq_u32 {sTT}, {ps}\ns_cselect_b32 s78, 0xffff0000, 0\ns_cselect_b32 s79, 0x10000, 0")
        for r in range(10): A(f"v_mul_u32_u24 v{AC5+2*r}, s79, v{XR+r}\nv_and_b32 v{AC5+2*r+1}, s78, v{XR+r}")
    A("s_add_u32 s62, s62, 128")
    tr5(F0, 0, aW, a0)
    resid(0)
    flag("s56")
    if opt.get("wt", 0) & 2:
        for i in range(3): A(f"buffer_store_dwordx4 {vr(80+4*i,4)}, v117, {WS}, s58 offen offset:{512*i} {opt.get('wtf', 'sc1')}")
    stamp("hppub")
    A("s_barrier")
    stamp("BG")
    A("s_waitcnt lgkmcnt(0)")
    def hk(u):
        if u == 2: A(f"buffer_load_dword v112, v{vF4}, {WS}, s62 offen sc1")
    mm5(0, 0, None, hk)
    stamp("p5a")
    lz = L("z")
    A(f"s_waitcnt vmcnt(0)\nv_cmp_ne_u32 vcc, {sT}, v112\ns_cbranch_vccz {lz}")
    flush(0)
    poll(vF4, 112, "s62")
    vm = Q(A, "vmcnt", 63); ldB5(0, 1, vm)
    A(f"s_branch {lz}b\n{lz}:")
    vm = Q(A, "vmcnt", 63); ldB5(0, 1, vm)
    flush(0)
    A(f"{lz}b:")
    stamp("S4")
    resid(1)
    mm5(0, 1, vm)
    A("s_branch L_p5e\nL_p5l:")
    tr5(F0, 0, aW, a0)
    flag("s56")
    if opt.get("wt", 0) & 1:
        for i in range(3): A(f"buffer_store_dwordx4 {vr(80+4*i,4)}, v117, {WS}, s58 offen offset:{512*i} {opt.get('wtf', 'sc1')}")
    stamp("hppub")
    A("s_setprio 0")
    poll(vF4, 112, "s62")
    stamp("S4e")
    vm = Q(A, "vmcnt", 63); ldB5(1, 0, vm)
    A("s_add_u32 s62, s62, 128\ns_waitcnt lgkmcnt(0)")
    mm5(1, 0, vm)
    stamp("p5a")
    A("s_barrier")
    stamp("BG")
    flush(0)
    A("s_setprio 1")
    poll(vF4, 112, "s62")
    stamp("S4")
    ldB5(1, 1, vm)
    mm5(1, 1, vm)
    A("L_p5e:")
    stamp("p5mm")
    flush(1)
    A(f"""
    s_add_u32 s78, {sQ}, 1
    s_cmp_eq_u32 {sQ}, 2
    s_cselect_b32 s78, 0, s78
    s_min_u32 s78, s78, 3
    s_mul_i32 s78, s78, 40960
    s_mul_i32 s79, {sTH}, 3072
    s_add_u32 s78, s78, s79
    v_add_u32 v1, s78, v{vB}
    v_and_b32 v2, 15, v{vL}
    v_lshrrev_b32 v3, 4, v{vL}
    v_mul_u32_u24 v2, 1280, v2
    v_lshl_add_u32 v5, v3, 3, v2
    v_and_b32 v4, 1, v3
    v_lshrrev_b32 v3, 1, v3
    v_lshl_add_u32 v2, v4, 5, v2
    v_lshl_add_u32 v4, v3, 4, v2
    s_lshl_b32 s56, {sB}, 2
    s_add_u32 s56, s56, {sQ}
    s_mul_i32 s56, s56, {16*1280}
    s_mul_i32 s57, {sNB}, 160
    s_add_u32 s56, s56, s57
    s_mul_i32 s57, {sTH}, 96
    s_add_u32 s56, s56, s57
    s_waitcnt lgkmcnt(0)
    s_barrier
    """)
    stamp("p5x")
    ost = (lambda l: A(l[0] + " sc1")) if opt.get("wt", 0) & 4 else stores
    l5, l6 = L("t5"), L("t6")
    for c in range(3):
        if c == 2: A(f"s_cmp_eq_u32 {sTH}, 1\ns_cbranch_scc1 {l5}")
        for q in range(8): A(f"ds_read_b128 {vr(64+32*c+4*q,4)}, v1 offset:{1024*c+5120*q}")
    A(f"{l5}:")
    for c in range(3):
        r = 64+32*c
        A(f"s_waitcnt lgkmcnt({8 if c == 0 else 0})")
        for s in (16, 8, 4):
            for k in range(0, s, 2): A(f"v_pk_add_f32 {vr(r+k,2)}, {vr(r+k,2)}, {vr(r+s+k,2)}")
        A(f"v_cvt_pk_bf16_f32 v{10+2*c}, v{r}, v{r+1}\nv_cvt_pk_bf16_f32 v{11+2*c}, v{r+2}, v{r+3}")
        if c == 1:
            A("v_permlane16_swap_b32 v10, v12\nv_permlane16_swap_b32 v11, v13")
            ost([f"buffer_store_dwordx4 v[10:13], v4, {OUT}, s56 offen"])
            A(f"s_cmp_eq_u32 {sTH}, 1\ns_cbranch_scc1 {l6}")
    ost([f"buffer_store_dwordx2 v[14:15], v5, {OUT}, s56 offen offset:64"])
    A(f"{l6}:")
    le = L("ep")
    A(f"""
    s_add_u32 s78, s2, {sW}
    s_cmp_lg_u32 s78, 0
    s_cbranch_scc1 {le}
    v_mov_b32 v46, {sT}
    s_mov_b64 exec, 1
    buffer_store_dword v46, off, {WS}, 0 sc1
    s_mov_b64 exec, -1
    {le}:""")
    if opt.get("dbgclk"):
        A(f"""s_waitcnt vmcnt(0)
        s_and_b32 s78, s2, 63
        s_add_u32 s78, s78, {sW}
        s_cmp_lg_u32 s78, 0
        s_cbranch_scc1 L_exit
        s_memtime s[88:89]
        s_memrealtime s[90:91]
        s_waitcnt lgkmcnt(0)
        s_sub_u32 s88, s88, s84
        v_mov_b32 v0, s88
        v_mov_b32 v1, s86
        v_mov_b32 v2, s90
        v_mov_b32 v3, {sFAST}
        s_lshr_b32 s78, s2, 2
        s_mov_b64 exec, 1
        buffer_store_dwordx4 v[0:3], off, s[92:95], s78""")
    if diag:
        A("s_waitcnt vmcnt(0)")
        stamp("end")
        A(f"s_lshl_b32 s78, s2, 3\ns_add_u32 s78, s78, {sW}\ns_lshl_b32 s78, s78, 6\ns_add_u32 s78, s78, {WS_DBG}\ns_mov_b64 exec, 1")
        A(f"s_mov_b32 s99, {sFAST}")
        for i in range(16): A(f"v_mov_b32 v{i}, s{84+i}")
        for i in range(4): A(f"buffer_store_dwordx4 {vr(4*i,4)}, off, {WS}, s78 offset:{16*i}")
    A("L_exit:\ns_endpgm")
    def fm(q):
        S = vr(S3[q],16)
        A(f"v_mfma_f32_32x32x16_bf16 {S}, v[80:83], {vr(Qm[q],4)}, 0\nv_mfma_f32_32x32x8_bf16 {S}, v[88:89], {vr(Qm[q]+4,2)}, {S}")
    A(f"""
    L_fallback:
    v_subrev_u32 v{aK}, {cur['K']}, v{aK}
    v_subrev_u32 v{aT}, {512*tcur[0]}, v{aT}
    v_subrev_u32 v{aV}, {cur['V']}, v{aV}
    v_mov_b32 v144, 0xff800000
    v_mov_b32 v145, 0xff800000
    s_mov_b32 s63, {WS_KV}
    s_nop 7
    L_fb1:
    buffer_load_dwordx4 v[80:83], v{aK}, {WS}, s63 offen sc1
    buffer_load_dwordx2 v[88:89], v{aT}, {WS}, s63 offen sc1
    s_waitcnt vmcnt(0)""")
    fm(0); fm(1)
    for q in range(2):
        for r in range(0, 16, 2): A(f"v_max3_f32 v{144+q}, v{144+q}, v{S3[q]+r}, v{S3[q]+r+1}")
    A(f"""
    s_add_u32 s63, s63, 2560
    s_cmp_lt_u32 s63, {WS_KV+163840}
    s_cbranch_scc1 L_fb1
    v_mov_b32 v146, v144
    v_mov_b32 v147, v145
    v_permlane32_swap_b32 v144, v146
    v_permlane32_swap_b32 v145, v147
    v_max_f32 v144, v144, v146
    v_max_f32 v145, v145, v147
    s_mov_b32 s63, {WS_KV}""")
    for r in range(32): A(f"v_mov_b32 v{r}, 0")
    A(f"""
    s_nop 7
    L_fb2:
    buffer_load_dwordx4 v[80:83], v{aK}, {WS}, s63 offen sc1
    buffer_load_dwordx2 v[88:89], v{aT}, {WS}, s63 offen sc1
    s_mov_b64 exec, s[76:77]
    buffer_load_dwordx4 v[96:99], v{aV}, {WS}, s63 offen sc1
    buffer_load_dwordx4 v[100:103], v{aV}, {WS}, s63 offen offset:1280 sc1
    s_mov_b64 exec, -1
    s_waitcnt vmcnt(0)""")
    fm(0); fm(1)
    for q in range(2):
        for r in range(16): A(f"v_sub_f32 v{S3[q]+r}, v{S3[q]+r}, v{144+q}")
        for r in range(16): A(f"v_exp_f32 v{S3[q]+r}, v{S3[q]+r}")
    for q in range(2):
        for h in range(2): A(f"v_smfmac_f32_32x32x32_bf16 {vr(O_[q],16)}, {vr(96+4*h,4)}, {vr(S3[q]+8*h,8)}, v{vIDX}")
    A(f"""
    s_add_u32 s63, s63, 2560
    s_cmp_lt_u32 s63, {WS_KV+163840}
    s_nop 7
    s_cbranch_scc1 L_fb2
    s_mov_b32 s64, 1
    s_nop 7
    s_branch L_fbret
    L_end:""")
    hdr = open("cdna_kernels/" + NAME + ".s.ref").read().split("\n")
    k0 = next(i for i, l in enumerate(hdr) if l.startswith(NAME + "_kernel:"))
    k1 = next(i for i, l in enumerate(hdr) if l.startswith(".section .rodata"))
    head = [("; @launch grid=(256,1,1) block=(512,1,1) lds=163840" if l.startswith("; @launch") else l) for l in hdr[:k0+1]]
    if diag: head.insert(1, "; stamps: " + " ".join(names))
    return "\n".join(head) + "\n" + A.text() + "    s_endpgm\n" + "\n".join(hdr[k1:]), A.nops

D0 = "xin kvpub BQ slot0 attn S2 hpub S3 p4mm hppub p5a S4 p5mm end".split()
D2 = "BQ slot0 l_s1 a8 l_kv a16 a32 l_gu l_wd a48 a56 l_wo attn".split()
D3 = "attn opre oflag S2 p3s10 p3mm p3pre hpub l_wo l_g1 l_g0 GB S3 p4s0".split()
D4 = "GB S3 p4s0 p4s20 p4mm p4pre hppub S4e p5a BG S4 p5mm p5x end".split()
D5 = "xin BQ slot0 a16 a32 a48 attn hpub p4s0 p4s20 p4mm hppub p5mm end".split()
D6 = "BQ slot0 l_s1 a16 a48 a56 l_kv l_r0 l_r1 l_r2 l_gu l_wd l_wo attn".split()
D7 = "slot0 a48 l_gu l_wd l_wo attn oflag S2 hpub S3 p4mm hppub p5mm end".split()
V = dict(t1=dict(wt=7), t2=dict(wt=4), t3=dict(wt=3), t4=dict(wt=1), t5=dict(wt=3, wtf="sc0 sc1"), e5=dict(diag=D7, ho=0), e6=dict(diag=D7, ho=1), e7=dict(diag=D7, ho=2), e4=dict(diag=D0, ct=()), e1=dict(diag=D6), e2=dict(diag="slot0 a0 a2 a4 a6 a7 a10 a14 a15 a18 l_s1 l_b1 l_f6 l_kv".split(), nb1=16), e3=dict(diag="a44 a46 a48 a49 a50 a52 a54 a56 a58 a60 a62 attn l_wd l_wo".split(), nb1=16), clk=dict(dbgclk=1), diag=dict(diag=D0), na=dict(diag=D0, alias=0), slow=dict(diag=D0, force_slow=True), fb=dict(force_fb=True),
  d2=dict(diag=D2), d3=dict(diag=D3), d4=dict(diag=D4), r1=dict(diag=D5), r2=dict(diag=D5, rt=1),
  d1=dict(diag="setup xin BX stats norm wkv kvst kvpub q0 q1 q2 q3 BQ slot0".split()))
if __name__ == "__main__":
    t, n = gen()
    open("cdna_kernels/" + NAME + ".s", "w").write(t)
    for nm, kw in V.items(): open(f"k_{nm}.s", "w").write(gen(**kw)[0])
    print("ok; nops", n, "lines", t.count("\n"))
```

```python
import sys, math, struct
from asmlib import Asm
NAME = "sequential_preLN__grouped_kv_mqa__glu_gated_geglu__prompt"
WS_F1, WS_F2, WS_F3, WS_F4 = 0x1000, 0x9000, 0xB000, 0xD000
WS_CS = 0xB80000
WS_KV, WS_HS, WS_O, WS_H, WS_HP, WS_DBG, WS_SIZE = 0x10000, 0x40000, 0x80000, 0x300000, 0x580000, 0xC00000, 0x1000000
def f2u(x): return "0x%08x" % struct.unpack("<I", struct.pack("<f", x))[0]
def vr(a, n): return f"v[{a}:{a+n-1}]" if n > 1 else f"v{a}"
ONES = "0x3f803f80"

class Q:
    def __init__(s, A, name, cap): s.A, s.name, s.cap, s.q, s.done = A, name, cap, [], 0
    def add(s, tag, n=1): s.q += [tag]*n
    def wait(s, tag):
        i = max(i for i, x in enumerate(s.q) if x == tag)
        if i < s.done: return
        k = min(len(s.q) - 1 - i, s.cap); s.done = len(s.q) - k
        s.A(f"s_waitcnt {s.name}({k})")
    def all(s): s.A(f"s_waitcnt {s.name}(0)"); s.done = len(s.q)

def gen(diag=False, force_slow=False, force_fb=False, **opt):
    A = Asm()
    X, WQ, WKV, WO, GU, WD, OUT, WS = ("s[8:11]","s[12:15]","s[16:19]","s[20:23]","s[24:27]","s[28:31]","s[32:35]","s[36:39]")
    sW, sXCD, sIDX, sB, sNB = "s3","s4","s5","s6","s7"
    sT, sXCC, sFAST, sTT, sKH, sTH, sQ = "s40","s41","s42","s43","s44","s45","s46"
    names = []
    def stamp(name):
        if not diag or (name not in diag and name != "start"): return
        if name not in names: names.append(name)
        i = names.index(name); assert i < 15
        A(f"{'s_memrealtime' if opt.get('rt') else 's_memtime'} s[82:83]\ns_waitcnt lgkmcnt(0)\ns_mov_b32 s{84+i}, s82")
    WOFF, vL, vB, vT1 = 240, 245, 246, 247
    XR = 230
    lab = [0]
    def L(p):
        lab[0] += 1; return f"L_{p}{lab[0]}"
    def poll(vaddr, vdst, soff="0", x2=False):
        l0, l1 = L("poll"), L("pdone")
        A(f"s_mov_b32 s78, 0\n{l0}:")
        A(f"buffer_load_dword{'x2' if x2 else ''} {vr(vdst, 2 if x2 else 1)}, v{vaddr}, {WS}, {soff} offen sc1")
        A(f"s_add_u32 s78, s78, 1\ns_cmp_gt_u32 s78, 0x8000\ns_cbranch_scc1 {l1}")
        A(f"s_waitcnt vmcnt(0)\nv_cmp_ne_u32 vcc, {sT}, v{vdst}\ns_cbranch_vccnz {l0}")
        A(f"{l1}:\ns_waitcnt vmcnt(0)")
    def ldsspin(vaddr, vdst, val, off=0):
        l0, l1 = L("spin"), L("spind")
        A(f"""s_mov_b32 s78, 0
        {l0}:
        ds_read_b32 v{vdst}, v{vaddr} offset:{off}
        s_add_u32 s78, s78, 1
        s_cmp_gt_u32 s78, 0x40000
        s_cbranch_scc1 {l1}
        s_waitcnt lgkmcnt(0)
        v_cmp_ne_u32 vcc, {val}, v{vdst}
        s_cbranch_vccnz {l0}
        {l1}:""")
    def stores(lst):
        ls, le = L("slow"), L("stend")
        A(f"s_cmp_eq_u32 {sFAST}, 0\ns_cbranch_scc1 {ls}")
        for sc in ("", " sc1"):
            for st in lst: A(st + sc if st.startswith("buffer_store") else st)
            if not sc: A(f"s_branch {le}\n{ls}:")
        A(f"{le}:")
    def flag(addr_s):
        A(f"v_mov_b32 v{vT1}, {sT}\ns_mov_b64 exec, 1\ns_waitcnt vmcnt(0)")
        stores([f"buffer_store_dword v{vT1}, off, {WS}, {addr_s}"])
        A("s_mov_b64 exec, -1")
    ALIAS = opt.get("alias", 1)
    OB, OST = (WS_HP, 49152) if ALIAS else (WS_O, 20480)
    HSRD, HB = (OUT, 0) if ALIAS else (WS, WS_H)
    LCS = 102400
    def csaddr(dst, t):
        A(f"""
        v_bfe_u32 v{t}, v{vL}, 4, 1
        v_lshrrev_b32 v{dst}, 5, v{vL}
        v_lshl_add_u32 v{dst}, v{t}, 1, v{dst}
        v_lshlrev_b32 v{dst}, 8, v{dst}
        v_bfe_u32 v{t}, v{vL}, 2, 1
        v_lshl_add_u32 v{dst}, v{t}, 5, v{dst}
        v_bfe_u32 v{t}, v{vL}, 3, 1
        v_lshl_add_u32 v{dst}, v{t}, 4, v{dst}
        v_and_b32 v{t}, 3, v{vL}
        v_lshl_add_u32 v{dst}, v{t}, 2, v{dst}
        """)
    def srd(base, lo, size):
        A(f"s_mov_b32 s{base}, s{lo}\ns_mov_b32 s{base+1}, s{lo+1}\ns_mov_b32 s{base+2}, {size}\ns_mov_b32 s{base+3}, 0x00020000")
    def trA(dst, kh_term):
        A(f"v_and_b32 v{vT1}, 3, v{vL}\nv_lshrrev_b32 v{dst}, 2, v{vL}\nv_mul_u32_u24 v{dst}, 160, v{dst}\nv_lshl_add_u32 v{dst}, v{vT1}, 3, v{dst}")
        if kh_term: A(f"v_add_u32 v{dst}, {kh_term}, v{dst}")

    LGU = 40960
    AC4, AR4, NA4, BR4, NB4 = 0, 48, opt.get("na4", 3), 84, 7
    aA0, aA, vF4, vST, vNM, vVAR, vRS = 116, 117, 118, 119, 248, 249, 250
    def p4pro():
        A(f"""
        v_and_b32 v109, 1, v{vL}
        v_bfe_u32 v110, v{vL}, 1, 1
        v_lshl_add_u32 v108, v109, 1, v110
        v_bfe_u32 v109, v{vL}, 2, 3
        v_lshrrev_b32 v110, 5, v{vL}
        v_lshl_add_u32 v111, v110, 4, v109
        v_mul_u32_u24 v111, 96, v111
        v_lshl_add_u32 v111, v108, 3, v111
        v_add_u32 v{aA0}, {LGU}, v111
        v_and_b32 v115, 15, v{vL}
        v_lshlrev_b32 v115, 2, v115
        v_and_b32 v108, 31, v{vL}
        v_lshlrev_b32 v{vF4}, 2, v108
        v_lshlrev_b32 v108, 4, v108
        v_lshl_add_u32 v{vST}, v110, 10, v108
        s_lshl_b32 s68, {sXCD}, 2
        s_add_u32 s68, s68, {sQ}
        s_lshl_b32 s68, s68, 1
        s_add_u32 s68, s68, 1
        s_sub_u32 s68, s68, {sTH}
        s_lshl_b32 s57, s68, 7
        s_add_u32 s57, s57, {WS_F3}
        s_lshl_b32 s58, s68, 11
        s_add_u32 s58, s58, {WS_HS}
        s_mul_i32 s59, s68, 40960
        s_add_u32 s59, s59, {HB}
        s_mul_i32 s60, {sW}, 5120
        s_mul_i32 s61, {sW}, 40960
        s_add_u32 s61, s61, {40*40960}
        s_lshl_b32 s62, {sB}, 8
        s_add_u32 s62, s62, {WS_F4}
        s_mul_i32 s63, {sB}, {4*49152}
        s_add_u32 s63, s63, {WS_HP}
        s_lshl_b32 s64, {sW}, 10
        s_add_u32 s64, s64, s63
        s_add_u32 s64, s64, {40*1024}""")
    def tr5(r, wr, aw, ar):
        if wr:
            for j in range(5): A(f"ds_write_b128 v{aw}, {vr(r+4*j,4)} offset:{1024*j}")
        for ct in range(5):
            for hf in range(2): A(f"ds_read_b64_tr_b16 {vr(r+4*ct+2*hf,2)}, v{ar} offset:{hf*2560+ct*32}")
    LWKV, LKX, LST, LFL, LKP, LQP = 102400, 158720, 160768, 161792, 162048, 102400
    XF, ACC, RING, GOFF = 144, 184, 32, 250
    O_ = (0, 16); S3 = (32, 48, 64); KMb = (80, 84); KTb = (88, 92); Vb = (96, 112); Qm = (128, 134); aK, aT, aV, vIDX = 140, 141, 142, 143
    A(f"""
    s_cmp_ge_u32 s2, 256
    s_cbranch_scc1 L_exit
    s_load_dwordx16 s[52:67], s[0:1], 0
    s_load_dwordx8 s[68:75], s[0:1], 64
    s_getpc_b64 s[80:81]
    L_pc:
    v_lshrrev_b32 v1, 6, v0
    v_and_b32 v{vL}, 63, v0
    s_lshr_b32 {sIDX}, s2, 3
    s_lshl_b32 s78, {sIDX}, 11
    v_lshlrev_b32 v253, 7, v{vL}
    v_lshl_add_u32 v2, v1, 8, v253
    v_add_u32 v2, s78, v2
    v_min_u32 v2, L_end-L_pc-4, v2
    s_mov_b64 exec, 3
    global_load_dword v203, v2, s[80:81]
    s_mov_b64 exec, -1
    v_readfirstlane_b32 {sW}, v1
    s_and_b32 {sXCD}, s2, 7
    s_lshr_b32 {sB}, {sIDX}, 3
    s_and_b32 {sNB}, {sIDX}, 7
    s_lshl_b32 s78, {sXCD}, 2
    s_add_u32 {sB}, {sB}, s78
    s_getreg_b32 {sXCC}, hwreg(HW_REG_XCC_ID, 0, 4)
    s_lshr_b32 {sTT}, {sW}, 1
    s_and_b32 {sKH}, {sW}, 1
    s_lshr_b32 {sTH}, {sW}, 2
    s_and_b32 {sQ}, {sW}, 3
    v_lshlrev_b32 v{vB}, 4, v{vL}
    v_mov_b32 v216, 0
    v_lshlrev_b32 v215, 2, v{vL}
    v_add_u32 v215, {LFL}, v215
    ds_write_b32 v215, v216
    s_lshl_b32 s82, {sB}, 2
    s_add_u32 s82, s82, {sTT}
    s_mul_i32 s78, s82, {16*1280}
    s_mul_i32 s79, {sKH}, 640
    s_add_u32 s78, s78, s79
    v_lshrrev_b32 v209, 3, v{vL}
    v_lshrrev_b32 v210, 4, v{vL}
    v_and_b32 v211, 7, v{vL}
    v_xor_b32 v211, v211, v210
    v_mul_u32_u24 v4, 1280, v209
    v_lshl_add_u32 v4, v211, 4, v4
    v_add_u32 v200, s78, v4
    v_xor_b32 v201, 64, v200
    s_mul_i32 s51, {sW}, 10240
    s_cmp_lt_u32 {sW}, 5
    s_cselect_b32 s78, 0, 25600
    s_add_u32 s51, s51, s78
    s_add_u32 s51, s51, 51200
    s_mul_i32 s50, s82, 1280
    s_lshr_b32 s79, {sNB}, 2
    s_mul_i32 s79, s79, 640
    s_add_u32 s50, s50, s79
    s_add_u32 s50, s50, {WS_KV}
    s_and_b32 s47, {sNB}, 3
    """)
    for r in (255, 219, 226, 227, 229, 232, 233, 248, 250, 251, 252, WOFF, WOFF+1, WOFF+2, WOFF+3, WOFF+4): A(f"v_mov_b32 v{r}, 0")
    A("s_waitcnt lgkmcnt(0)")
    stamp("start")
    if opt.get("dbgclk"): A("s_memtime s[84:85]\ns_memrealtime s[86:87]\ns_mov_b32 s92, s72\ns_mov_b32 s93, s73\ns_mov_b32 s94, 256\ns_mov_b32 s95, 0x00020000\ns_waitcnt lgkmcnt(0)")
    if diag:
        for i in range(1, 15): A(f"s_mov_b32 s{84+i}, s84")
    srd(8, 52, 2621440)
    def xloads():
        A("s_movk_i32 s79, 10240")
        for i in range(5):
            A(f"s_add_u32 m0, s51, {1920*i}\nbuffer_load_dwordx4 v200, {X}, 0 offen offset:{128*i} lds")
            A(f"s_add_u32 m0, s51, {1920*i+1024}\nbuffer_load_dwordx4 v201, {X}, s79 offen offset:{128*i} lds")
    def ifkv(lab, kv=True): A(f"s_cmp_{'eq' if kv else 'lg'}_u32 s47, {sTT}\ns_cbranch_scc1 {lab}")
    def srds():
        srd(36, 74, WS_SIZE); srd(12, 54, 819200)
        A(f"s_cmp_lt_u32 {sNB}, 4\ns_cselect_b32 s16, s56, s58\ns_cselect_b32 s17, s57, s59\ns_mov_b32 s18, 25600\ns_mov_b32 s19, 0x00020000")
    def woff():
        A(f"s_mul_i32 s78, {sNB}, 160")
        for j in range(5):
            A(f"""
            v_add_u32 v204, {64*j}, v{vL}
            v_mul_u32_u24 v205, 6554, v204
            v_lshrrev_b32 v205, 16, v205
            v_mul_u32_u24 v206, 10, v205
            v_sub_u32 v206, v204, v206
            v_and_b32 v207, 3, v205
            v_bfe_u32 v208, v205, 2, 2
            v_lshrrev_b32 v204, 4, v205
            v_lshl_add_u32 v207, v208, 3, v207
            v_lshl_add_u32 v207, v204, 2, v207
            v_mul_u32_u24 v207, 1280, v207
            v_lshl_add_u32 v207, v206, 4, v207
            v_add_u32 v{WOFF+j}, s78, v207
            """)
    def wqdma(js=range(5)):
        for j in js: A(f"s_add_u32 m0, s48, {1024*j}\nbuffer_load_dwordx4 v{WOFF+j}, {WQ}, s49 offen lds")
        if 4 in js: A(f"s_add_u32 s49, s49, {3*40960}\ns_add_u32 s48, s48, 30720")
    def wq1(j):
        l = L("wq"); ifkv(l); wqdma([j]); A(l + ":")
    NL = opt.get("nl", 64); MH = (1 << max(96-NL, 1)) - 1
    def tgu(r, q=None):
        A(f"""s_add_u32 s78, s65, {393216*r}
        s_mov_b64 exec, s[72:73]
        buffer_load_dword v254, v253, {GU}, s78 offen
        s_mov_b64 exec, -1""")
        if q: q.add("t")
    def setup(sx):
        trA(220, None)
        A(f"""
        s_mul_i32 s79, {sKH}, 5120
        v_add_u32 v218, s79, v220
        v_add_u32 v205, 61440, v218
        s_lshl_b32 s78, {sTT}, 4
        v_add_u32 v206, s78, v212
        v_mul_u32_u24 v206, 336, v206
        v_lshl_add_u32 v206, v210, 4, v206
        s_mul_i32 s78, {sKH}, 21504
        s_add_u32 s78, s78, {LQP}
        v_add_u32 v206, s78, v206
        s_lshl_b32 s78, {sXCD}, 12
        s_add_u32 s78, s78, {WS_F1}
        v_lshl_add_u32 v248, v221, 7, s78
        s_mov_b32 s54, 0
        """)
        A(f"s_cmp_ge_u32 {sW}, 4\ns_cbranch_scc1 L_b1{sx}")
        A(f"""
        v_mul_u32_u24 v223, 336, v221
        s_mul_i32 s78, {sQ}, 80
        s_add_u32 s78, s78, {LQP}
        v_add_u32 v223, s78, v223
        v_lshl_add_u32 v224, v222, 5, v223
        v_bfe_u32 v250, v{vL}, 4, 1
        v_mul_u32_u24 v250, 1280, v250
        v_lshl_add_u32 v{aT}, v212, 3, v250
        v_add_u32 v{aT}, 512, v{aT}
        v_lshl_add_u32 v{aK}, v212, 4, v250
        v_lshl_add_u32 v{aK}, v222, 8, v{aK}
        v_and_b32 v250, 3, v{vL}
        v_bfe_u32 v251, v{vL}, 2, 1
        v_bfe_u32 v252, v{vL}, 3, 1
        v_lshl_add_u32 v249, v251, 3, v250
        v_lshl_add_u32 v249, v252, 2, v249
        s_and_b32 s78, {sQ}, 1
        s_lshl_b32 s79, s78, 2
        v_add_u32 v249, s79, v249
        s_lshl_b32 s79, s78, 4
        s_sub_u32 s79, 16, s79
        v_add_u32 v250, s79, v250
        v_cmp_gt_u32 vcc, 16, v221
        v_mul_u32_u24 v251, 20, v222
        v_cndmask_b32 v249, v250, v249, vcc
        v_add_u32 v249, v249, v251
        v_lshlrev_b32 v{aV}, 4, v249
        v_add_u32 v{aV}, 640, v{aV}
        v_mov_b32 v{vIDX}, 0xDDDDDDDD
        s_mov_b32 s76, 0x000fffff
        s_mov_b32 s77, 0x000fffff
        s_mov_b32 s52, 0x01100000
        s_mov_b32 s53, 0x01100000
        v_cndmask_b32 v96, 0, v72, s[52:53]
        """)
        for r in range(1, 32): A(f"v_mov_b32 v{96+r}, v96")
        for r in range(32): A(f"v_mov_b32 v{r}, 0")
        A(f"""
        v_mul_u32_u24 v249, 1280, v212
        v_lshl_add_u32 v251, v210, 3, v249
        v_and_b32 v250, 1, v210
        v_lshl_add_u32 v249, v250, 5, v249
        v_lshl_add_u32 v250, v222, 4, v249
        s_lshl_b32 s63, {sB}, 2
        s_add_u32 s63, s63, {sW}
        s_mul_i32 s63, s63, {16*1280}
        s_mul_i32 s57, {sNB}, 160
        s_add_u32 s63, s63, s57
        v_bfe_u32 v226, v{vL}, 4, 1
        v_mul_u32_u24 v226, {OST}, v226
        v_lshl_add_u32 v226, v212, 4, v226
        v_lshl_add_u32 v227, v222, 8, v226
        s_mul_i32 s57, {sB}, {4*OST}
        s_add_u32 s57, s57, {OB}
        s_lshl_b32 s58, {sNB}, 2
        s_add_u32 s58, s58, {sQ}
        s_lshl_b32 s62, {sB}, 7
        s_add_u32 s62, s62, {WS_F2}
        s_lshl_b32 s59, s58, 2
        s_add_u32 s56, s62, s59
        s_mul_i32 s58, s58, 20
        s_add_u32 s59, s58, 4
        s_lshr_b32 s59, s59, 3
        s_lshl_b32 s59, s59, 8
        s_add_u32 s59, s59, s57
        s_and_b32 s60, {sQ}, 1
        s_lshl_b32 s61, s60, 4
        s_sub_u32 s58, s58, s61
        s_add_u32 s58, s58, 16
        s_lshr_b32 s58, s58, 3
        s_lshl_b32 s58, s58, 8
        s_lshl_b32 s60, s60, 3
        s_add_u32 s58, s58, s60
        s_add_u32 s58, s58, s57
        s_add_u32 s60, s58, {2*OST}
        s_add_u32 s61, s59, {2*OST}
        s_mul_i32 s64, {sW}, {OST}
        s_add_u32 s57, s57, s64
        s_add_u32 s57, s57, 16384
        s_mov_b32 s64, 0
        s_mov_b32 s66, {f2u(2.0**-60)}
        s_mov_b32 s67, {f2u(2.0**100)}
        s_mul_i32 s55, {sQ}, {4*40960}
        s_add_u32 s55, s55, {24*40960}
        v_add_u32 v225, 51200, v220
        v_lshlrev_b32 v229, 2, v221
        s_branch L_b2{sx}
        L_b1{sx}:""")
        A(f"s_mul_i32 s78, {sIDX}, 96\ns_mul_i32 s79, {sKH}, 98304\ns_add_u32 s78, s78, s79")
        for i in range(3):
            A(f"""
            v_add_u32 v0, {32*i}, v221
            v_mul_u32_u24 v1, 10923, v0
            v_lshrrev_b32 v1, 16, v1
            v_mul_u32_u24 v2, 6, v1
            v_sub_u32 v2, v0, v2
            v_lshl_add_u32 v1, v222, 4, v1
            v_mul_u32_u24 v1, 3072, v1
            v_lshl_add_u32 v1, v2, 4, v1
            v_add_u32 v{GOFF+i}, s78, v1""")
        A(f"""
        s_mul_i32 s64, {sQ}, 5120
        s_add_u32 s72, {sXCD}, 1
        s_and_b32 s72, s72, 7
        s_add_u32 s73, {sXCD}, {sQ}
        s_add_u32 s73, s73, 2
        s_and_b32 s73, s73, 7
        s_lshr_b32 s57, {sQ}, 1
        s_add_u32 s57, s57, 6
        s_add_u32 s74, {sXCD}, s57
        s_and_b32 s74, s74, 7
        s_add_u32 s78, s64, {WS_KV}
        s_mul_i32 s63, {sXCD}, 20480
        s_add_u32 s63, s63, s78
        s_mul_i32 s60, s72, 20480
        s_add_u32 s60, s60, s78
        s_mul_i32 s61, s73, 20480
        s_add_u32 s61, s61, {WS_KV}
        s_mul_i32 s78, {sKH}, 10240
        s_mul_i32 s59, s74, 20480
        s_add_u32 s59, s59, s78
        s_add_u32 s59, s59, {WS_KV}
        s_mul_i32 s57, s57, 20480
        s_add_u32 s57, s57, s78
        s_mul_i32 s56, {sQ}, 20480
        s_add_u32 s56, s56, 40960
        s_sub_u32 s73, s73, s72
        s_lshl_b32 s73, s73, 12
        s_lshl_b32 s72, s72, 12
        s_add_u32 s72, s72, {WS_F1}
        s_lshl_b32 s74, s74, 12
        s_add_u32 s74, s74, {WS_F1}
        v_lshl_add_u32 v233, v221, 7, s74
        v_mul_lo_u32 v232, v222, s73
        v_lshl_add_u32 v232, v221, 7, v232
        v_add_u32 v232, s72, v232
        s_mul_i32 s62, {sIDX}, 640
        s_add_u32 s62, s62, s61
        s_mul_i32 s58, {sIDX}, 320
        s_add_u32 s58, s58, s59
        s_andn2_b32 s65, {sIDX}, 1
        s_add_u32 s65, s65, {sKH}
        s_mul_i32 s65, s65, {96*128}
        s_mov_b32 s79, {(1 << (min(NL, 63)-32)) - 1}
        s_add_u32 s78, {sIDX}, 1
        s_bitcmp1_b32 s78, 1
        s_cselect_b32 s78, {NL*128}, 0
        s_cselect_b32 s72, {MH & 0xffffffff}, -1
        s_cselect_b32 s73, {MH >> 32}, {-1 if NL >= 64 else 's79'}
        s_add_u32 s65, s65, s78
        s_mul_i32 s74, {sQ}, 192
        s_add_u32 s74, s74, {sIDX}
        s_mul_i32 s74, s74, 1280
        s_lshl_b32 s66, {sIDX}, 2
        s_add_u32 s66, s66, {sQ}
        s_lshl_b32 s78, s66, 9
        v_add_u32 v255, s78, v253
        v_min_u32 v255, L_end-L_pc-4, v255
        s_mul_i32 s67, s66, {50*128}
        s_mul_i32 s66, s66, {60*128}
        s_mul_i32 s55, {sQ}, {6*40960}
        """)
        A(f"v_add_u32 v249, s64, v220\nL_b2{sx}:")
    ifkv("L_a1", False)
    A("s_setprio 2"); xloads(); srds()
    A(f"""
    s_lshr_b32 s78, {sIDX}, 3
    s_lshl_b32 s78, s78, 2
    s_add_u32 s78, s78, s47
    s_lshl_b32 s78, s78, 1
    s_add_u32 s78, s78, {sKH}
    s_mul_i32 s78, s78, {7*128}
    s_mov_b64 exec, 0x7f
    buffer_load_dword v203, v253, {WKV}, s78 offen
    s_mov_b64 exec, -1
    buffer_load_dword v202, off, {WS}, 0 sc1
    s_lshl_b32 s78, {sXCD}, 5
    s_add_u32 s78, s78, {sIDX}
    s_lshl_b32 s78, s78, 7
    s_add_u32 s75, s78, {WS_F1}
    s_mul_i32 s49, {sKH}, 409600
    s_add_u32 s49, s49, {9*40960}
    s_mul_i32 s48, {sKH}, 5120
    s_add_u32 s48, s48, 92160
    s_branch L_a2
    L_a1:""")
    srds()
    A(f"""
    s_sub_u32 s48, {sW}, 2
    s_cmp_gt_u32 {sTT}, s47
    s_cselect_b32 s48, s48, {sW}
    s_mul_i32 s49, {sIDX}, 6
    s_add_u32 s49, s49, s48
    s_add_u32 s78, s49, 224
    s_cmp_lt_u32 s49, 96
    s_cselect_b32 s78, s49, s78
    s_mul_i32 s78, s78, 1280
    s_mov_b64 exec, 0x3ff
    buffer_load_dword v203, v253, {WQ}, s78 offen
    s_mov_b64 exec, -1
    s_mul_i32 s79, s49, {24*128}
    v_add_u32 v204, s79, v253
    v_add_u32 v205, {960*128}, v204
    v_cmp_gt_u32 vcc, {2240*128}, v204
    s_mov_b32 s75, {960*128}
    s_and_b32 s49, s48, 1
    v_cndmask_b32 v219, v205, v204, vcc
    s_mul_i32 s49, s49, 10
    s_lshr_b32 s79, s48, 1
    s_add_u32 s49, s49, s79
    s_mul_i32 s49, s49, 40960
    s_mul_i32 s48, s48, 5120
    L_a2:""")
    woff()
    srd(20, 60, 819200)
    A(f"s_bitcmp1_b32 {sW}, 1\ns_cselect_b32 s24, s66, s64\ns_cselect_b32 s25, s67, s65\ns_mov_b32 s26, 1966080\ns_mov_b32 s27, 0x00020000")
    srd(28, 68, 1966080); srd(32, 70, 2621440)
    A(f"""
    v_and_b32 v212, 15, v{vL}
    v_and_b32 v221, 31, v{vL}
    v_lshrrev_b32 v222, 5, v{vL}
    v_lshrrev_b32 v211, 1, v212
    v_xor_b32 v211, v211, v210
    v_lshlrev_b32 v211, 4, v211
    v_lshl_add_u32 v207, v212, 7, v211
    v_add_u32 v207, s51, v207
    v_xor_b32 v208, 64, v207
    s_lshl_b32 s78, {sTT}, 8
    s_add_u32 s78, s78, {LST}
    v_lshl_add_u32 v213, v212, 3, s78
    s_lshl_b32 s79, {sKH}, 7
    v_add_u32 v214, s79, v213
    s_mov_b32 s68, 0xAAAAAAAA
    s_mov_b32 s69, 0xAAAAAAAA
    s_mov_b32 s70, 0xCCCCCCCC
    s_mov_b32 s71, 0xCCCCCCCC
    s_lshl_b32 s78, {sW}, 2
    s_add_u32 s78, s78, {LFL}
    v_mov_b32 v215, s78
    v_xor_b32 v217, 4, v215
    v_mov_b32 v216, 1
    """)
    for r in range(4): A(f"v_mov_b32 v{72+r}, {ONES}")
    setup("n")
    stamp("setup")
    ifkv("L_c1")
    A("s_barrier")
    xloads()
    TB = opt.get("tb", 1); tb = f"s_mov_b64 exec, 0xffffff\nbuffer_load_dword v203, v219, {WQ}, s75 offen\ns_mov_b64 exec, -1"
    A(f"buffer_load_dword v202, off, {WS}, 0 sc1")
    if TB == 0: A(tb)
    A(f"s_waitcnt vmcnt({1 if TB == 0 else 0})")
    if TB == 1: A(tb)
    if TB == 3: wqdma(); A(tb)
    A(f"s_branch L_c3\nL_c1:\ns_mul_i32 s78, {sKH}, 12288")
    for j in range(13):
        if j & 3 == 0: A(f"s_add_u32 m0, s78, {LWKV}")
        A(f"buffer_load_dwordx4 v{vB}, {WKV}, s78 offen offset:{1024*(j&3)} lds")
        if j & 3 == 3: A("s_add_u32 s78, s78, 4096")
    A("s_barrier\ns_waitcnt vmcnt(13)\nL_c3:")
    stamp("xin")
    for i in range(5): A(f"ds_read_b128 {vr(XF+8*i,4)}, v207 offset:{2048*i}\nds_read_b128 {vr(XF+8*i+4,4)}, v208 offset:{2048*i}")
    A(f"v_readfirstlane_b32 {sT}, v202\ns_add_u32 {sT}, {sT}, 0x9E3779B9")
    for i in range(10):
        A(f"s_waitcnt lgkmcnt({9-i})"); x = vr(XF+4*i, 4)
        A(f"v_mfma_f32_16x16x32_bf16 v[76:79], v[72:75], {x}, {'0' if i == 0 else 'v[76:79]'}")
        A(f"v_mfma_f32_16x16x32_bf16 v[80:83], {x}, {x}, {'0' if i == 0 else 'v[80:83]'}")
    A(f"""
    v_cndmask_b32 v80, v80, v81, s[68:69]
    v_cndmask_b32 v82, v82, v83, s[68:69]
    v_cndmask_b32 v77, v80, v82, s[70:71]
    s_mov_b32 exec_lo, 0x00F0000F
    s_mov_b32 exec_hi, 0xF0000F00
    ds_write_b64 v214, v[76:77]
    s_mov_b64 exec, -1
    """)
    A("ds_write_b32 v215, v216")
    ifkv("L_e1")
    if TB != 3: wqdma()
    if TB == 2: A(tb)
    A("L_e1:")
    ldsspin(217, 219, 1)
    A(f"""
    L_e2:
    ds_read2_b64 v[76:79], v213 offset1:16
    s_waitcnt lgkmcnt(0)
    v_add_f32 v76, v76, v78
    v_add_f32 v77, v77, v79
    v_mul_f32 v76, {f2u(1/640)}, v76
    v_mul_f32 v77, {f2u(1/640)}, v77
    v_fma_f32 v77, -v76, v76, v77
    v_max_f32 v77, 0, v77
    v_add_f32 v77, {f2u(1e-5)}, v77
    v_rsq_f32 v78, v77
    s_mov_b32 s79, 0xffff0000
    v_mul_f32 v79, v76, v78
    """)
    stamp("stats")
    FU = opt.get("fu", 0)
    if FU: ifkv("L_n1")
    for r0 in range(XF, XF+40, 4):
        for r in range(4): A(f"v_lshlrev_b32 v{80+2*r}, 16, v{r0+r}\nv_and_b32 v{81+2*r}, s79, v{r0+r}")
        if opt.get("pk", 1):
            if r0 == XF: A("v_mov_b32 v76, v78\nv_mov_b32 v77, v78\nv_mul_f32 v78, -1.0, v79\nv_mul_f32 v79, -1.0, v79")
            for r in range(4): A(f"v_pk_fma_f32 {vr(80+2*r,2)}, {vr(80+2*r,2)}, v[76:77], v[78:79]")
        else:
            for r in range(8): A(f"v_fma_f32 v{80+r}, v{80+r}, v78, -v79")
        for r in range(4): A(f"v_cvt_pk_bf16_f32 v{r0+r}, v{80+2*r}, v{81+2*r}")
    stamp("norm")
    ifkv("L_f1", False)
    A("L_n1:")
    KF = 32
    A(f"""
    v_bfe_u32 v209, v{vL}, 2, 2
    v_and_b32 v211, 3, v{vL}
    v_lshl_add_u32 v219, v210, 3, v209
    v_mul_u32_u24 v219, 40, v219
    v_lshl_add_u32 v219, v211, 3, v219
    s_mul_i32 s78, {sKH}, 12800
    s_add_u32 s78, s78, {LWKV}
    v_add_u32 v219, s78, v219
    v_and_b32 v211, 1, v210
    v_add_u32 v204, {LKX}, v{vB}
    s_waitcnt vmcnt(0)
    """)
    stamp("wkv")
    lg = Q(A, "lgkmcnt", 15)
    def rdw(st):
        for tl in range(2):
            for hf in range(2): A(f"ds_read_b64_tr_b16 {vr(KF+8*(st&(3 if FU else 7))+4*tl+2*hf,2)}, v219 offset:{st*1280+hf*160+tl*32}")
        lg.add(st, 4)
    PF = 3 if FU else 4
    for st in range(PF): rdw(st)
    A(f"s_cmp_ge_u32 {sNB}, 4\ns_cbranch_scc1 L_g1")
    sv = (list(lg.q), lg.done)
    for isv in range(2):
        lg.q, lg.done = list(sv[0]), sv[1]
        for st in range(10):
            if FU:
                r0 = XF+4*st
                for r in range(4): A(f"v_lshlrev_b32 v{80+2*r}, 16, v{r0+r}\nv_and_b32 v{81+2*r}, s79, v{r0+r}")
                for r in range(8): A(f"v_fma_f32 v{80+r}, v{80+r}, v78, -v79")
                for r in range(4): A(f"v_cvt_pk_bf16_f32 v{r0+r}, v{80+2*r}, v{81+2*r}")
            lg.wait(st)
            for tl in range(2):
                a_, b_ = vr(KF+8*(st&(3 if FU else 7))+4*tl,4), vr(XF+4*st,4)
                if isv: a_, b_ = b_, a_
                d = vr(ACC+4*tl, 4)
                A(f"v_mfma_f32_16x16x32_bf16 {d}, {a_}, {b_}, {'0' if st == 0 else d}")
            if st + PF < 10: rdw(st+PF)
        if not isv:
            A(f"""
            v_lshlrev_b32 v200, 8, v222
            v_lshl_add_u32 v200, v212, 4, v200
            v_lshl_add_u32 v200, v211, 3, v200
            v_add_u32 v200, {LKP}, v200
            v_lshlrev_b32 v201, 3, v212
            v_add_u32 v201, {LKP+512}, v201
            s_mov_b64 s[52:53], 0xffff
            s_branch L_g2
            L_g1:""")
        else:
            A(f"""
            v_mul_u32_u24 v200, 320, v222
            v_lshl_add_u32 v200, v212, 4, v200
            v_lshl_add_u32 v200, v211, 3, v200
            v_add_u32 v200, {LKP}, v200
            v_add_u32 v201, 256, v200
            s_mov_b32 s52, 0x000f000f
            s_mov_b32 s53, 0x000f000f""")
    A(f"""
    L_g2:
    s_cmp_eq_u32 {sKH}, 0
    s_cbranch_scc1 L_g3
    ds_write_b128 v204, {vr(ACC,4)}
    ds_write_b128 v204, {vr(ACC+4,4)} offset:1024
    ds_write_b32 v215, v216 offset:32
    s_branch L_f3
    L_g3:""")
    ldsspin(217, 219, 1, 32)
    A(f"ds_read_b128 {vr(ACC+8,4)}, v204\nds_read_b128 {vr(ACC+12,4)}, v204 offset:1024\ns_waitcnt lgkmcnt(0)")
    for r in range(8): A(f"v_add_f32 v{ACC+r}, v{ACC+r}, v{ACC+8+r}")
    for r in range(4): A(f"v_cvt_pk_bf16_f32 v{ACC+8+r}, v{ACC+2*r}, v{ACC+1+2*r}")
    A(f"""
    ds_write_b64 v200, {vr(ACC+8,2)}
    s_mov_b64 exec, s[52:53]
    ds_write_b64 v201, {vr(ACC+10,2)}
    s_mov_b32 exec_lo, -1
    s_mov_b32 exec_hi, 0xff
    ds_read_b128 v[132:135], v204 offset:{LKP-LKX}
    s_waitcnt lgkmcnt(0)
    buffer_store_dwordx4 v[132:135], v{vB}, {WS}, s50 offen sc1
    s_mov_b64 exec, -1""")
    stamp("kvst")
    def pub(n):
        A(f"v_mov_b32 v130, {sT}\nv_mov_b32 v131, {sXCC}\ns_mov_b64 exec, 1\ns_waitcnt vmcnt({n})\nbuffer_store_dwordx2 v[130:131], off, {WS}, s75 sc1\ns_mov_b64 exec, -1")
        stamp("kvpub")
    if not opt.get("pl", 0): pub(0)
    A(f"L_f3:\ns_branch L_f2\nL_f1:\nv_and_b32 v217, 7, v{vL}\nv_lshlrev_b32 v217, 2, v217\nv_add_u32 v217, {LFL}, v217")
    ldsspin(217, 219, 1)
    stamp("BX")
    wqdma(); A(f"s_waitcnt vmcnt({6 if TB >= 2 else 5})\nL_f2:\ns_setprio 0\ns_cmp_lt_u32 {sW}, 4\ns_cbranch_scc1 L_f4\ns_setprio 1\ns_branch L_f5\nL_f4:")
    xr = f"buffer_load_dwordx4 {vr(XR,4)}, v250, {X}, s63 offen\nbuffer_load_dwordx2 {vr(XR+4,2)}, v251, {X}, s63 offen offset:64\nbuffer_load_dwordx4 {vr(XR+6,4)}, v250, {X}, s63 offen offset:96"
    if opt.get("pl", 0): ifkv("L_f5")
    A(xr + "\nL_f5:")
    vm = Q(A, "vmcnt", 63)
    def kvdma(src_, dst, add, j0, j1, tag):
        for j in range(j0, j1):
            if j & 3 == 0 or j == j0: A(f"s_add_u32 m0, {dst}, {add + 1024*(j & ~3)}")
            A(f"buffer_load_dwordx4 v{vB}, {WS}, {src_} offen offset:{1024*(j&3)} {opt.get('kvsc', 'sc1')} lds"); vm.add(tag)
            if j & 3 == 3: A(f"s_add_u32 {src_}, {src_}, 4096")
    def stage1():
        kvdma("s60", "s64", 20480, 0, 5, "s1")
        A(f"s_mov_b64 exec, 0x1f\nbuffer_load_dword v254, v253, {WS}, s62 offen {opt.get('tsc', 'sc1')}\ns_mov_b64 exec, -1"); vm.add("t")
    def rdq(st, ct):
        b_, o = (218, st*10240) if st < 6 else (205, (st-6)*10240)
        for hf in range(2): A(f"ds_read_b64_tr_b16 {vr(RING+20*(st&1)+4*ct+2*hf,2)}, v{b_} offset:{o+hf*2560+ct*32}")
    for grp, (s0, s1) in enumerate(((0,3),(3,6),(6,10))):
        A("s_barrier")
        stamp(f"q{grp}")
        for ct in range(5): rdq(s0, ct)
        for st in range(s0, s1):
            for ct in range(5):
                more = st+1 < s1
                if more: rdq(st+1, ct)
                A(f"s_waitcnt lgkmcnt({10 if more else 2*(4-ct)})")
                d = vr(ACC+4*ct,4)
                A(f"v_mfma_f32_16x16x32_bf16 {d}, {vr(RING+20*(st&1)+4*ct,4)}, {vr(XF+4*st,4)}, {'0' if st == 0 else d}")
            if st == 0 and opt.get("pl", 0):
                ifkv("L_i1", False); A(f"s_cmp_lg_u32 {sKH}, 0\ns_cbranch_scc1 L_i4"); pub(0); A(f"L_i4:\ns_cmp_ge_u32 {sW}, 4\ns_cbranch_scc1 L_i1\n{xr}\nL_i1:")
            if st == opt.get("r2st", 0): wqdma()
            if st == opt.get("flst", 4):
                A(f"s_cmp_lt_u32 {sW}, 4\ns_cbranch_scc1 L_h1\nbuffer_load_dwordx2 v[234:235], v248, {WS}, 0 offen sc1\nL_h1:")
            if st == opt.get("ckst", 7):
                A(f"s_cmp_lt_u32 {sW}, 4\ns_cbranch_scc1 L_k0\ns_waitcnt vmcnt(0)\nv_cmp_ne_u32 vcc, {sT}, v234\ns_cbranch_vccnz L_k1")
                kvdma("s63", "s64", 0, 0, 5, "s0")
                A(f"buffer_load_dword v236, v232, {WS}, 0 offen sc1\ns_mov_b32 s54, 1"); tgu(0)
                A("L_k0:\nL_k1:")
            if st == opt.get("xrst", 8):
                A(f"""s_cmp_ge_u32 {sW}, 4
                s_cbranch_scc1 L_k5
                buffer_load_dwordx2 v[254:255], v248, {WS}, 0 offen sc1
                L_k5:""")
        if grp == 0: A("s_waitcnt vmcnt(5)")
        if grp == 1: A(f"s_waitcnt vmcnt(1)\ns_cmp_ge_u32 {sW}, 4\ns_cbranch_scc1 L_k2\ns_waitcnt vmcnt(0)\nL_k2:")
    stamp("q3")
    for ct in range(5):
        A(f"ds_write_b128 v206, {vr(ACC+4*ct,4)} offset:{64*ct}")
    A("s_waitcnt lgkmcnt(0)\ns_barrier")
    stamp("BQ")
    A(f"s_cmp_ge_u32 {sW}, 4\ns_cbranch_scc1 L_loader")

    A("s_setprio 1")
    for q in range(2):
        for p in range(2):
            o = 21504*p + 32*336*q; r = 144 + 24*q + 12*p
            A(f"ds_read_b128 {vr(r,4)}, v224 offset:{o}\nds_read_b128 {vr(r+4,4)}, v224 offset:{o+16}\nds_read_b128 {vr(r+8,4)}, v223 offset:{o+64}")
    A(f"s_mov_b32 s48, 0\ns_mov_b32 s49, -1\nv_mov_b32 v192, {f2u(20**-0.5 * math.log2(math.e))}\nv_cndmask_b32 v194, v192, 0, s[48:49]\nv_mov_b32 v193, v192\nv_mov_b32 v195, v194")
    for q in range(2):
        r0 = 144 + 24*q
        A(f"s_waitcnt lgkmcnt({6-6*q})")
        for r in range(0, 12, 2): A(f"v_pk_add_f32 {vr(r0+r,2)}, {vr(r0+r,2)}, {vr(r0+12+r,2)}")
        for r in range(0, 12, 2): A(f"v_pk_mul_f32 {vr(r0+r,2)}, {vr(r0+r,2)}, {vr(192 if r < 8 else 194,2)}")
        for r in range(6): A(f"v_cvt_pk_bf16_f32 v{Qm[q]+r}, v{r0+2*r}, v{r0+1+2*r}")
    stamp("qrdy")
    A("s_barrier")
    stamp("slot0")
    cur = {"K": 0, "V": 0}
    lg = Q(A, "lgkmcnt", 15)
    def rebase(key, reg, off, span):
        if off + span - cur[key] > 65535:
            A(f"v_add_u32 v{reg}, {off - cur[key]}, v{reg}"); cur[key] = off
        return off - cur[key]
    def rdK(T):
        o = rebase("K", aK, 2560*T, 0); A(f"ds_read_b128 {vr(KMb[T&1],4)}, v{aK} offset:{o}"); lg.add(("K", T))
    tcur = [0]
    def rdT(T):
        if 5*(T+1) - tcur[0] > 255:
            A(f"v_add_u32 v{aT}, {512*(5*T - tcur[0])}, v{aT}"); tcur[0] = 5*T
        A(f"ds_read2st64_b64 {vr(KTb[(T>>1)&1],4)}, v{aT} offset0:{5*T-tcur[0]} offset1:{5*T+5-tcur[0]}"); lg.add(("T", T))
    def rdV(T):
        o = rebase("V", aV, 2560*T, 3840)
        A("s_mov_b64 exec, s[76:77]")
        for i in range(4): A(f"ds_read_b128 {vr(Vb[(T>>1)&1]+4*i,4)}, v{aV} offset:{o+1280*i}")
        A("s_mov_b64 exec, -1"); lg.add(("V", T), 4)
    def m1(u):
        T, q = u >> 1, u & 1; lg.wait(("K", T))
        A(f"v_mfma_f32_32x32x16_bf16 {vr(S3[u%3],16)}, {vr(KMb[T&1],4)}, {vr(Qm[q],4)}, 0")
    def m2(u):
        T, q = u >> 1, u & 1; lg.wait(("T", T & ~1)); S = vr(S3[u%3],16)
        if opt.get("x") != "nom2": A(f"v_mfma_f32_32x32x8_bf16 {S}, {vr(KTb[(T>>1)&1]+2*(T&1),2)}, {vr(Qm[q]+4,2)}, {S}")
    def sm(u, h):
        T, q = u >> 1, u & 1; lg.wait(("V", T & ~1))
        if opt.get("x") == "nosm": return
        if opt.get("x") == "dense":
            b = S3[u%3]+8*h
            for r in range(4): A(f"v_cvt_pk_bf16_f32 v{b+r}, v{b+2*r}, v{b+2*r+1}")
            A(f"s_nop 0\nv_mfma_f32_32x32x16_bf16 {vr(O_[q],16)}, {vr(Vb[(T>>1)&1]+8*(T&1)+4*h,4)}, {vr(b,4)}, {vr(O_[q],16)}"); return
        A(f"v_smfmac_f32_32x32x32_bf16 {vr(O_[q],16)}, {vr(Vb[(T>>1)&1]+8*(T&1)+4*h,4)}, {vr(S3[u%3]+8*h,8)}, v{vIDX}")
    def EX(u, a):
        for r in range(a, a+4): A(f"v_exp_f32 v{S3[u%3]+r}, v{S3[u%3]+r}" if opt.get("x") != "noexp" else "s_nop 1")
    BARS = (12, 28, opt.get("bar2", 94))
    rdK(0); rdT(0); rdK(1); rdV(0)
    m1(0); m2(0)
    for u in range(128):
        if u % 2 == 0: stamp(f"a{u//2}")
        T = u >> 1
        if u == 28: A(f"""
    s_waitcnt vmcnt(0)
    v_cmp_ne_u32 vcc, {sT}, v254
    s_cbranch_vccz L_xok
    buffer_load_dword v255, v248, {WS}, 0 offen offset:4 sc1
    s_waitcnt vmcnt(0)
    L_xok:
    v_cmp_ne_u32 vcc, {sXCC}, v255
    s_cmp_eq_u64 vcc, 0
    s_cselect_b32 {sFAST}, {0 if force_slow else 1}, 0
""")
        if u in BARS: A("s_barrier")
        if u < 127: m1(u+1)
        if u % 2 == 0 and T + 2 < 64: rdK(T+2)
        EX(u, 0)
        if u < 127: m2(u+1)
        if u % 4 == 0 and T + 2 < 64: rdT(T+2)
        EX(u, 4)
        if u > 0: sm(u-1, 0)
        EX(u, 8)
        if u > 0: sm(u-1, 1)
        if u % 4 == 0 and T + 2 < 64: rdV(T+2)
        EX(u, 12)
    sm(127, 0); sm(127, 1)
    A("s_barrier")
    stamp("attn")
    A(f"""
    L_fbret:
    v_cndmask_b32 v144, v12, v8, s[48:49]
    v_cndmask_b32 v146, v28, v24, s[48:49]
    v_rcp_f32 v148, v144
    v_rcp_f32 v150, v146
    v_mov_b32 v149, v148
    v_mov_b32 v151, v150
    """)
    for q in range(2):
        for r in range(0, 12, 2): A(f"v_pk_mul_f32 {vr(O_[q]+r,2)}, {vr(O_[q]+r,2)}, {vr(148+2*q,2)}")
        for r in range(6): A(f"v_cvt_pk_bf16_f32 v{32+6*q+r}, v{O_[q]+2*r}, v{O_[q]+2*r+1}")
    stores([f"buffer_store_dwordx4 v[32:35], v227, {WS}, s59 offen", f"buffer_store_dwordx4 v[38:41], v227, {WS}, s61 offen", "s_mov_b32 exec_hi, 0",
            f"buffer_store_dwordx2 v[36:37], v226, {WS}, s58 offen", f"buffer_store_dwordx2 v[42:43], v226, {WS}, s60 offen"])
    A("s_mov_b32 exec_hi, -1")
    stamp("opre")
    for r in range(0, 12, 2): A(f"v_pk_add_f32 {vr(r,2)}, {vr(r,2)}, {vr(16+r,2)}")
    A(f"""
    v_min_f32 v148, v144, v146
    v_max_f32 v149, v144, v146
    v_pk_add_f32 v[0:1], v[0:1], v[2:3]
    v_pk_add_f32 v[4:5], v[4:5], v[6:7]
    v_pk_add_f32 v[8:9], v[8:9], v[10:11]
    v_cmp_nle_f32 s[50:51], s66, v148
    v_pk_add_f32 v[0:1], v[0:1], v[4:5]
    v_cmp_nge_f32 s[52:53], s67, v149
    v_pk_add_f32 v[0:1], v[0:1], v[8:9]
    v_add_f32 v144, v144, v146
    v_add_f32 v0, v0, v1
    v_add_f32 v0, |v0|, v144
    s_or_b64 s[50:51], s[50:51], s[52:53]
    v_cmp_nge_f32 vcc, {f2u(2.0**126)}, v0
    s_or_b64 s[50:51], s[50:51], vcc
    s_cmp_{'eq' if force_fb else 'lg'}_u64 s[50:51], 0
    s_cselect_b32 s65, 1, 0
    s_cmp_gt_u32 s65, {1 if opt.get("x") else "s64"}
    s_cbranch_scc1 L_fallback
    """)
    AC3, R3 = 80, (100, 120, 140, 200)
    lg = Q(A, "lgkmcnt", 15); vm = Q(A, "vmcnt", 63)
    def rd3(st, ct):
        b, o = (220, st*5120) if st < 10 else (225, (st-10)*5120)
        for hf in range(2): A(f"ds_read_b64_tr_b16 {vr(R3[st&3]+4*ct+2*hf,2)}, v{b} offset:{o+hf*2560+ct*32}")
        lg.add((st, ct), 2)
    for st in (19, 18):
        for ct in range(5): rd3(st, ct)
    flag("s56")
    stamp("oflag")
    for e in range(opt.get("nw1", 2)):
        for j in range(5): A(f"buffer_load_dwordx4 {vr(160+20*e+4*j,4)}, v{WOFF+j}, {WD}, s55 offen")
        A("s_add_u32 s55, s55, 40960")
    for st in (17, 16):
        for ct in range(5): rd3(st, ct)
    A(f"""
    v_permlane16_swap_b32 v{XR}, v{XR+2}
    v_permlane16_swap_b32 v{XR+1}, v{XR+3}
    v_permlane16_swap_b32 v{XR+6}, v{XR+8}
    v_permlane16_swap_b32 v{XR+7}, v{XR+9}
    s_mov_b32 s79, 0xffff0000
    v_and_b32 v221, 15, v{vL}
    v_lshrrev_b32 v222, 5, v{vL}
    v_bfe_u32 v223, v{vL}, 4, 1
    v_lshlrev_b32 v228, 4, v221
    v_lshl_add_u32 v227, v222, 9, v228
    v_lshl_add_u32 v226, v223, 10, v227
    v_lshl_add_u32 v227, v223, 3, v227
    s_lshl_b32 s56, {sB}, 1
    s_add_u32 s56, s56, {sTT}
    s_lshl_b32 s61, {sKH}, 8
    s_mul_i32 s60, s56, 40960
    s_add_u32 s60, s60, s61
    s_mul_i32 s58, {sNB}, 5120
    s_add_u32 s60, s60, s58
    s_add_u32 s60, s60, {HB}
    s_lshl_b32 s58, s56, 11
    s_add_u32 s58, s58, s61
    s_lshr_b32 s59, {sNB}, 1
    s_lshl_b32 s59, s59, 9
    s_add_u32 s58, s58, s59
    s_and_b32 s59, {sNB}, 1
    s_lshl_b32 s59, s59, 3
    s_add_u32 s58, s58, s59
    s_add_u32 s58, s58, {WS_HS}
    s_lshl_b32 s56, s56, 7
    s_lshl_b32 s59, {sNB}, 3
    s_add_u32 s56, s56, s59
    s_lshl_b32 s59, {sKH}, 2
    s_add_u32 s56, s56, s59
    s_add_u32 s56, s56, {WS_F3}
    """)
    for r in range(10): A(f"v_lshlrev_b32 v{AC3+2*r}, 16, v{XR+r}\nv_and_b32 v{AC3+2*r+1}, s79, v{XR+r}")
    poll(229, 223, "s62")
    stamp("S2")
    def ld3(st):
        A(f"buffer_load_dwordx4 {vr(4*st,4)}, v{vB}, {WS}, s57 offen offset:{1024*(st&3)} sc1"); vm.add(st)
        if st & 3 == 0 and st > 0: A("s_sub_u32 s57, s57, 4096")
    NI3, DEP3 = opt.get("p3init", 8), opt.get("p3dep", 12); n3 = [19 - NI3]
    for st in range(19, 19-NI3, -1): ld3(st)
    lg.all()
    stamp("p3i")
    for st in range(19, -1, -1):
        vm.wait(st)
        stamp(f"p3s{st}")
        for ct in range(5):
            lg.wait((st, ct)); d = vr(AC3+4*ct,4)
            if st == 8 and ct == 4: A("s_barrier")
            A(f"v_mfma_f32_16x16x32_bf16 {d}, {vr(R3[st&3]+4*ct,4)}, {vr(4*st,4)}, {d}")
            if ct in (0, 2) and n3[0] >= max(0, st - DEP3): ld3(n3[0]); n3[0] -= 1
            if st - 4 >= 0: rd3(st-4, ct)
    stamp("p3mm")
    for r in range(10): A(f"v_cvt_pk_bf16_f32 v{16+r}, v{AC3+2*r}, v{AC3+2*r+1}")
    A(f"""
    v_permlane16_swap_b32 v16, v18
    v_permlane16_swap_b32 v17, v19
    v_permlane16_swap_b32 v22, v24
    v_permlane16_swap_b32 v23, v25""")
    stores([f"buffer_store_dwordx4 v[16:19], v226, {HSRD}, s60 offen",
            f"buffer_store_dwordx2 v[20:21], v227, {HSRD}, s60 offen offset:2048",
            f"buffer_store_dwordx4 v[22:25], v226, {HSRD}, s60 offen offset:3072"])
    A(f"v_pk_add_f32 v[12:13], {vr(AC3,2)}, {vr(AC3+2,2)}\nv_pk_mul_f32 v[14:15], {vr(AC3,2)}, {vr(AC3,2)}")
    for r in range(1, 10):
        if r > 1: A(f"v_pk_add_f32 v[12:13], v[12:13], {vr(AC3+2*r,2)}")
        A(f"v_pk_fma_f32 v[14:15], {vr(AC3+2*r,2)}, {vr(AC3+2*r,2)}, v[14:15]")
    A(f"""
    v_add_f32 v12, v12, v13
    v_add_f32 v13, v14, v15
    v_mov_b32 v14, v12
    v_mov_b32 v15, v13
    v_permlane16_swap_b32 v12, v14
    v_permlane16_swap_b32 v13, v15
    v_pk_add_f32 v[12:13], v[12:13], v[14:15]
    v_mov_b32 v14, v12
    v_mov_b32 v15, v13
    v_permlane32_swap_b32 v12, v14
    v_permlane32_swap_b32 v13, v15
    v_pk_add_f32 v[12:13], v[12:13], v[14:15]
    s_mov_b64 exec, 0xffff
    """)
    stores([f"buffer_store_dwordx2 v[12:13], v228, {WS}, s58 offen"])
    A("s_mov_b64 exec, -1")
    stamp("p3pre")
    for r in range(10): A(f"v_cvt_pk_bf16_f32 v{XR+r}, v{AC3+2*r}, v{AC3+2*r+1}")
    p4pro()
    flag("s56")
    stamp("hpub")
    A("s_barrier")
    def ldma():
        for j in range(5): A(f"s_add_u32 m0, s60, {1024*j}\nbuffer_load_dwordx4 v{WOFF+j}, {WD}, s55 offen lds")
        A("s_add_u32 s55, s55, 40960")
    ldma()
    A(f"v_add_u32 v222, s60, v{vB}\nv_add_u32 v223, s60, v220")
    A("s_branch L_p4")

    A("L_loader:\ns_setprio 2")
    def touch(srd_, soff, nl, add=0, dst=254):
        A(f"s_add_u32 s78, {soff}, {add}\ns_mov_b32 exec_hi, {(1 << (nl-32)) - 1}\nbuffer_load_dword v{dst}, v253, {srd_}, s78 offen\ns_mov_b32 exec_hi, -1"); vm.add("t")
    A("s_cmp_eq_u32 s54, 1\ns_cbranch_scc1 L_l0")
    poll(248, 234, x2=True)
    kvdma("s63", "s64", 0, 0, 5, "s0")
    A(f"buffer_load_dword v236, v232, {WS}, 0 offen sc1"); tgu(0)
    A("L_l0:\ns_waitcnt vmcnt(2)\ns_barrier")
    stamp("slot0")
    A(f"""
    s_waitcnt vmcnt(1)
    v_cmp_ne_u32 vcc, {sT}, v236
    s_cbranch_vccz L_l1""")
    poll(232, 236)
    A("L_l1:")
    vm.q, vm.done = [], 0
    stage1()
    A(f"""
    L_l2:
    v_cmp_ne_u32 vcc, {sXCC}, v235
    s_nop 1
    s_cmp_eq_u64 vcc, 0
    s_cselect_b32 {sFAST}, {0 if force_slow else 1}, 0""")
    A(f"buffer_load_dword v237, v233, {WS}, 0 offen sc1"); vm.add("fb")
    NB0 = opt.get("nb0", 6)
    kvdma("s61", "s56", 0, 0, NB0, "s2")
    vm.wait("fb")
    stamp("l_s1")
    A(f"v_cmp_ne_u32 vcc, {sT}, v237\ns_mov_b64 exec, 7\ns_cbranch_vccnz L_l4\nbuffer_load_dword v254, v253, {WS}, s58 offen {opt.get('tsc', 'sc1')}\nL_l4:\ns_mov_b64 exec, -1")
    NB1 = opt.get("nb1", 16)
    kvdma("s61", "s56", 0, NB0, NB1, "s2")
    stamp("l_b1"); A("s_barrier"); stamp("l_b1x")
    kvdma("s61", "s56", 0, NB1, 20, "s2")
    A(f"v_cmp_ne_u32 vcc, {sT}, v237\ns_cbranch_vccz L_l3")
    poll(233, 237)
    A("L_l3:"); stamp("l_f6")
    kvdma("s59", "s57", 0, 0, 10, "s6")
    def lgu(s):
        for p in (2*s, 2*s+1):
            A(f"s_mov_b32 s78, {p*2*98304}")
            for i in range(3): A(f"buffer_load_dwordx4 {vr(12*p+4*i,4)}, v{GOFF+i}, {GU}, s78 offen")
        vm.add(("g", s), 6)
    def wdma(p):
        for j in range(5): A(f"s_add_u32 m0, s64, {1024*j}\nbuffer_load_dwordx4 v{WOFF+j}, {WD}, s55 offen lds")
        A("s_add_u32 s55, s55, 40960"); vm.add(("w", p), 5)
    def wrd(p):
        vm.wait(("w", p)); tr5(120+20*p, 0, 0, 249); A("s_waitcnt lgkmcnt(0)")
    def ctouch(): A("s_mov_b64 exec, 15\nglobal_load_dword v254, v255, s[80:81]\ns_mov_b64 exec, -1"); vm.add("t")
    def twd(ps):
        for p in ps: A(f"s_add_u32 s78, s74, {40960*p}\ns_mov_b64 exec, 0x3ff\nbuffer_load_dword v254, v253, {WD}, s78 offen\ns_mov_b64 exec, -1"); vm.add("t")
    lgu(0); twd([0]); tgu(1, vm); twd([1])
    vm.wait("s6"); stamp("l_kv"); A("s_barrier")
    for p in range(4):
        wdma(p)
        if p < 3: tgu(p+2, vm)
        else: touch(WO, "s67", 50, 0)
        twd([p+2])
        if p in opt.get("ct", (1, 3)): ctouch()
        lgu(p+1)
        wrd(p); stamp(f"l_r{p}")
    stamp("l_gu")
    wdma(4); wrd(4)
    A(f"""
    s_cmp_eq_u32 {sFAST}, 0
    s_cbranch_scc1 L_npt
    s_lshl_b32 s78, {sXCD}, 5
    s_add_u32 s78, s78, {sIDX}
    s_lshl_b32 s78, s78, 2
    s_add_u32 s78, s78, {sQ}
    s_lshr_b32 s79, s78, 3
    s_mul_i32 s79, s79, 49152
    s_add_u32 s79, s79, {WS_HP}
    s_and_b32 s76, s78, 7
    s_mul_i32 s77, s76, 3584
    s_mul_i32 s76, s76, 2560
    s_add_u32 s76, s76, s79
    s_add_u32 s79, s79, s77
    s_add_u32 s79, s79, 20480
    v_add_u32 v248, s79, v253
    s_lshl_b32 s79, s78, 7
    s_add_u32 s79, s79, {WS_HS}
    v_writelane_b32 v248, s79, 28
    s_mul_i32 s78, s78, 2560
    s_add_u32 s77, s78, {HB}
    s_add_u32 s78, s78, {WS_O}
    s_mov_b64 exec, 0xfffff
    buffer_load_dword v254, v253, {WS}, s76 offen sc1""")
    if not ALIAS: A(f"buffer_load_dword v254, v253, {WS}, s78 offen sc1")
    HO = opt.get("ho", 1)
    t1 = f"s_mov_b64 exec, 0xfffff\nbuffer_load_dword v247, v253, {HSRD}, s77 offen sc1"
    t2 = f"s_mov_b64 exec, 0x1fffffff\nbuffer_load_dword v247, v248, {WS}, 0 offen sc1"
    if HO < 2: A(t1)
    if HO < 1: A(t2)
    A(f"s_mov_b64 exec, -1\nL_npt:")
    vm.q, vm.done = [], 0
    A(f"s_mul_i32 s57, {sQ}, 40960")
    stamp("l_wd")
    A("s_barrier")
    def wo(p):
        A(f"s_add_u32 s78, s57, {4*40960*p}")
        for j in range(5): A(f"s_add_u32 m0, s64, {20480*p+1024*j}\nbuffer_load_dwordx4 v{WOFF+j}, {WO}, s78 offen lds")
        vm.add("wo", 5)
    wo(4); wo(3)
    wdma(5); wo(2); wrd(5); wo(1); wo(0)
    if 5 in opt.get("ct", (5,)): A("s_mov_b64 exec, 15\nglobal_load_dword v247, v255, s[80:81]\ns_mov_b64 exec, -1"); vm.add("t")
    touch(WD, "s66", 60, 983040, 247)
    GI = 249
    A(f"s_cmp_eq_u32 {sFAST}, 0\ns_cbranch_scc1 L_npu")
    if HO >= 2: A(t1)
    if HO >= 1: A(t2)
    A(f"s_mov_b64 exec, -1\ns_waitcnt vmcnt({2+HO})\ns_branch L_npv\nL_npu:\ns_waitcnt vmcnt(2)\nL_npv:")
    stamp("l_wo")
    A("s_setprio 0\ns_barrier")
    A(f"""
    s_mul_i32 s78, {sKH}, 6144
    s_lshr_b32 s79, {sQ}, 1
    s_mul_i32 s79, s79, 384
    s_add_u32 s78, s78, s79
    s_add_u32 s78, s78, {LGU+61440}""")
    for i in range(3):
        A(f"""
        v_and_b32 v248, 31, v{vL}
        v_add_u32 v248, {32*i}, v248
        v_mul_u32_u24 v252, 10923, v248
        v_lshrrev_b32 v252, 18, v252
        v_mul_u32_u24 v252, 384, v252
        v_lshl_add_u32 v252, v248, 4, v252
        v_lshrrev_b32 v248, 5, v{vL}
        v_mul_u32_u24 v248, 3072, v248
        v_add3_u32 v{GI+i}, v248, v252, s78""")
    for p in (9, 8, 7, 6):
        for i in range(3): A(f"ds_write_b128 v{GI+i}, {vr(12*p+4*i,4)} offset:{12288*(p-5)}")
    SEL, CSA = 252, 108
    A(f"""
    v_bfe_u32 v248, v{vL}, 3, 1
    v_bfe_u32 v255, v{vL}, 4, 1
    v_cmp_eq_u32 vcc, v248, v255
    v_and_b32 v248, 1, v{vL}
    v_lshlrev_b32 v248, 4, v248
    v_mov_b32 v{SEL}, 0x3f80
    v_lshlrev_b32 v248, v248, v{SEL}
    v_bfe_u32 v255, v{vL}, 1, 2
    v_cndmask_b32 v248, 0, v248, vcc""")
    for r in range(4): A(f"v_cmp_eq_u32 vcc, {r}, v255\nv_cndmask_b32 v{SEL+r}, 0, v248, vcc")
    A("s_waitcnt lgkmcnt(0)")
    for p in range(9, -1, -1):
        for i in range(3):
            d = vr(CSA+4*i,4)
            A(f"v_mfma_f32_16x16x32_bf16 {d}, {vr(SEL,4)}, {vr(12*p+4*i,4)}, {'0' if p == 9 else d}")
    A(f"""
    s_mul_i32 s78, {sQ}, 3072
    s_add_u32 s78, s78, {LGU+61440}
    v_lshlrev_b32 v100, 2, v{vL}
    v_add_u32 v101, s78, v100
    v_and_b32 v248, 15, v{vL}
    v_lshrrev_b32 v102, 5, v{vL}
    v_lshl_add_u32 v248, v102, 4, v248
    v_and_b32 v102, 16, v{vL}
    v_lshl_add_u32 v248, v248, 5, v102
    v_add_u32 v248, s78, v248
    s_lshl_b32 s79, s2, 2
    s_add_u32 s79, s79, {sQ}
    s_lshl_b32 s79, s79, 8
    s_add_u32 s79, s79, {WS_CS}""")
    for i in range(3): A(f"ds_write_b128 v248, {vr(CSA+4*i,4)} offset:{1024*i}")
    for r in range(16): A(f"ds_read_b32 v{84+r}, v101 offset:{192*r}")
    for i in range(3): A(f"v_subrev_u32 v{GI+i}, 61440, v{GI+i}")
    A("s_waitcnt lgkmcnt(0)")
    for s in (8, 4, 2, 1):
        for r in range(s): A(f"v_add_f32 v{84+r}, v{84+r}, v{84+s+r}")
    A(f"buffer_store_dword v84, v100, {WS}, s79 offen\ns_waitcnt vmcnt(0)\nbuffer_load_dword v254, v100, {WS}, s79 offen sc1")
    p4pro()
    stamp("l_g1")
    A("s_barrier")
    for p in range(6):
        for i in range(3): A(f"ds_write_b128 v{GI+i}, {vr(12*p+4*i,4)} offset:{12288*p}")
    A("s_waitcnt lgkmcnt(0)\ns_setprio 2")
    stamp("l_g0")
    A("s_barrier")

    A("L_p4:")
    stamp("GB")
    lg = Q(A, "lgkmcnt", 15); vm = Q(A, "vmcnt", 63)
    def rdA4(st, i):
        if st % 20 == 0 and i == 0: A(f"v_add_u32 v{aA}, {61440*(st//20)}, v{aA0}")
        for hf in range(2): A(f"ds_read_b64_tr_b16 {vr(AR4+12*(st%NA4)+4*i+2*hf,2)}, v{aA} offset:{(st%20)*3072+hf*768+i*32}")
        lg.add((st, i), 2)
    for st in range(NA4-1):
        for i in range(3): rdA4(st, i)
    poll(115, 114, "s57")
    stamp("S3")
    def ldB4(st):
        A(f"buffer_load_dwordx4 {vr(BR4+4*(st%NB4),4)}, v{vB}, {HSRD}, s59 offen offset:{1024*(st&3)} sc1"); vm.add(st)
        if st & 3 == 3: A("s_add_u32 s59, s59, 4096")
    NI, DEP = opt.get("p4init", 3), opt.get("p4dep", 6)
    for st in range(NI): ldB4(st)
    nld = NI
    stamp("p4issued")
    SST, SDM = 8, 40 - DEP
    for st in range(40):
        vm.wait(st)
        stamp(f"p4s{st}")
        for i in range(3):
            if st + NA4 - 1 < 40: rdA4(st+NA4-1, i)
            lg.wait((st, i)); d = vr(AC4+16*i,16)
            A(f"v_mfma_f32_32x32x16_bf16 {d}, {vr(AR4+12*(st%NA4)+4*i,4)}, {vr(BR4+4*(st%NB4),4)}, {'0' if st == 0 else d}")
            if i < 2 and nld < min(40, st + 1 + DEP): ldB4(nld); nld += 1
        if st == 2: A(f"s_mul_i32 s65, {sKH}, 49152\nv_add_u32 v251, s65, v{vB}\ns_sub_u32 s65, 49152, s65\nv_add_u32 v252, s65, v{vB}")
        if st == 3: csaddr(250, 247)
        if st == 4:
            A(f"s_lshl_b32 s78, s2, 10\ns_add_u32 s78, s78, {WS_CS}")
            for i in range(3): A(f"buffer_load_dword v{253+i}, v250, {WS}, s78 offen offset:{64*i} sc1"); vm.add("cs")
        if st in (16, 24):
            vm.wait(("st", st))
            if st == 16: A(f"v_add_f32 v{vNM}, v112, v114\nv_add_f32 v{vVAR}, v113, v115")
            else: A(f"v_add_f32 v112, v112, v114\nv_add_f32 v113, v113, v115\nv_add_f32 v{vNM}, v{vNM}, v112\nv_add_f32 v{vVAR}, v{vVAR}, v113")
        if st in (8, 16): A(f"buffer_load_dwordx4 v[112:115], v{vST}, {WS}, s58 offen offset:{64*(st-8)} sc1"); vm.add(("st", st+8))
        if SDM <= st < SDM + 5:
            j = st - SDM
            A(f"s_add_u32 m0, s60, {1024*j}\nbuffer_load_dwordx4 v{WOFF+j}, {WD}, s61 offen lds"); vm.add("dma")
        LS = opt.get("ls", (5, 9, 17, 21, 25))
        if st in LS:
            A(f"s_cmp_ge_u32 {sW}, 4\ns_cbranch_scc1 L_ls{st}")
            k = LS.index(st)
            if k == 1: ldma()
            else: tr5((120, 0, 140, 160, 180)[k], k > 2, 222, 223)
            A(f"L_ls{st}:")
        c1 = -2*math.sqrt(2/math.pi)*math.log2(math.e); c2 = c1*0.044715
        if st == 28: A(f"""
            v_mov_b32 v114, v{vNM}
            v_mov_b32 v115, v{vVAR}
            v_permlane32_swap_b32 v{vNM}, v114
            v_permlane32_swap_b32 v{vVAR}, v115
            v_add_f32 v{vNM}, v{vNM}, v114
            v_add_f32 v{vVAR}, v{vVAR}, v115
            v_mul_f32 v{vNM}, {f2u(-1/640)}, v{vNM}
            v_mul_f32 v{vVAR}, {f2u(1/640)}, v{vVAR}""")
        if st == 29: A(f"""
            v_fma_f32 v{vVAR}, -v{vNM}, v{vNM}, v{vVAR}
            v_max_f32 v{vVAR}, 0, v{vVAR}
            v_add_f32 v{vVAR}, {f2u(1e-5)}, v{vVAR}
            v_rsq_f32 v{vRS}, v{vVAR}
            v_cvt_pk_bf16_f32 v114, v{vNM}, v{vNM}
            v_and_b32 v115, 0xffff0000, v114
            v_sub_f32 v115, v{vNM}, v115""")
        if st == 30: A(f"""
            v_mul_f32 v119, {f2u(c1)}, v{vRS}
            v_mul_f32 v116, v{vRS}, v{vRS}
            v_mul_f32 v116, v116, v{vRS}
            v_mul_f32 v116, {f2u(c2)}, v116
            s_mul_i32 s58, s68, 98304
            s_mul_i32 s78, {sIDX}, 1536
            s_add_u32 s58, s58, s78
            s_add_u32 s58, s58, {WS_HP}
            s_lshl_b32 s56, s68, 7
            s_lshl_b32 s78, {sIDX}, 2
            s_add_u32 s56, s56, s78
            s_add_u32 s56, s56, {WS_F4}""")
        if st == 31: A(f"""
            v_and_b32 v112, 15, v{vL}
            v_bfe_u32 v113, v{vL}, 4, 1
            v_lshrrev_b32 v114, 5, v{vL}
            v_mul_u32_u24 v113, 49152, v113
            v_lshl_add_u32 v113, v112, 4, v113
            v_lshl_add_u32 v113, v114, 8, v113""")
        if st == 35: A(f"v_cvt_pk_bf16_f32 v104, v{vNM}, v115\nv_mov_b32 v106, 0\nv_mov_b32 v107, 0\nv_mov_b32 v105, v104")
        if st == 38:
            A("v_mov_b32 v117, v113")
            for i in range(3):
                A(f"""v_cvt_pk_bf16_f32 v{60+4*i}, v{253+i}, v{253+i}
                v_and_b32 v114, 0xffff0000, v{60+4*i}
                v_sub_f32 v114, v{253+i}, v114
                v_cvt_pk_bf16_f32 v{61+4*i}, v114, v114
                v_mov_b32 v{62+4*i}, 0
                v_mov_b32 v{63+4*i}, 0""")
        if st == opt.get("f4st", 39): A(f"buffer_load_dword v112, v{vF4}, {WS}, s62 offen sc1"); vm.add("f4")
    assert nld == 40
    stamp("p4mm")
    F0, AC5 = 0, 20
    BL = {1: [[60+8*u for u in range(7)]]*2, 0: [[92, 100, 108, 200, 208], [60, 68, 76, 84, 216]]}
    WR = {1: [F0] + [120+20*u for u in range(6)], 0: [F0, 160, 180, 120, 140]}
    def ldB5(role, ps, vmq):
        if ps == 0: A(f"s_mul_i32 s65, {sQ}, {(6, 4)[1-role]*1024}\ns_add_u32 s65, s65, s63" + ("" if role else f"\ns_add_u32 s65, s65, {24*1024}"))
        else: A(f"s_add_u32 s64, s64, 98304\ns_add_u32 s65, s65, {98304 - (4096 if role else 0)}")
        for u in range(len(WR[role])):
            if u == 5: A("s_add_u32 s65, s65, 4096")
            for tt in range(2):
                A(f"buffer_load_dwordx4 {vr(BL[role][ps][u]+4*tt,4)}, v{251+tt}, {WS}, {'s64' if u == 0 else 's65'} offen offset:{1024*((u-1)&3) if u else 0} sc1")
            vmq.add((ps, u), 2)
    for i in range(3):
        d = vr(AC4+16*i,16)
        A(f"v_mfma_f32_32x32x16_bf16 {d}, {vr(60+4*i,4)}, v[104:107], {d}")
    A(f"s_cmp_lt_u32 {sW}, 4\ns_cbranch_scc1 L_ep\ns_setprio 0\nL_ep:")
    def f4chk():
        lx_, ly_ = L("x"), L("y")
        A(f"s_cmp_ge_u32 {sW}, 4\ns_cbranch_scc1 {lx_}")
        vm.wait("f4")
        A(f"v_cmp_ne_u32 vcc, {sT}, v112\ns_cbranch_vccz {ly_}")
        poll(vF4, 112, "s62")
        A(f"{ly_}:")
        ldB5(0, 0, Q(A, "vmcnt", 63))
        A(f"{lx_}:")
    T0 = 72
    for i in range(3):
        g, u, t = AC4+16*i, AC4+16*i+8, T0
        if i == opt.get("f4i", 1): f4chk()
        for r in range(8): A(f"v_mul_f32 v{t+r}, v{g+r}, v{g+r}")
        for r in range(8): A(f"v_fma_f32 v{t+r}, v{t+r}, v116, v119")
        for r in range(8): A(f"v_mul_f32 v{t+r}, v{t+r}, v{g+r}")
        for r in range(8): A(f"v_exp_f32 v{t+r}, v{t+r}")
        for r in range(8): A(f"v_mul_f32 v{u+r}, v{u+r}, v{g+r}")
        for r in range(8): A(f"v_fma_f32 v{t+r}, v{t+r}, v{vVAR}, v{vVAR}")
        for r in range(8): A(f"v_rcp_f32 v{t+r}, v{t+r}")
        for r in range(8): A(f"v_mul_f32 v{u+r}, v{u+r}, v{t+r}")
        for r in range(4): A(f"v_cvt_pk_bf16_f32 v{80+4*i+r}, v{u+2*r}, v{u+2*r+1}")
    stamp("p4pre")
    stores([f"buffer_store_dwordx4 {vr(80+4*i,4)}, v117, {WS}, s58 offen offset:{512*i}" for i in range(3)])
    aW, a0, aP0, aP1 = 248, 249, 250, 253
    A(f"v_add_u32 v{aW}, s60, v{vB}")
    trA(a0, "s60")
    A(f"""
    s_mul_i32 s78, {sKH}, 40960
    s_add_u32 s79, s78, 40960
    v_add_u32 v{aP0}, s79, v{aW}
    s_sub_u32 s79, 81920, s78
    v_add_u32 v{aP1}, s79, v{aW}
    s_waitcnt vmcnt(3)
    s_cmp_ge_u32 {sW}, 4
    s_cbranch_scc1 L_p5l""")
    def mm5(role, ps, vmq, hook=None):
        for u in range(len(WR[role])):
            if vmq: vmq.wait((ps, u))
            stamp(f"p5s{ps}{u}")
            for ct in range(5):
                for tt in range(2):
                    d = vr(AC5+20*tt+4*ct,4)
                    A(f"v_mfma_f32_16x16x32_bf16 {d}, {vr(WR[role][u]+4*ct,4)}, {vr(BL[role][ps][u]+4*tt,4)}, {d if (u or (tt == 0 and not role)) else '0'}")
            if hook: hook(u)
    def flush(ps, mid=""):
        for tt in range(2):
            if tt: A(mid)
            for ct in range(5): A(f"ds_write_b128 v{(aP0, aP1)[tt]}, {vr(AC5+20*tt+4*ct,4)} offset:{1024*ct}")
        if ps == 0:
            A(f"s_mul_i32 s78, {sKH}, 122880\nv_add_u32 v{aP0}, s78, v{aW}\ns_sub_u32 s78, 122880, s78\nv_add_u32 v{aP1}, s78, v{aW}")
    def resid(ps):
        A(f"s_cmp_eq_u32 {sTT}, {ps}\ns_cselect_b32 s78, 0xffff0000, 0\ns_cselect_b32 s79, 0x10000, 0")
        for r in range(10): A(f"v_mul_u32_u24 v{AC5+2*r}, s79, v{XR+r}\nv_and_b32 v{AC5+2*r+1}, s78, v{XR+r}")
    A("s_add_u32 s62, s62, 128")
    tr5(F0, 0, aW, a0)
    resid(0)
    flag("s56")
    if opt.get("wt", 0) & 2:
        for i in range(3): A(f"buffer_store_dwordx4 {vr(80+4*i,4)}, v117, {WS}, s58 offen offset:{512*i} {opt.get('wtf', 'sc1')}")
    stamp("hppub")
    A("s_barrier")
    stamp("BG")
    A("s_waitcnt lgkmcnt(0)")
    def hk(u):
        if u == 2: A(f"buffer_load_dword v112, v{vF4}, {WS}, s62 offen sc1")
    mm5(0, 0, None, hk)
    stamp("p5a")
    lz = L("z")
    A(f"s_waitcnt vmcnt(0)\nv_cmp_ne_u32 vcc, {sT}, v112\ns_cbranch_vccz {lz}")
    flush(0)
    poll(vF4, 112, "s62")
    vm = Q(A, "vmcnt", 63); ldB5(0, 1, vm)
    A(f"s_branch {lz}b\n{lz}:")
    vm = Q(A, "vmcnt", 63); ldB5(0, 1, vm)
    flush(0)
    A(f"{lz}b:")
    stamp("S4")
    resid(1)
    mm5(0, 1, vm)
    A("s_branch L_p5e\nL_p5l:")
    tr5(F0, 0, aW, a0)
    flag("s56")
    if opt.get("wt", 0) & 1:
        for i in range(3): A(f"buffer_store_dwordx4 {vr(80+4*i,4)}, v117, {WS}, s58 offen offset:{512*i} {opt.get('wtf', 'sc1')}")
    stamp("hppub")
    A("s_setprio 0")
    poll(vF4, 112, "s62")
    stamp("S4e")
    vm = Q(A, "vmcnt", 63); ldB5(1, 0, vm)
    A("s_add_u32 s62, s62, 128\ns_waitcnt lgkmcnt(0)")
    mm5(1, 0, vm)
    stamp("p5a")
    A("s_barrier")
    stamp("BG")
    flush(0)
    A("s_setprio 1")
    poll(vF4, 112, "s62")
    stamp("S4")
    ldB5(1, 1, vm)
    mm5(1, 1, vm)
    A("L_p5e:")
    stamp("p5mm")
    flush(1)
    A(f"""
    s_add_u32 s78, {sQ}, 1
    s_cmp_eq_u32 {sQ}, 2
    s_cselect_b32 s78, 0, s78
    s_min_u32 s78, s78, 3
    s_mul_i32 s78, s78, 40960
    s_mul_i32 s79, {sTH}, 3072
    s_add_u32 s78, s78, s79
    v_add_u32 v1, s78, v{vB}
    v_and_b32 v2, 15, v{vL}
    v_lshrrev_b32 v3, 4, v{vL}
    v_mul_u32_u24 v2, 1280, v2
    v_lshl_add_u32 v5, v3, 3, v2
    v_and_b32 v4, 1, v3
    v_lshrrev_b32 v3, 1, v3
    v_lshl_add_u32 v2, v4, 5, v2
    v_lshl_add_u32 v4, v3, 4, v2
    s_lshl_b32 s56, {sB}, 2
    s_add_u32 s56, s56, {sQ}
    s_mul_i32 s56, s56, {16*1280}
    s_mul_i32 s57, {sNB}, 160
    s_add_u32 s56, s56, s57
    s_mul_i32 s57, {sTH}, 96
    s_add_u32 s56, s56, s57
    s_waitcnt lgkmcnt(0)
    s_barrier
    """)
    stamp("p5x")
    ost = (lambda l: A(l[0] + " sc1")) if opt.get("wt", 0) & 4 else stores
    l5, l6 = L("t5"), L("t6")
    for c in range(3):
        if c == 2: A(f"s_cmp_eq_u32 {sTH}, 1\ns_cbranch_scc1 {l5}")
        for q in range(8): A(f"ds_read_b128 {vr(64+32*c+4*q,4)}, v1 offset:{1024*c+5120*q}")
    A(f"{l5}:")
    for c in range(3):
        r = 64+32*c
        A(f"s_waitcnt lgkmcnt({8 if c == 0 else 0})")
        for s in (16, 8, 4):
            for k in range(0, s, 2): A(f"v_pk_add_f32 {vr(r+k,2)}, {vr(r+k,2)}, {vr(r+s+k,2)}")
        A(f"v_cvt_pk_bf16_f32 v{10+2*c}, v{r}, v{r+1}\nv_cvt_pk_bf16_f32 v{11+2*c}, v{r+2}, v{r+3}")
        if c == 1:
            A("v_permlane16_swap_b32 v10, v12\nv_permlane16_swap_b32 v11, v13")
            ost([f"buffer_store_dwordx4 v[10:13], v4, {OUT}, s56 offen"])
            A(f"s_cmp_eq_u32 {sTH}, 1\ns_cbranch_scc1 {l6}")
    ost([f"buffer_store_dwordx2 v[14:15], v5, {OUT}, s56 offen offset:64"])
    A(f"{l6}:")
    le = L("ep")
    A(f"""
    s_add_u32 s78, s2, {sW}
    s_cmp_lg_u32 s78, 0
    s_cbranch_scc1 {le}
    v_mov_b32 v46, {sT}
    s_mov_b64 exec, 1
    buffer_store_dword v46, off, {WS}, 0 sc1
    s_mov_b64 exec, -1
    {le}:""")
    if opt.get("dbgclk"):
        A(f"""s_waitcnt vmcnt(0)
        s_and_b32 s78, s2, 63
        s_add_u32 s78, s78, {sW}
        s_cmp_lg_u32 s78, 0
        s_cbranch_scc1 L_exit
        s_memtime s[88:89]
        s_memrealtime s[90:91]
        s_waitcnt lgkmcnt(0)
        s_sub_u32 s88, s88, s84
        v_mov_b32 v0, s88
        v_mov_b32 v1, s86
        v_mov_b32 v2, s90
        v_mov_b32 v3, {sFAST}
        s_lshr_b32 s78, s2, 2
        s_mov_b64 exec, 1
        buffer_store_dwordx4 v[0:3], off, s[92:95], s78""")
    if diag:
        A("s_waitcnt vmcnt(0)")
        stamp("end")
        A(f"s_lshl_b32 s78, s2, 3\ns_add_u32 s78, s78, {sW}\ns_lshl_b32 s78, s78, 6\ns_add_u32 s78, s78, {WS_DBG}\ns_mov_b64 exec, 1")
        A(f"s_mov_b32 s99, {sFAST}")
        for i in range(16): A(f"v_mov_b32 v{i}, s{84+i}")
        for i in range(4): A(f"buffer_store_dwordx4 {vr(4*i,4)}, off, {WS}, s78 offset:{16*i}")
    A("L_exit:\ns_endpgm")
    def fm(q):
        S = vr(S3[q],16)
        A(f"v_mfma_f32_32x32x16_bf16 {S}, v[80:83], {vr(Qm[q],4)}, 0\nv_mfma_f32_32x32x8_bf16 {S}, v[88:89], {vr(Qm[q]+4,2)}, {S}")
    A(f"""
    L_fallback:
    v_subrev_u32 v{aK}, {cur['K']}, v{aK}
    v_subrev_u32 v{aT}, {512*tcur[0]}, v{aT}
    v_subrev_u32 v{aV}, {cur['V']}, v{aV}
    v_mov_b32 v144, 0xff800000
    v_mov_b32 v145, 0xff800000
    s_mov_b32 s63, {WS_KV}
    s_nop 7
    L_fb1:
    buffer_load_dwordx4 v[80:83], v{aK}, {WS}, s63 offen sc1
    buffer_load_dwordx2 v[88:89], v{aT}, {WS}, s63 offen sc1
    s_waitcnt vmcnt(0)""")
    fm(0); fm(1)
    for q in range(2):
        for r in range(0, 16, 2): A(f"v_max3_f32 v{144+q}, v{144+q}, v{S3[q]+r}, v{S3[q]+r+1}")
    A(f"""
    s_add_u32 s63, s63, 2560
    s_cmp_lt_u32 s63, {WS_KV+163840}
    s_cbranch_scc1 L_fb1
    v_mov_b32 v146, v144
    v_mov_b32 v147, v145
    v_permlane32_swap_b32 v144, v146
    v_permlane32_swap_b32 v145, v147
    v_max_f32 v144, v144, v146
    v_max_f32 v145, v145, v147
    s_mov_b32 s63, {WS_KV}""")
    for r in range(32): A(f"v_mov_b32 v{r}, 0")
    A(f"""
    s_nop 7
    L_fb2:
    buffer_load_dwordx4 v[80:83], v{aK}, {WS}, s63 offen sc1
    buffer_load_dwordx2 v[88:89], v{aT}, {WS}, s63 offen sc1
    s_mov_b64 exec, s[76:77]
    buffer_load_dwordx4 v[96:99], v{aV}, {WS}, s63 offen sc1
    buffer_load_dwordx4 v[100:103], v{aV}, {WS}, s63 offen offset:1280 sc1
    s_mov_b64 exec, -1
    s_waitcnt vmcnt(0)""")
    fm(0); fm(1)
    for q in range(2):
        for r in range(16): A(f"v_sub_f32 v{S3[q]+r}, v{S3[q]+r}, v{144+q}")
        for r in range(16): A(f"v_exp_f32 v{S3[q]+r}, v{S3[q]+r}")
    for q in range(2):
        for h in range(2): A(f"v_smfmac_f32_32x32x32_bf16 {vr(O_[q],16)}, {vr(96+4*h,4)}, {vr(S3[q]+8*h,8)}, v{vIDX}")
    A(f"""
    s_add_u32 s63, s63, 2560
    s_cmp_lt_u32 s63, {WS_KV+163840}
    s_nop 7
    s_cbranch_scc1 L_fb2
    s_mov_b32 s64, 1
    s_nop 7
    s_branch L_fbret
    L_end:""")
    hdr = open("cdna_kernels/" + NAME + ".s.ref").read().split("\n")
    k0 = next(i for i, l in enumerate(hdr) if l.startswith(NAME + "_kernel:"))
    k1 = next(i for i, l in enumerate(hdr) if l.startswith(".section .rodata"))
    head = [("; @launch grid=(256,1,1) block=(512,1,1) lds=163840" if l.startswith("; @launch") else l) for l in hdr[:k0+1]]
    if diag: head.insert(1, "; stamps: " + " ".join(names))
    return "\n".join(head) + "\n" + A.text() + "    s_endpgm\n" + "\n".join(hdr[k1:]), A.nops

D0 = "xin kvpub BQ slot0 attn S2 hpub S3 p4mm hppub p5a S4 p5mm end".split()
D2 = "BQ slot0 l_s1 a8 l_kv a16 a32 l_gu l_wd a48 a56 l_wo attn".split()
D3 = "attn opre oflag S2 p3s10 p3mm p3pre hpub l_wo l_g1 l_g0 GB S3 p4s0".split()
D4 = "GB S3 p4s0 p4s20 p4mm p4pre hppub S4e p5a BG S4 p5mm p5x end".split()
D5 = "xin BQ slot0 a16 a32 a48 attn hpub p4s0 p4s20 p4mm hppub p5mm end".split()
D6 = "BQ slot0 l_s1 a16 a48 a56 l_kv l_r0 l_r1 l_r2 l_gu l_wd l_wo attn".split()
D7 = "slot0 a48 l_gu l_wd l_wo attn oflag S2 hpub S3 p4mm hppub p5mm end".split()
V = dict(t0=dict(diag="setup xin BX stats norm kvst kvpub q0 q1 q2 q3 BQ slot0".split()), t1=dict(diag="setup xin BX stats norm kvst kvpub q0 q1 q2 q3 BQ slot0".split(), pl=1), t2=dict(diag="setup xin BX stats norm kvst kvpub q0 q1 q2 q3 BQ slot0".split(), pl=1, flst=5), t3=dict(diag="setup xin BX stats norm kvst kvpub q0 q1 q2 q3 BQ slot0".split(), pl=1, flst=5, ckst=8, xrst=9), e5=dict(diag=D7, ho=0), e6=dict(diag=D7, ho=1), e7=dict(diag=D7, ho=2), e4=dict(diag=D0, ct=()), e1=dict(diag=D6), e2=dict(diag="slot0 a0 a2 a4 a6 a7 a10 a14 a15 a18 l_s1 l_b1 l_f6 l_kv".split(), nb1=16), e3=dict(diag="a44 a46 a48 a49 a50 a52 a54 a56 a58 a60 a62 attn l_wd l_wo".split(), nb1=16), clk=dict(dbgclk=1), diag=dict(diag=D0), na=dict(diag=D0, alias=0), slow=dict(diag=D0, force_slow=True), fb=dict(force_fb=True),
  d2=dict(diag=D2), d3=dict(diag=D3), d4=dict(diag=D4), r1=dict(diag=D5), r2=dict(diag=D5, rt=1),
  d1=dict(diag="setup xin BX stats norm wkv kvst kvpub q0 q1 q2 q3 BQ slot0".split()))
if __name__ == "__main__":
    t, n = gen()
    open("cdna_kernels/" + NAME + ".s", "w").write(t)
    for nm, kw in V.items(): open(f"k_{nm}.s", "w").write(gen(**kw)[0])
    print("ok; nops", n, "lines", t.count("\n"))
```

```python
import sys, math, struct
from asmlib import Asm
NAME = "sequential_preLN__grouped_kv_mqa__glu_gated_geglu__prompt"
WS_F1, WS_F2, WS_F3, WS_F4 = 0x1000, 0x9000, 0xB000, 0xD000
WS_CS = 0xB80000
WS_KV, WS_HS, WS_O, WS_H, WS_HP, WS_DBG, WS_SIZE = 0x10000, 0x40000, 0x80000, 0x300000, 0x580000, 0xC00000, 0x1000000
def f2u(x): return "0x%08x" % struct.unpack("<I", struct.pack("<f", x))[0]
def vr(a, n): return f"v[{a}:{a+n-1}]" if n > 1 else f"v{a}"
ONES = "0x3f803f80"

class Q:
    def __init__(s, A, name, cap): s.A, s.name, s.cap, s.q, s.done = A, name, cap, [], 0
    def add(s, tag, n=1): s.q += [tag]*n
    def wait(s, tag):
        i = max(i for i, x in enumerate(s.q) if x == tag)
        if i < s.done: return
        k = min(len(s.q) - 1 - i, s.cap); s.done = len(s.q) - k
        s.A(f"s_waitcnt {s.name}({k})")
    def all(s): s.A(f"s_waitcnt {s.name}(0)"); s.done = len(s.q)

def gen(diag=False, force_slow=False, force_fb=False, **opt):
    A = Asm()
    X, WQ, WKV, WO, GU, WD, OUT, WS = ("s[8:11]","s[12:15]","s[16:19]","s[20:23]","s[24:27]","s[28:31]","s[32:35]","s[36:39]")
    sW, sXCD, sIDX, sB, sNB = "s3","s4","s5","s6","s7"
    sT, sXCC, sFAST, sTT, sKH, sTH, sQ = "s40","s41","s42","s43","s44","s45","s46"
    names = []
    def stamp(name):
        if not diag or (name not in diag and name != "start"): return
        if name not in names: names.append(name)
        i = names.index(name); assert i < 15
        A(f"{'s_memrealtime' if opt.get('rt') else 's_memtime'} s[82:83]\ns_waitcnt lgkmcnt(0)\ns_mov_b32 s{84+i}, s82")
    WOFF, vL, vB, vT1 = 240, 245, 246, 247
    XR = 230
    lab = [0]
    def L(p):
        lab[0] += 1; return f"L_{p}{lab[0]}"
    def poll(vaddr, vdst, soff="0", x2=False):
        l0, l1 = L("poll"), L("pdone")
        A(f"s_mov_b32 s78, 0\n{l0}:")
        A(f"buffer_load_dword{'x2' if x2 else ''} {vr(vdst, 2 if x2 else 1)}, v{vaddr}, {WS}, {soff} offen sc1")
        A(f"s_add_u32 s78, s78, 1\ns_cmp_gt_u32 s78, 0x8000\ns_cbranch_scc1 {l1}")
        A(f"s_waitcnt vmcnt(0)\nv_cmp_ne_u32 vcc, {sT}, v{vdst}\ns_cbranch_vccnz {l0}")
        A(f"{l1}:\ns_waitcnt vmcnt(0)")
    def ldsspin(vaddr, vdst, val, off=0):
        l0, l1 = L("spin"), L("spind")
        A(f"""s_mov_b32 s78, 0
        {l0}:
        ds_read_b32 v{vdst}, v{vaddr} offset:{off}
        s_add_u32 s78, s78, 1
        s_cmp_gt_u32 s78, 0x40000
        s_cbranch_scc1 {l1}
        s_waitcnt lgkmcnt(0)
        v_cmp_ne_u32 vcc, {val}, v{vdst}
        s_cbranch_vccnz {l0}
        {l1}:""")
    def stores(lst):
        ls, le = L("slow"), L("stend")
        A(f"s_cmp_eq_u32 {sFAST}, 0\ns_cbranch_scc1 {ls}")
        for sc in ("", " sc1"):
            for st in lst: A(st + sc if st.startswith("buffer_store") else st)
            if not sc: A(f"s_branch {le}\n{ls}:")
        A(f"{le}:")
    def flag(addr_s):
        A(f"v_mov_b32 v{vT1}, {sT}\ns_mov_b64 exec, 1\ns_waitcnt vmcnt(0)")
        stores([f"buffer_store_dword v{vT1}, off, {WS}, {addr_s}"])
        A("s_mov_b64 exec, -1")
    ALIAS = opt.get("alias", 1)
    OB, OST = (WS_HP, 49152) if ALIAS else (WS_O, 20480)
    HSRD, HB = (OUT, 0) if ALIAS else (WS, WS_H)
    LCS = 102400
    def csaddr(dst, t):
        A(f"""
        v_bfe_u32 v{t}, v{vL}, 4, 1
        v_lshrrev_b32 v{dst}, 5, v{vL}
        v_lshl_add_u32 v{dst}, v{t}, 1, v{dst}
        v_lshlrev_b32 v{dst}, 8, v{dst}
        v_bfe_u32 v{t}, v{vL}, 2, 1
        v_lshl_add_u32 v{dst}, v{t}, 5, v{dst}
        v_bfe_u32 v{t}, v{vL}, 3, 1
        v_lshl_add_u32 v{dst}, v{t}, 4, v{dst}
        v_and_b32 v{t}, 3, v{vL}
        v_lshl_add_u32 v{dst}, v{t}, 2, v{dst}
        """)
    def srd(base, lo, size):
        A(f"s_mov_b32 s{base}, s{lo}\ns_mov_b32 s{base+1}, s{lo+1}\ns_mov_b32 s{base+2}, {size}\ns_mov_b32 s{base+3}, 0x00020000")
    def trA(dst, kh_term):
        A(f"v_and_b32 v{vT1}, 3, v{vL}\nv_lshrrev_b32 v{dst}, 2, v{vL}\nv_mul_u32_u24 v{dst}, 160, v{dst}\nv_lshl_add_u32 v{dst}, v{vT1}, 3, v{dst}")
        if kh_term: A(f"v_add_u32 v{dst}, {kh_term}, v{dst}")

    LGU = 40960
    AC4, AR4, NA4, BR4, NB4 = 0, 48, opt.get("na4", 3), 84, 7
    aA0, aA, vF4, vST, vNM, vVAR, vRS = 116, 117, 118, 119, 248, 249, 250
    def p4pro():
        A(f"""
        v_and_b32 v109, 1, v{vL}
        v_bfe_u32 v110, v{vL}, 1, 1
        v_lshl_add_u32 v108, v109, 1, v110
        v_bfe_u32 v109, v{vL}, 2, 3
        v_lshrrev_b32 v110, 5, v{vL}
        v_lshl_add_u32 v111, v110, 4, v109
        v_mul_u32_u24 v111, 96, v111
        v_lshl_add_u32 v111, v108, 3, v111
        v_add_u32 v{aA0}, {LGU}, v111
        v_and_b32 v115, 15, v{vL}
        v_lshlrev_b32 v115, 2, v115
        v_and_b32 v108, 31, v{vL}
        v_lshlrev_b32 v{vF4}, 2, v108
        v_lshlrev_b32 v108, 4, v108
        v_lshl_add_u32 v{vST}, v110, 10, v108
        s_lshl_b32 s68, {sXCD}, 2
        s_add_u32 s68, s68, {sQ}
        s_lshl_b32 s68, s68, 1
        s_add_u32 s68, s68, 1
        s_sub_u32 s68, s68, {sTH}
        s_lshl_b32 s57, s68, 7
        s_add_u32 s57, s57, {WS_F3}
        s_lshl_b32 s58, s68, 11
        s_add_u32 s58, s58, {WS_HS}
        s_mul_i32 s59, s68, 40960
        s_add_u32 s59, s59, {HB}
        s_mul_i32 s60, {sW}, 5120
        s_mul_i32 s61, {sW}, 40960
        s_add_u32 s61, s61, {40*40960}
        s_lshl_b32 s62, {sB}, 8
        s_add_u32 s62, s62, {WS_F4}
        s_mul_i32 s63, {sB}, {4*49152}
        s_add_u32 s63, s63, {WS_HP}
        s_lshl_b32 s64, {sW}, 10
        s_add_u32 s64, s64, s63
        s_add_u32 s64, s64, {40*1024}""")
    def tr5(r, wr, aw, ar):
        if wr:
            for j in range(5): A(f"ds_write_b128 v{aw}, {vr(r+4*j,4)} offset:{1024*j}")
        for ct in range(5):
            for hf in range(2): A(f"ds_read_b64_tr_b16 {vr(r+4*ct+2*hf,2)}, v{ar} offset:{hf*2560+ct*32}")
    LWKV, LKX, LST, LFL, LKP, LQP = 102400, 158720, 160768, 161792, 162048, 102400
    XF, ACC, RING, GOFF = 144, 184, 32, 250
    O_ = (0, 16); S3 = (32, 48, 64); KMb = (80, 84); KTb = (88, 92); Vb = (96, 112); Qm = (128, 134); aK, aT, aV, vIDX = 140, 141, 142, 143
    CT = "s_mov_b64 exec, 3\nglobal_load_dword v203, v2, s[80:81]\ns_mov_b64 exec, -1"
    A(f"""
    s_cmp_ge_u32 s2, 256
    s_cbranch_scc1 L_exit
    s_load_dwordx16 s[52:67], s[0:1], 0
    s_load_dwordx8 s[68:75], s[0:1], 64
    {"s_memtime s[84:85]" if diag else ""}
    s_getpc_b64 s[80:81]
    L_pc:
    v_lshrrev_b32 v1, 6, v0
    v_and_b32 v{vL}, 63, v0
    s_lshr_b32 {sIDX}, s2, 3
    s_lshl_b32 s78, {sIDX}, 11
    v_lshlrev_b32 v253, 7, v{vL}
    v_lshl_add_u32 v2, v1, 8, v253
    v_add_u32 v2, s78, v2
    v_min_u32 v2, L_end-L_pc-4, v2
    {"" if opt.get("cl") else CT}
    v_readfirstlane_b32 {sW}, v1
    s_and_b32 {sXCD}, s2, 7
    s_lshr_b32 {sB}, {sIDX}, 3
    s_and_b32 {sNB}, {sIDX}, 7
    s_lshl_b32 s78, {sXCD}, 2
    s_add_u32 {sB}, {sB}, s78
    s_lshr_b32 {sTT}, {sW}, 1
    s_and_b32 {sKH}, {sW}, 1
    s_lshl_b32 s50, {sB}, 2
    s_add_u32 s50, s50, {sTT}
    s_mul_i32 s78, s50, {16*1280}
    s_mul_i32 s79, {sKH}, 640
    s_add_u32 s78, s78, s79
    v_lshrrev_b32 v209, 3, v{vL}
    v_lshrrev_b32 v210, 4, v{vL}
    v_and_b32 v211, 7, v{vL}
    v_xor_b32 v211, v211, v210
    v_mul_u32_u24 v4, 1280, v209
    v_lshl_add_u32 v4, v211, 4, v4
    v_add_u32 v200, s78, v4
    v_xor_b32 v201, 64, v200
    s_mul_i32 s51, {sW}, 10240
    s_cmp_lt_u32 {sW}, 5
    s_cselect_b32 s78, 0, 25600
    s_add_u32 s51, s51, s78
    s_add_u32 s51, s51, 51200
    s_and_b32 s47, {sNB}, 3
    """)
    def woff():
        A(f"s_mul_i32 s78, {sNB}, 160")
        for j in range(5):
            A(f"""
            v_add_u32 v204, {64*j}, v{vL}
            v_mul_u32_u24 v205, 6554, v204
            v_lshrrev_b32 v205, 16, v205
            v_mul_u32_u24 v206, 10, v205
            v_sub_u32 v206, v204, v206
            v_and_b32 v207, 3, v205
            v_bfe_u32 v208, v205, 2, 2
            v_lshrrev_b32 v204, 4, v205
            v_lshl_add_u32 v207, v208, 3, v207
            v_lshl_add_u32 v207, v204, 2, v207
            v_mul_u32_u24 v207, 1280, v207
            v_lshl_add_u32 v207, v206, 4, v207
            v_add_u32 v{WOFF+j}, s78, v207
            """)
    def common():
        A(f"""
        v_and_b32 v212, 15, v{vL}
        v_and_b32 v221, 31, v{vL}
        v_lshrrev_b32 v222, 5, v{vL}
        v_lshrrev_b32 v211, 1, v212
        v_xor_b32 v211, v211, v210
        v_lshlrev_b32 v211, 4, v211
        v_lshl_add_u32 v207, v212, 7, v211
        v_add_u32 v207, s51, v207
        v_xor_b32 v208, 64, v207
        s_lshl_b32 s78, {sTT}, 8
        s_add_u32 s78, s78, {LST}
        v_lshl_add_u32 v213, v212, 3, s78
        s_lshl_b32 s79, {sKH}, 7
        v_add_u32 v214, s79, v213
        s_lshl_b32 s78, {sW}, 2
        s_add_u32 s78, s78, {LFL}
        v_mov_b32 v215, s78
        v_xor_b32 v217, 4, v215
        v_mov_b32 v216, 1
        """)
        for r in range(4): A(f"v_mov_b32 v{72+r}, {ONES}")
    EA = opt.get("ea", 0)
    if EA >= 1: woff()
    if EA >= 2: common()
    if EA >= 3:
        for r in range(32): A(f"v_mov_b32 v{r}, 0")
    A("s_waitcnt lgkmcnt(0)")
    if diag: names.append("start")
    if opt.get("dbgclk"): A("s_memtime s[84:85]\ns_memrealtime s[86:87]\ns_mov_b32 s92, s72\ns_mov_b32 s93, s73\ns_mov_b32 s94, 256\ns_mov_b32 s95, 0x00020000\ns_waitcnt lgkmcnt(0)")
    if diag:
        for i in range(1, 15): A(f"s_mov_b32 s{84+i}, s84")
    stamp("karg")
    srd(8, 52, 2621440)
    def xloads():
        A("s_movk_i32 s79, 10240")
        for i in range(5):
            A(f"s_add_u32 m0, s51, {1920*i}\nbuffer_load_dwordx4 v200, {X}, 0 offen offset:{128*i} lds")
            A(f"s_add_u32 m0, s51, {1920*i+1024}\nbuffer_load_dwordx4 v201, {X}, s79 offen offset:{128*i} lds")
    def ifkv(lab, kv=True): A(f"s_cmp_{'eq' if kv else 'lg'}_u32 s47, {sTT}\ns_cbranch_scc1 {lab}")
    def srds():
        srd(36, 74, WS_SIZE); srd(12, 54, 819200)
        A(f"s_cmp_lt_u32 {sNB}, 4\ns_cselect_b32 s16, s56, s58\ns_cselect_b32 s17, s57, s59\ns_mov_b32 s18, 25600\ns_mov_b32 s19, 0x00020000")
    def wqdma(js=range(5)):
        for j in js: A(f"s_add_u32 m0, s48, {1024*j}\nbuffer_load_dwordx4 v{WOFF+j}, {WQ}, s49 offen lds")
        if 4 in js: A(f"s_add_u32 s49, s49, {3*40960}\ns_add_u32 s48, s48, 30720")
    def wq1(j):
        l = L("wq"); ifkv(l); wqdma([j]); A(l + ":")
    NL = opt.get("nl", 64); MH = (1 << max(96-NL, 1)) - 1
    def tgu(r, q=None):
        A(f"""s_add_u32 s78, s65, {393216*r}
        s_mov_b64 exec, s[72:73]
        buffer_load_dword v254, v253, {GU}, s78 offen
        s_mov_b64 exec, -1""")
        if q: q.add("t")
    def setup(sx):
        trA(220, None)
        A(f"""
        s_mul_i32 s79, {sKH}, 5120
        v_add_u32 v218, s79, v220
        v_add_u32 v205, 61440, v218
        s_lshl_b32 s78, {sTT}, 4
        v_add_u32 v206, s78, v212
        v_mul_u32_u24 v206, 336, v206
        v_lshl_add_u32 v206, v210, 4, v206
        s_mul_i32 s78, {sKH}, 21504
        s_add_u32 s78, s78, {LQP}
        v_add_u32 v206, s78, v206
        s_lshl_b32 s78, {sXCD}, 12
        s_add_u32 s78, s78, {WS_F1}
        v_lshl_add_u32 v248, v221, 7, s78
        s_mov_b32 s54, 0
        """)
        A(f"s_cmp_ge_u32 {sW}, 4\ns_cbranch_scc1 L_b1{sx}")
        A(f"""
        v_mul_u32_u24 v223, 336, v221
        s_mul_i32 s78, {sQ}, 80
        s_add_u32 s78, s78, {LQP}
        v_add_u32 v223, s78, v223
        v_lshl_add_u32 v224, v222, 5, v223
        v_bfe_u32 v250, v{vL}, 4, 1
        v_mul_u32_u24 v250, 1280, v250
        v_lshl_add_u32 v{aT}, v212, 3, v250
        v_add_u32 v{aT}, 512, v{aT}
        v_lshl_add_u32 v{aK}, v212, 4, v250
        v_lshl_add_u32 v{aK}, v222, 8, v{aK}
        v_and_b32 v250, 3, v{vL}
        v_bfe_u32 v251, v{vL}, 2, 1
        v_bfe_u32 v252, v{vL}, 3, 1
        v_lshl_add_u32 v249, v251, 3, v250
        v_lshl_add_u32 v249, v252, 2, v249
        s_and_b32 s78, {sQ}, 1
        s_lshl_b32 s79, s78, 2
        v_add_u32 v249, s79, v249
        s_lshl_b32 s79, s78, 4
        s_sub_u32 s79, 16, s79
        v_add_u32 v250, s79, v250
        v_cmp_gt_u32 vcc, 16, v221
        v_mul_u32_u24 v251, 20, v222
        v_cndmask_b32 v249, v250, v249, vcc
        v_add_u32 v249, v249, v251
        v_lshlrev_b32 v{aV}, 4, v249
        v_add_u32 v{aV}, 640, v{aV}
        v_mov_b32 v{vIDX}, 0xDDDDDDDD
        s_mov_b32 s76, 0x000fffff
        s_mov_b32 s77, 0x000fffff
        s_mov_b32 s52, 0x01100000
        s_mov_b32 s53, 0x01100000
        v_cndmask_b32 v96, 0, v72, s[52:53]
        """)
        for r in range(1, 32): A(f"v_mov_b32 v{96+r}, v96")
        for r in range(32 if EA < 3 else 0): A(f"v_mov_b32 v{r}, 0")
        A(f"""
        v_mul_u32_u24 v249, 1280, v212
        v_lshl_add_u32 v251, v210, 3, v249
        v_and_b32 v250, 1, v210
        v_lshl_add_u32 v249, v250, 5, v249
        v_lshl_add_u32 v250, v222, 4, v249
        s_lshl_b32 s63, {sB}, 2
        s_add_u32 s63, s63, {sW}
        s_mul_i32 s63, s63, {16*1280}
        s_mul_i32 s57, {sNB}, 160
        s_add_u32 s63, s63, s57
        v_bfe_u32 v226, v{vL}, 4, 1
        v_mul_u32_u24 v226, {OST}, v226
        v_lshl_add_u32 v226, v212, 4, v226
        v_lshl_add_u32 v227, v222, 8, v226
        s_mul_i32 s57, {sB}, {4*OST}
        s_add_u32 s57, s57, {OB}
        s_lshl_b32 s58, {sNB}, 2
        s_add_u32 s58, s58, {sQ}
        s_lshl_b32 s62, {sB}, 7
        s_add_u32 s62, s62, {WS_F2}
        s_lshl_b32 s59, s58, 2
        s_add_u32 s56, s62, s59
        s_mul_i32 s58, s58, 20
        s_add_u32 s59, s58, 4
        s_lshr_b32 s59, s59, 3
        s_lshl_b32 s59, s59, 8
        s_add_u32 s59, s59, s57
        s_and_b32 s60, {sQ}, 1
        s_lshl_b32 s61, s60, 4
        s_sub_u32 s58, s58, s61
        s_add_u32 s58, s58, 16
        s_lshr_b32 s58, s58, 3
        s_lshl_b32 s58, s58, 8
        s_lshl_b32 s60, s60, 3
        s_add_u32 s58, s58, s60
        s_add_u32 s58, s58, s57
        s_add_u32 s60, s58, {2*OST}
        s_add_u32 s61, s59, {2*OST}
        s_mul_i32 s64, {sW}, {OST}
        s_add_u32 s57, s57, s64
        s_add_u32 s57, s57, 16384
        s_mov_b32 s64, 0
        s_mov_b32 s66, {f2u(2.0**-60)}
        s_mov_b32 s67, {f2u(2.0**100)}
        s_mul_i32 s55, {sQ}, {4*40960}
        s_add_u32 s55, s55, {24*40960}
        v_add_u32 v225, 51200, v220
        v_lshlrev_b32 v229, 2, v221
        s_branch L_b2{sx}
        L_b1{sx}:""")
        A(f"s_mul_i32 s78, {sIDX}, 96\ns_mul_i32 s79, {sKH}, 98304\ns_add_u32 s78, s78, s79")
        for i in range(3):
            A(f"""
            v_add_u32 v0, {32*i}, v221
            v_mul_u32_u24 v1, 10923, v0
            v_lshrrev_b32 v1, 16, v1
            v_mul_u32_u24 v2, 6, v1
            v_sub_u32 v2, v0, v2
            v_lshl_add_u32 v1, v222, 4, v1
            v_mul_u32_u24 v1, 3072, v1
            v_lshl_add_u32 v1, v2, 4, v1
            v_add_u32 v{GOFF+i}, s78, v1""")
        A(f"""
        s_mul_i32 s64, {sQ}, 5120
        s_add_u32 s72, {sXCD}, 1
        s_and_b32 s72, s72, 7
        s_add_u32 s73, {sXCD}, {sQ}
        s_add_u32 s73, s73, 2
        s_and_b32 s73, s73, 7
        s_lshr_b32 s57, {sQ}, 1
        s_add_u32 s57, s57, 6
        s_add_u32 s74, {sXCD}, s57
        s_and_b32 s74, s74, 7
        s_add_u32 s78, s64, {WS_KV}
        s_mul_i32 s63, {sXCD}, 20480
        s_add_u32 s63, s63, s78
        s_mul_i32 s60, s72, 20480
        s_add_u32 s60, s60, s78
        s_mul_i32 s61, s73, 20480
        s_add_u32 s61, s61, {WS_KV}
        s_mul_i32 s78, {sKH}, 10240
        s_mul_i32 s59, s74, 20480
        s_add_u32 s59, s59, s78
        s_add_u32 s59, s59, {WS_KV}
        s_mul_i32 s57, s57, 20480
        s_add_u32 s57, s57, s78
        s_mul_i32 s56, {sQ}, 20480
        s_add_u32 s56, s56, 40960
        s_sub_u32 s73, s73, s72
        s_lshl_b32 s73, s73, 12
        s_lshl_b32 s72, s72, 12
        s_add_u32 s72, s72, {WS_F1}
        s_lshl_b32 s74, s74, 12
        s_add_u32 s74, s74, {WS_F1}
        v_lshl_add_u32 v233, v221, 7, s74
        v_mul_lo_u32 v232, v222, s73
        v_lshl_add_u32 v232, v221, 7, v232
        v_add_u32 v232, s72, v232
        s_mul_i32 s62, {sIDX}, 640
        s_add_u32 s62, s62, s61
        s_mul_i32 s58, {sIDX}, 320
        s_add_u32 s58, s58, s59
        s_andn2_b32 s65, {sIDX}, 1
        s_add_u32 s65, s65, {sKH}
        s_mul_i32 s65, s65, {96*128}
        s_mov_b32 s79, {(1 << (min(NL, 63)-32)) - 1}
        s_add_u32 s78, {sIDX}, 1
        s_bitcmp1_b32 s78, 1
        s_cselect_b32 s78, {NL*128}, 0
        s_cselect_b32 s72, {MH & 0xffffffff}, -1
        s_cselect_b32 s73, {MH >> 32}, {-1 if NL >= 64 else 's79'}
        s_add_u32 s65, s65, s78
        s_mul_i32 s74, {sQ}, 192
        s_add_u32 s74, s74, {sIDX}
        s_mul_i32 s74, s74, 1280
        s_lshl_b32 s66, {sIDX}, 2
        s_add_u32 s66, s66, {sQ}
        s_lshl_b32 s78, s66, 9
        v_add_u32 v255, s78, v253
        v_min_u32 v255, L_end-L_pc-4, v255
        s_mul_i32 s67, s66, {50*128}
        s_mul_i32 s66, s66, {60*128}
        s_mul_i32 s55, {sQ}, {6*40960}
        """)
        A(f"v_add_u32 v249, s64, v220\nL_b2{sx}:")
    ifkv("L_a1", False)
    A("s_setprio 2"); xloads(); srds()
    A(f"""
    s_lshr_b32 s78, {sIDX}, 3
    s_lshl_b32 s78, s78, 2
    s_add_u32 s78, s78, s47
    s_lshl_b32 s78, s78, 1
    s_add_u32 s78, s78, {sKH}
    s_mul_i32 s78, s78, {7*128}
    s_mov_b64 exec, 0x7f
    buffer_load_dword v203, v253, {WKV}, s78 offen
    s_mov_b64 exec, -1
    buffer_load_dword v202, off, {WS}, 0 sc1
    s_lshl_b32 s78, {sXCD}, 5
    s_add_u32 s78, s78, {sIDX}
    s_lshl_b32 s78, s78, 7
    s_add_u32 s75, s78, {WS_F1}
    s_mul_i32 s49, {sKH}, 409600
    s_add_u32 s49, s49, {9*40960}
    s_mul_i32 s48, {sKH}, 5120
    s_add_u32 s48, s48, 92160
    v_mov_b32 v219, 0
    s_branch L_a2
    L_a1:""")
    srds()
    A(f"""
    s_sub_u32 s48, {sW}, 2
    s_cmp_gt_u32 {sTT}, s47
    s_cselect_b32 s48, s48, {sW}
    s_mul_i32 s49, {sIDX}, 6
    s_add_u32 s49, s49, s48
    s_add_u32 s78, s49, 224
    s_cmp_lt_u32 s49, 96
    s_cselect_b32 s78, s49, s78
    s_mul_i32 s78, s78, 1280
    s_mov_b64 exec, 0x3ff
    buffer_load_dword v203, v253, {WQ}, s78 offen
    s_mov_b64 exec, -1
    s_mul_i32 s79, s49, {24*128}
    v_add_u32 v204, s79, v253
    v_add_u32 v205, {960*128}, v204
    v_cmp_gt_u32 vcc, {2240*128}, v204
    s_mov_b32 s75, {960*128}
    s_and_b32 s49, s48, 1
    v_cndmask_b32 v219, v205, v204, vcc
    s_mul_i32 s49, s49, 10
    s_lshr_b32 s79, s48, 1
    s_add_u32 s49, s49, s79
    s_mul_i32 s49, s49, 40960
    s_mul_i32 s48, s48, 5120
    L_a2:
    {CT if opt.get("cl") else ""}
    s_getreg_b32 {sXCC}, hwreg(HW_REG_XCC_ID, 0, 4)
    s_lshr_b32 {sTH}, {sW}, 2
    s_and_b32 {sQ}, {sW}, 3
    v_lshlrev_b32 v{vB}, 4, v{vL}
    v_mov_b32 v216, 0
    v_lshlrev_b32 v215, 2, v{vL}
    v_add_u32 v215, {LFL}, v215
    ds_write_b32 v215, v216
    s_mul_i32 s50, s50, 1280
    s_lshr_b32 s79, {sNB}, 2
    s_mul_i32 s79, s79, 640
    s_add_u32 s50, s50, s79
    s_add_u32 s50, s50, {WS_KV}
    """)
    for r in (255, 226, 227, 229, 232, 233, 252): A(f"v_mov_b32 v{r}, 0")
    if EA < 1: woff()
    srd(20, 60, 819200)
    A(f"s_bitcmp1_b32 {sW}, 1\ns_cselect_b32 s24, s66, s64\ns_cselect_b32 s25, s67, s65\ns_mov_b32 s26, 1966080\ns_mov_b32 s27, 0x00020000")
    srd(28, 68, 1966080); srd(32, 70, 2621440)
    A("""    s_mov_b32 s68, 0xAAAAAAAA
    s_mov_b32 s69, 0xAAAAAAAA
    s_mov_b32 s70, 0xCCCCCCCC
    s_mov_b32 s71, 0xCCCCCCCC
""")
    if EA < 2: common()
    setup("n")
    A("s_waitcnt lgkmcnt(0)")
    stamp("setup")
    ifkv("L_c1")
    A("s_barrier")
    xloads()
    TB = opt.get("tb", 1); tb = f"s_mov_b64 exec, 0xffffff\nbuffer_load_dword v203, v219, {WQ}, s75 offen\ns_mov_b64 exec, -1"
    A(f"buffer_load_dword v202, off, {WS}, 0 sc1")
    assert TB == 1
    A(f"s_waitcnt vmcnt({1 if TB == 0 else 0})")
    if TB == 1: A(tb)
    if TB == 3: wqdma(); A(tb)
    A(f"s_branch L_c3\nL_c1:\ns_mul_i32 s78, {sKH}, 12288")
    for j in range(13):
        if j & 3 == 0: A(f"s_add_u32 m0, s78, {LWKV}")
        A(f"buffer_load_dwordx4 v{vB}, {WKV}, s78 offen offset:{1024*(j&3)} lds")
        if j & 3 == 3: A("s_add_u32 s78, s78, 4096")
    A("s_barrier\ns_waitcnt vmcnt(13)\nL_c3:")
    stamp("xin")
    for i in range(5): A(f"ds_read_b128 {vr(XF+8*i,4)}, v207 offset:{2048*i}\nds_read_b128 {vr(XF+8*i+4,4)}, v208 offset:{2048*i}")
    A(f"v_readfirstlane_b32 {sT}, v202\ns_add_u32 {sT}, {sT}, 0x9E3779B9")
    for i in range(10):
        A(f"s_waitcnt lgkmcnt({9-i})"); x = vr(XF+4*i, 4)
        A(f"v_mfma_f32_16x16x32_bf16 v[76:79], v[72:75], {x}, {'0' if i == 0 else 'v[76:79]'}")
        A(f"v_mfma_f32_16x16x32_bf16 v[80:83], {x}, {x}, {'0' if i == 0 else 'v[80:83]'}")
    A(f"""
    v_cndmask_b32 v80, v80, v81, s[68:69]
    v_cndmask_b32 v82, v82, v83, s[68:69]
    v_cndmask_b32 v77, v80, v82, s[70:71]
    s_mov_b32 exec_lo, 0x00F0000F
    s_mov_b32 exec_hi, 0xF0000F00
    ds_write_b64 v214, v[76:77]
    s_mov_b64 exec, -1
    """)
    A("ds_write_b32 v215, v216")
    ifkv("L_e1")
    if TB != 3: wqdma()
    if TB == 2: A(tb)
    A("L_e1:")
    ldsspin(217, 219, 1)
    A(f"""
    L_e2:
    ds_read2_b64 v[76:79], v213 offset1:16
    s_waitcnt lgkmcnt(0)
    v_add_f32 v76, v76, v78
    v_add_f32 v77, v77, v79
    v_mul_f32 v76, {f2u(1/640)}, v76
    v_mul_f32 v77, {f2u(1/640)}, v77
    v_fma_f32 v77, -v76, v76, v77
    v_max_f32 v77, 0, v77
    v_add_f32 v77, {f2u(1e-5)}, v77
    v_rsq_f32 v78, v77
    s_mov_b32 s79, 0xffff0000
    v_mul_f32 v79, v76, v78
    """)
    stamp("stats")
    FU = opt.get("fu", 0)
    if FU: ifkv("L_n1")
    for r0 in range(XF, XF+40, 4):
        for r in range(4): A(f"v_lshlrev_b32 v{80+2*r}, 16, v{r0+r}\nv_and_b32 v{81+2*r}, s79, v{r0+r}")
        if opt.get("pk", 1):
            if r0 == XF: A("v_mov_b32 v76, v78\nv_mov_b32 v77, v78\nv_mul_f32 v78, -1.0, v79\nv_mul_f32 v79, -1.0, v79")
            for r in range(4): A(f"v_pk_fma_f32 {vr(80+2*r,2)}, {vr(80+2*r,2)}, v[76:77], v[78:79]")
        else:
            for r in range(8): A(f"v_fma_f32 v{80+r}, v{80+r}, v78, -v79")
        for r in range(4): A(f"v_cvt_pk_bf16_f32 v{r0+r}, v{80+2*r}, v{81+2*r}")
    stamp("norm")
    ifkv("L_f1", False)
    A("L_n1:")
    KF = 32
    A(f"""
    v_bfe_u32 v209, v{vL}, 2, 2
    v_and_b32 v211, 3, v{vL}
    v_lshl_add_u32 v219, v210, 3, v209
    v_mul_u32_u24 v219, 40, v219
    v_lshl_add_u32 v219, v211, 3, v219
    s_mul_i32 s78, {sKH}, 12800
    s_add_u32 s78, s78, {LWKV}
    v_add_u32 v219, s78, v219
    v_and_b32 v211, 1, v210
    v_add_u32 v204, {LKX}, v{vB}
    s_waitcnt vmcnt(0)
    """)
    stamp("wkv")
    lg = Q(A, "lgkmcnt", 15)
    def rdw(st):
        for tl in range(2):
            for hf in range(2): A(f"ds_read_b64_tr_b16 {vr(KF+8*(st&(3 if FU else 7))+4*tl+2*hf,2)}, v219 offset:{st*1280+hf*160+tl*32}")
        lg.add(st, 4)
    PF = 3 if FU else 4
    for st in range(PF): rdw(st)
    A(f"s_cmp_ge_u32 {sNB}, 4\ns_cbranch_scc1 L_g1")
    sv = (list(lg.q), lg.done)
    for isv in range(2):
        lg.q, lg.done = list(sv[0]), sv[1]
        for st in range(10):
            if FU:
                r0 = XF+4*st
                for r in range(4): A(f"v_lshlrev_b32 v{80+2*r}, 16, v{r0+r}\nv_and_b32 v{81+2*r}, s79, v{r0+r}")
                for r in range(8): A(f"v_fma_f32 v{80+r}, v{80+r}, v78, -v79")
                for r in range(4): A(f"v_cvt_pk_bf16_f32 v{r0+r}, v{80+2*r}, v{81+2*r}")
            lg.wait(st)
            for tl in range(2):
                a_, b_ = vr(KF+8*(st&(3 if FU else 7))+4*tl,4), vr(XF+4*st,4)
                if isv: a_, b_ = b_, a_
                d = vr(ACC+4*tl, 4)
                A(f"v_mfma_f32_16x16x32_bf16 {d}, {a_}, {b_}, {'0' if st == 0 else d}")
            if st + PF < 10: rdw(st+PF)
        if not isv:
            A(f"""
            v_lshlrev_b32 v200, 8, v222
            v_lshl_add_u32 v200, v212, 4, v200
            v_lshl_add_u32 v200, v211, 3, v200
            v_add_u32 v200, {LKP}, v200
            v_lshlrev_b32 v201, 3, v212
            v_add_u32 v201, {LKP+512}, v201
            s_mov_b64 s[52:53], 0xffff
            s_branch L_g2
            L_g1:""")
        else:
            A(f"""
            v_mul_u32_u24 v200, 320, v222
            v_lshl_add_u32 v200, v212, 4, v200
            v_lshl_add_u32 v200, v211, 3, v200
            v_add_u32 v200, {LKP}, v200
            v_add_u32 v201, 256, v200
            s_mov_b32 s52, 0x000f000f
            s_mov_b32 s53, 0x000f000f""")
    A(f"""
    L_g2:
    s_cmp_eq_u32 {sKH}, 0
    s_cbranch_scc1 L_g3
    ds_write_b128 v204, {vr(ACC,4)}
    ds_write_b128 v204, {vr(ACC+4,4)} offset:1024
    ds_write_b32 v215, v216 offset:32
    s_branch L_f3
    L_g3:""")
    ldsspin(217, 219, 1, 32)
    A(f"ds_read_b128 {vr(ACC+8,4)}, v204\nds_read_b128 {vr(ACC+12,4)}, v204 offset:1024\ns_waitcnt lgkmcnt(0)")
    for r in range(8): A(f"v_add_f32 v{ACC+r}, v{ACC+r}, v{ACC+8+r}")
    for r in range(4): A(f"v_cvt_pk_bf16_f32 v{ACC+8+r}, v{ACC+2*r}, v{ACC+1+2*r}")
    A(f"""
    ds_write_b64 v200, {vr(ACC+8,2)}
    s_mov_b64 exec, s[52:53]
    ds_write_b64 v201, {vr(ACC+10,2)}
    s_mov_b32 exec_lo, -1
    s_mov_b32 exec_hi, 0xff
    ds_read_b128 v[132:135], v204 offset:{LKP-LKX}
    s_waitcnt lgkmcnt(0)
    buffer_store_dwordx4 v[132:135], v{vB}, {WS}, s50 offen sc1
    s_mov_b64 exec, -1""")
    stamp("kvst")
    def pub(n):
        A(f"v_mov_b32 v130, {sT}\nv_mov_b32 v131, {sXCC}\ns_mov_b64 exec, 1\ns_waitcnt vmcnt({n})\nbuffer_store_dwordx2 v[130:131], off, {WS}, s75 sc1\ns_mov_b64 exec, -1")
        stamp("kvpub")
    if not opt.get("pl", 0): pub(0)
    A(f"L_f3:\ns_branch L_f2\nL_f1:\nv_and_b32 v217, 7, v{vL}\nv_lshlrev_b32 v217, 2, v217\nv_add_u32 v217, {LFL}, v217")
    ldsspin(217, 219, 1)
    stamp("BX")
    wqdma(); A(f"s_waitcnt vmcnt({6 if TB >= 2 else 5})\nL_f2:\ns_setprio 0\ns_cmp_lt_u32 {sW}, 4\ns_cbranch_scc1 L_f4\ns_setprio 1\ns_branch L_f5\nL_f4:")
    xr = f"buffer_load_dwordx4 {vr(XR,4)}, v250, {X}, s63 offen\nbuffer_load_dwordx2 {vr(XR+4,2)}, v251, {X}, s63 offen offset:64\nbuffer_load_dwordx4 {vr(XR+6,4)}, v250, {X}, s63 offen offset:96"
    if opt.get("pl", 0): ifkv("L_f5")
    A(xr + "\nL_f5:")
    vm = Q(A, "vmcnt", 63)
    def kvdma(src_, dst, add, j0, j1, tag):
        for j in range(j0, j1):
            if j & 3 == 0 or j == j0: A(f"s_add_u32 m0, {dst}, {add + 1024*(j & ~3)}")
            A(f"buffer_load_dwordx4 v{vB}, {WS}, {src_} offen offset:{1024*(j&3)} {opt.get('kvsc', 'sc1')} lds"); vm.add(tag)
            if j & 3 == 3: A(f"s_add_u32 {src_}, {src_}, 4096")
    def stage1():
        kvdma("s60", "s64", 20480, 0, 5, "s1")
        A(f"s_mov_b64 exec, 0x1f\nbuffer_load_dword v254, v253, {WS}, s62 offen {opt.get('tsc', 'sc1')}\ns_mov_b64 exec, -1"); vm.add("t")
    def rdq(st, ct):
        b_, o = (218, st*10240) if st < 6 else (205, (st-6)*10240)
        for hf in range(2): A(f"ds_read_b64_tr_b16 {vr(RING+20*(st&1)+4*ct+2*hf,2)}, v{b_} offset:{o+hf*2560+ct*32}")
    for grp, (s0, s1) in enumerate(((0,3),(3,6),(6,10))):
        A("s_barrier")
        stamp(f"q{grp}")
        for ct in range(5): rdq(s0, ct)
        for st in range(s0, s1):
            for ct in range(5):
                more = st+1 < s1
                if more: rdq(st+1, ct)
                A(f"s_waitcnt lgkmcnt({10 if more else 2*(4-ct)})")
                d = vr(ACC+4*ct,4)
                A(f"v_mfma_f32_16x16x32_bf16 {d}, {vr(RING+20*(st&1)+4*ct,4)}, {vr(XF+4*st,4)}, {'0' if st == 0 else d}")
            if st == 0 and opt.get("pl", 0):
                ifkv("L_i1", False); A(f"s_cmp_lg_u32 {sKH}, 0\ns_cbranch_scc1 L_i4"); pub(0); A(f"L_i4:\ns_cmp_ge_u32 {sW}, 4\ns_cbranch_scc1 L_i1\n{xr}\nL_i1:")
            if st == opt.get("r2st", 0): wqdma()
            if st == opt.get("flst", 4):
                A(f"s_cmp_lt_u32 {sW}, 4\ns_cbranch_scc1 L_h1\nbuffer_load_dwordx2 v[234:235], v248, {WS}, 0 offen sc1\nL_h1:")
            if st == opt.get("ckst", 7):
                A(f"s_cmp_lt_u32 {sW}, 4\ns_cbranch_scc1 L_k0\ns_waitcnt vmcnt(0)\nv_cmp_ne_u32 vcc, {sT}, v234\ns_cbranch_vccnz L_k1")
                kvdma("s63", "s64", 0, 0, 5, "s0")
                A(f"buffer_load_dword v236, v232, {WS}, 0 offen sc1\ns_mov_b32 s54, 1"); tgu(0)
                A("L_k0:\nL_k1:")
            if st == opt.get("xrst", 8):
                A(f"""s_cmp_ge_u32 {sW}, 4
                s_cbranch_scc1 L_k5
                buffer_load_dwordx2 v[254:255], v248, {WS}, 0 offen sc1
                L_k5:""")
        if grp == 0: A("s_waitcnt vmcnt(5)")
        if grp == 1: A(f"s_waitcnt vmcnt(1)\ns_cmp_ge_u32 {sW}, 4\ns_cbranch_scc1 L_k2\ns_waitcnt vmcnt(0)\nL_k2:")
    stamp("q3")
    for ct in range(5):
        A(f"ds_write_b128 v206, {vr(ACC+4*ct,4)} offset:{64*ct}")
    A("s_waitcnt lgkmcnt(0)\ns_barrier")
    stamp("BQ")
    A(f"s_cmp_ge_u32 {sW}, 4\ns_cbranch_scc1 L_loader")

    A("s_setprio 1")
    for q in range(2):
        for p in range(2):
            o = 21504*p + 32*336*q; r = 144 + 24*q + 12*p
            A(f"ds_read_b128 {vr(r,4)}, v224 offset:{o}\nds_read_b128 {vr(r+4,4)}, v224 offset:{o+16}\nds_read_b128 {vr(r+8,4)}, v223 offset:{o+64}")
    A(f"s_mov_b32 s48, 0\ns_mov_b32 s49, -1\nv_mov_b32 v192, {f2u(20**-0.5 * math.log2(math.e))}\nv_cndmask_b32 v194, v192, 0, s[48:49]\nv_mov_b32 v193, v192\nv_mov_b32 v195, v194")
    for q in range(2):
        r0 = 144 + 24*q
        A(f"s_waitcnt lgkmcnt({6-6*q})")
        for r in range(0, 12, 2): A(f"v_pk_add_f32 {vr(r0+r,2)}, {vr(r0+r,2)}, {vr(r0+12+r,2)}")
        for r in range(0, 12, 2): A(f"v_pk_mul_f32 {vr(r0+r,2)}, {vr(r0+r,2)}, {vr(192 if r < 8 else 194,2)}")
        for r in range(6): A(f"v_cvt_pk_bf16_f32 v{Qm[q]+r}, v{r0+2*r}, v{r0+1+2*r}")
    stamp("qrdy")
    A("s_barrier")
    stamp("slot0")
    cur = {"K": 0, "V": 0}
    lg = Q(A, "lgkmcnt", 15)
    def rebase(key, reg, off, span):
        if off + span - cur[key] > 65535:
            A(f"v_add_u32 v{reg}, {off - cur[key]}, v{reg}"); cur[key] = off
        return off - cur[key]
    def rdK(T):
        o = rebase("K", aK, 2560*T, 0); A(f"ds_read_b128 {vr(KMb[T&1],4)}, v{aK} offset:{o}"); lg.add(("K", T))
    tcur = [0]
    def rdT(T):
        if 5*(T+1) - tcur[0] > 255:
            A(f"v_add_u32 v{aT}, {512*(5*T - tcur[0])}, v{aT}"); tcur[0] = 5*T
        A(f"ds_read2st64_b64 {vr(KTb[(T>>1)&1],4)}, v{aT} offset0:{5*T-tcur[0]} offset1:{5*T+5-tcur[0]}"); lg.add(("T", T))
    def rdV(T):
        o = rebase("V", aV, 2560*T, 3840)
        A("s_mov_b64 exec, s[76:77]")
        for i in range(4): A(f"ds_read_b128 {vr(Vb[(T>>1)&1]+4*i,4)}, v{aV} offset:{o+1280*i}")
        A("s_mov_b64 exec, -1"); lg.add(("V", T), 4)
    def m1(u):
        T, q = u >> 1, u & 1; lg.wait(("K", T))
        A(f"v_mfma_f32_32x32x16_bf16 {vr(S3[u%3],16)}, {vr(KMb[T&1],4)}, {vr(Qm[q],4)}, 0")
    def m2(u):
        T, q = u >> 1, u & 1; lg.wait(("T", T & ~1)); S = vr(S3[u%3],16)
        if opt.get("x") != "nom2": A(f"v_mfma_f32_32x32x8_bf16 {S}, {vr(KTb[(T>>1)&1]+2*(T&1),2)}, {vr(Qm[q]+4,2)}, {S}")
    def sm(u, h):
        T, q = u >> 1, u & 1; lg.wait(("V", T & ~1))
        if opt.get("x") == "nosm": return
        if opt.get("x") == "dense":
            b = S3[u%3]+8*h
            for r in range(4): A(f"v_cvt_pk_bf16_f32 v{b+r}, v{b+2*r}, v{b+2*r+1}")
            A(f"s_nop 0\nv_mfma_f32_32x32x16_bf16 {vr(O_[q],16)}, {vr(Vb[(T>>1)&1]+8*(T&1)+4*h,4)}, {vr(b,4)}, {vr(O_[q],16)}"); return
        A(f"v_smfmac_f32_32x32x32_bf16 {vr(O_[q],16)}, {vr(Vb[(T>>1)&1]+8*(T&1)+4*h,4)}, {vr(S3[u%3]+8*h,8)}, v{vIDX}")
    def EX(u, a):
        for r in range(a, a+4): A(f"v_exp_f32 v{S3[u%3]+r}, v{S3[u%3]+r}" if opt.get("x") != "noexp" else "s_nop 1")
    BARS = (12, 28, opt.get("bar2", 94))
    rdK(0); rdT(0); rdK(1); rdV(0)
    m1(0); m2(0)
    for u in range(128):
        if u % 2 == 0: stamp(f"a{u//2}")
        T = u >> 1
        if u == 28: A(f"""
    s_waitcnt vmcnt(0)
    v_cmp_ne_u32 vcc, {sT}, v254
    s_cbranch_vccz L_xok
    buffer_load_dword v255, v248, {WS}, 0 offen offset:4 sc1
    s_waitcnt vmcnt(0)
    L_xok:
    v_cmp_ne_u32 vcc, {sXCC}, v255
    s_cmp_eq_u64 vcc, 0
    s_cselect_b32 {sFAST}, {0 if force_slow else 1}, 0
""")
        if u in BARS: A("s_barrier")
        if u < 127: m1(u+1)
        if u % 2 == 0 and T + 2 < 64: rdK(T+2)
        EX(u, 0)
        if u < 127: m2(u+1)
        if u % 4 == 0 and T + 2 < 64: rdT(T+2)
        EX(u, 4)
        if u > 0: sm(u-1, 0)
        EX(u, 8)
        if u > 0: sm(u-1, 1)
        if u % 4 == 0 and T + 2 < 64: rdV(T+2)
        EX(u, 12)
    sm(127, 0); sm(127, 1)
    A("s_barrier")
    stamp("attn")
    A(f"""
    L_fbret:
    v_cndmask_b32 v144, v12, v8, s[48:49]
    v_cndmask_b32 v146, v28, v24, s[48:49]
    v_rcp_f32 v148, v144
    v_rcp_f32 v150, v146
    v_mov_b32 v149, v148
    v_mov_b32 v151, v150
    """)
    for q in range(2):
        for r in range(0, 12, 2): A(f"v_pk_mul_f32 {vr(O_[q]+r,2)}, {vr(O_[q]+r,2)}, {vr(148+2*q,2)}")
        for r in range(6): A(f"v_cvt_pk_bf16_f32 v{32+6*q+r}, v{O_[q]+2*r}, v{O_[q]+2*r+1}")
    stores([f"buffer_store_dwordx4 v[32:35], v227, {WS}, s59 offen", f"buffer_store_dwordx4 v[38:41], v227, {WS}, s61 offen", "s_mov_b32 exec_hi, 0",
            f"buffer_store_dwordx2 v[36:37], v226, {WS}, s58 offen", f"buffer_store_dwordx2 v[42:43], v226, {WS}, s60 offen"])
    A("s_mov_b32 exec_hi, -1")
    stamp("opre")
    for r in range(0, 12, 2): A(f"v_pk_add_f32 {vr(r,2)}, {vr(r,2)}, {vr(16+r,2)}")
    A(f"""
    v_min_f32 v148, v144, v146
    v_max_f32 v149, v144, v146
    v_pk_add_f32 v[0:1], v[0:1], v[2:3]
    v_pk_add_f32 v[4:5], v[4:5], v[6:7]
    v_pk_add_f32 v[8:9], v[8:9], v[10:11]
    v_cmp_nle_f32 s[50:51], s66, v148
    v_pk_add_f32 v[0:1], v[0:1], v[4:5]
    v_cmp_nge_f32 s[52:53], s67, v149
    v_pk_add_f32 v[0:1], v[0:1], v[8:9]
    v_add_f32 v144, v144, v146
    v_add_f32 v0, v0, v1
    v_add_f32 v0, |v0|, v144
    s_or_b64 s[50:51], s[50:51], s[52:53]
    v_cmp_nge_f32 vcc, {f2u(2.0**126)}, v0
    s_or_b64 s[50:51], s[50:51], vcc
    s_cmp_{'eq' if force_fb else 'lg'}_u64 s[50:51], 0
    s_cselect_b32 s65, 1, 0
    s_cmp_gt_u32 s65, {1 if opt.get("x") else "s64"}
    s_cbranch_scc1 L_fallback
    """)
    AC3, R3 = 80, (100, 120, 140, 200)
    lg = Q(A, "lgkmcnt", 15); vm = Q(A, "vmcnt", 63)
    def rd3(st, ct):
        b, o = (220, st*5120) if st < 10 else (225, (st-10)*5120)
        for hf in range(2): A(f"ds_read_b64_tr_b16 {vr(R3[st&3]+4*ct+2*hf,2)}, v{b} offset:{o+hf*2560+ct*32}")
        lg.add((st, ct), 2)
    for st in (19, 18):
        for ct in range(5): rd3(st, ct)
    flag("s56")
    stamp("oflag")
    for e in range(opt.get("nw1", 2)):
        for j in range(5): A(f"buffer_load_dwordx4 {vr(160+20*e+4*j,4)}, v{WOFF+j}, {WD}, s55 offen")
        A("s_add_u32 s55, s55, 40960")
    for st in (17, 16):
        for ct in range(5): rd3(st, ct)
    A(f"""
    v_permlane16_swap_b32 v{XR}, v{XR+2}
    v_permlane16_swap_b32 v{XR+1}, v{XR+3}
    v_permlane16_swap_b32 v{XR+6}, v{XR+8}
    v_permlane16_swap_b32 v{XR+7}, v{XR+9}
    s_mov_b32 s79, 0xffff0000
    v_and_b32 v221, 15, v{vL}
    v_lshrrev_b32 v222, 5, v{vL}
    v_bfe_u32 v223, v{vL}, 4, 1
    v_lshlrev_b32 v228, 4, v221
    v_lshl_add_u32 v227, v222, 9, v228
    v_lshl_add_u32 v226, v223, 10, v227
    v_lshl_add_u32 v227, v223, 3, v227
    s_lshl_b32 s56, {sB}, 1
    s_add_u32 s56, s56, {sTT}
    s_lshl_b32 s61, {sKH}, 8
    s_mul_i32 s60, s56, 40960
    s_add_u32 s60, s60, s61
    s_mul_i32 s58, {sNB}, 5120
    s_add_u32 s60, s60, s58
    s_add_u32 s60, s60, {HB}
    s_lshl_b32 s58, s56, 11
    s_add_u32 s58, s58, s61
    s_lshr_b32 s59, {sNB}, 1
    s_lshl_b32 s59, s59, 9
    s_add_u32 s58, s58, s59
    s_and_b32 s59, {sNB}, 1
    s_lshl_b32 s59, s59, 3
    s_add_u32 s58, s58, s59
    s_add_u32 s58, s58, {WS_HS}
    s_lshl_b32 s56, s56, 7
    s_lshl_b32 s59, {sNB}, 3
    s_add_u32 s56, s56, s59
    s_lshl_b32 s59, {sKH}, 2
    s_add_u32 s56, s56, s59
    s_add_u32 s56, s56, {WS_F3}
    """)
    for r in range(10): A(f"v_lshlrev_b32 v{AC3+2*r}, 16, v{XR+r}\nv_and_b32 v{AC3+2*r+1}, s79, v{XR+r}")
    poll(229, 223, "s62")
    stamp("S2")
    def ld3(st):
        A(f"buffer_load_dwordx4 {vr(4*st,4)}, v{vB}, {WS}, s57 offen offset:{1024*(st&3)} sc1"); vm.add(st)
        if st & 3 == 0 and st > 0: A("s_sub_u32 s57, s57, 4096")
    NI3, DEP3 = opt.get("p3init", 8), opt.get("p3dep", 12); n3 = [19 - NI3]
    for st in range(19, 19-NI3, -1): ld3(st)
    lg.all()
    stamp("p3i")
    for st in range(19, -1, -1):
        vm.wait(st)
        stamp(f"p3s{st}")
        for ct in range(5):
            lg.wait((st, ct)); d = vr(AC3+4*ct,4)
            if st == 8 and ct == 4: A("s_barrier")
            A(f"v_mfma_f32_16x16x32_bf16 {d}, {vr(R3[st&3]+4*ct,4)}, {vr(4*st,4)}, {d}")
            if ct in (0, 2) and n3[0] >= max(0, st - DEP3): ld3(n3[0]); n3[0] -= 1
            if st - 4 >= 0: rd3(st-4, ct)
    stamp("p3mm")
    for r in range(10): A(f"v_cvt_pk_bf16_f32 v{16+r}, v{AC3+2*r}, v{AC3+2*r+1}")
    A(f"""
    v_permlane16_swap_b32 v16, v18
    v_permlane16_swap_b32 v17, v19
    v_permlane16_swap_b32 v22, v24
    v_permlane16_swap_b32 v23, v25""")
    stores([f"buffer_store_dwordx4 v[16:19], v226, {HSRD}, s60 offen",
            f"buffer_store_dwordx2 v[20:21], v227, {HSRD}, s60 offen offset:2048",
            f"buffer_store_dwordx4 v[22:25], v226, {HSRD}, s60 offen offset:3072"])
    A(f"v_pk_add_f32 v[12:13], {vr(AC3,2)}, {vr(AC3+2,2)}\nv_pk_mul_f32 v[14:15], {vr(AC3,2)}, {vr(AC3,2)}")
    for r in range(1, 10):
        if r > 1: A(f"v_pk_add_f32 v[12:13], v[12:13], {vr(AC3+2*r,2)}")
        A(f"v_pk_fma_f32 v[14:15], {vr(AC3+2*r,2)}, {vr(AC3+2*r,2)}, v[14:15]")
    A(f"""
    v_add_f32 v12, v12, v13
    v_add_f32 v13, v14, v15
    v_mov_b32 v14, v12
    v_mov_b32 v15, v13
    v_permlane16_swap_b32 v12, v14
    v_permlane16_swap_b32 v13, v15
    v_pk_add_f32 v[12:13], v[12:13], v[14:15]
    v_mov_b32 v14, v12
    v_mov_b32 v15, v13
    v_permlane32_swap_b32 v12, v14
    v_permlane32_swap_b32 v13, v15
    v_pk_add_f32 v[12:13], v[12:13], v[14:15]
    s_mov_b64 exec, 0xffff
    """)
    stores([f"buffer_store_dwordx2 v[12:13], v228, {WS}, s58 offen"])
    A("s_mov_b64 exec, -1")
    stamp("p3pre")
    for r in range(10): A(f"v_cvt_pk_bf16_f32 v{XR+r}, v{AC3+2*r}, v{AC3+2*r+1}")
    p4pro()
    flag("s56")
    stamp("hpub")
    A("s_barrier")
    def ldma():
        for j in range(5): A(f"s_add_u32 m0, s60, {1024*j}\nbuffer_load_dwordx4 v{WOFF+j}, {WD}, s55 offen lds")
        A("s_add_u32 s55, s55, 40960")
    ldma()
    A(f"v_add_u32 v222, s60, v{vB}\nv_add_u32 v223, s60, v220")
    A("s_branch L_p4")

    A("L_loader:\ns_setprio 2")
    def touch(srd_, soff, nl, add=0, dst=254):
        A(f"s_add_u32 s78, {soff}, {add}\ns_mov_b32 exec_hi, {(1 << (nl-32)) - 1}\nbuffer_load_dword v{dst}, v253, {srd_}, s78 offen\ns_mov_b32 exec_hi, -1"); vm.add("t")
    A("s_cmp_eq_u32 s54, 1\ns_cbranch_scc1 L_l0")
    poll(248, 234, x2=True)
    kvdma("s63", "s64", 0, 0, 5, "s0")
    A(f"buffer_load_dword v236, v232, {WS}, 0 offen sc1"); tgu(0)
    A("L_l0:\ns_waitcnt vmcnt(2)\ns_barrier")
    stamp("slot0")
    A(f"""
    s_waitcnt vmcnt(1)
    v_cmp_ne_u32 vcc, {sT}, v236
    s_cbranch_vccz L_l1""")
    poll(232, 236)
    A("L_l1:")
    vm.q, vm.done = [], 0
    stage1()
    A(f"""
    L_l2:
    v_cmp_ne_u32 vcc, {sXCC}, v235
    s_nop 1
    s_cmp_eq_u64 vcc, 0
    s_cselect_b32 {sFAST}, {0 if force_slow else 1}, 0""")
    A(f"buffer_load_dword v237, v233, {WS}, 0 offen sc1"); vm.add("fb")
    NB0 = opt.get("nb0", 6)
    kvdma("s61", "s56", 0, 0, NB0, "s2")
    vm.wait("fb")
    stamp("l_s1")
    A(f"v_cmp_ne_u32 vcc, {sT}, v237\ns_mov_b64 exec, 7\ns_cbranch_vccnz L_l4\nbuffer_load_dword v254, v253, {WS}, s58 offen {opt.get('tsc', 'sc1')}\nL_l4:\ns_mov_b64 exec, -1")
    NB1 = opt.get("nb1", 16)
    kvdma("s61", "s56", 0, NB0, NB1, "s2")
    stamp("l_b1"); A("s_barrier"); stamp("l_b1x")
    kvdma("s61", "s56", 0, NB1, 20, "s2")
    A(f"v_cmp_ne_u32 vcc, {sT}, v237\ns_cbranch_vccz L_l3")
    poll(233, 237)
    A("L_l3:"); stamp("l_f6")
    kvdma("s59", "s57", 0, 0, 10, "s6")
    def lgu(s):
        for p in (2*s, 2*s+1):
            A(f"s_mov_b32 s78, {p*2*98304}")
            for i in range(3): A(f"buffer_load_dwordx4 {vr(12*p+4*i,4)}, v{GOFF+i}, {GU}, s78 offen")
        vm.add(("g", s), 6)
    def wdma(p):
        for j in range(5): A(f"s_add_u32 m0, s64, {1024*j}\nbuffer_load_dwordx4 v{WOFF+j}, {WD}, s55 offen lds")
        A("s_add_u32 s55, s55, 40960"); vm.add(("w", p), 5)
    def wrd(p):
        vm.wait(("w", p)); tr5(120+20*p, 0, 0, 249); A("s_waitcnt lgkmcnt(0)")
    def ctouch(): A("s_mov_b64 exec, 15\nglobal_load_dword v254, v255, s[80:81]\ns_mov_b64 exec, -1"); vm.add("t")
    def twd(ps):
        for p in ps: A(f"s_add_u32 s78, s74, {40960*p}\ns_mov_b64 exec, 0x3ff\nbuffer_load_dword v254, v253, {WD}, s78 offen\ns_mov_b64 exec, -1"); vm.add("t")
    lgu(0); twd([0]); tgu(1, vm); twd([1])
    vm.wait("s6"); stamp("l_kv"); A("s_barrier")
    for p in range(4):
        wdma(p)
        if p < 3: tgu(p+2, vm)
        else: touch(WO, "s67", 50, 0)
        twd([p+2])
        if p in opt.get("ct", (1, 3)): ctouch()
        lgu(p+1)
        wrd(p); stamp(f"l_r{p}")
    stamp("l_gu")
    wdma(4); wrd(4)
    A(f"""
    s_cmp_eq_u32 {sFAST}, 0
    s_cbranch_scc1 L_npt
    s_lshl_b32 s78, {sXCD}, 5
    s_add_u32 s78, s78, {sIDX}
    s_lshl_b32 s78, s78, 2
    s_add_u32 s78, s78, {sQ}
    s_lshr_b32 s79, s78, 3
    s_mul_i32 s79, s79, 49152
    s_add_u32 s79, s79, {WS_HP}
    s_and_b32 s76, s78, 7
    s_mul_i32 s77, s76, 3584
    s_mul_i32 s76, s76, 2560
    s_add_u32 s76, s76, s79
    s_add_u32 s79, s79, s77
    s_add_u32 s79, s79, 20480
    v_add_u32 v248, s79, v253
    s_lshl_b32 s79, s78, 7
    s_add_u32 s79, s79, {WS_HS}
    v_writelane_b32 v248, s79, 28
    s_mul_i32 s78, s78, 2560
    s_add_u32 s77, s78, {HB}
    s_add_u32 s78, s78, {WS_O}
    s_mov_b64 exec, 0xfffff
    buffer_load_dword v254, v253, {WS}, s76 offen sc1""")
    if not ALIAS: A(f"buffer_load_dword v254, v253, {WS}, s78 offen sc1")
    HO = opt.get("ho", 1)
    t1 = f"s_mov_b64 exec, 0xfffff\nbuffer_load_dword v247, v253, {HSRD}, s77 offen sc1"
    t2 = f"s_mov_b64 exec, 0x1fffffff\nbuffer_load_dword v247, v248, {WS}, 0 offen sc1"
    if HO < 2: A(t1)
    if HO < 1: A(t2)
    A(f"s_mov_b64 exec, -1\nL_npt:")
    vm.q, vm.done = [], 0
    A(f"s_mul_i32 s57, {sQ}, 40960")
    stamp("l_wd")
    A("s_barrier")
    def wo(p):
        A(f"s_add_u32 s78, s57, {4*40960*p}")
        for j in range(5): A(f"s_add_u32 m0, s64, {20480*p+1024*j}\nbuffer_load_dwordx4 v{WOFF+j}, {WO}, s78 offen lds")
        vm.add("wo", 5)
    wo(4); wo(3)
    wdma(5); wo(2); wrd(5); wo(1); wo(0)
    if 5 in opt.get("ct", (5,)): A("s_mov_b64 exec, 15\nglobal_load_dword v247, v255, s[80:81]\ns_mov_b64 exec, -1"); vm.add("t")
    touch(WD, "s66", 60, 983040, 247)
    GI = 249
    A(f"s_cmp_eq_u32 {sFAST}, 0\ns_cbranch_scc1 L_npu")
    if HO >= 2: A(t1)
    if HO >= 1: A(t2)
    A(f"s_mov_b64 exec, -1\ns_waitcnt vmcnt({2+HO})\ns_branch L_npv\nL_npu:\ns_waitcnt vmcnt(2)\nL_npv:")
    stamp("l_wo")
    A("s_setprio 0\ns_barrier")
    A(f"""
    s_mul_i32 s78, {sKH}, 6144
    s_lshr_b32 s79, {sQ}, 1
    s_mul_i32 s79, s79, 384
    s_add_u32 s78, s78, s79
    s_add_u32 s78, s78, {LGU+61440}""")
    for i in range(3):
        A(f"""
        v_and_b32 v248, 31, v{vL}
        v_add_u32 v248, {32*i}, v248
        v_mul_u32_u24 v252, 10923, v248
        v_lshrrev_b32 v252, 18, v252
        v_mul_u32_u24 v252, 384, v252
        v_lshl_add_u32 v252, v248, 4, v252
        v_lshrrev_b32 v248, 5, v{vL}
        v_mul_u32_u24 v248, 3072, v248
        v_add3_u32 v{GI+i}, v248, v252, s78""")
    for p in (9, 8, 7, 6):
        for i in range(3): A(f"ds_write_b128 v{GI+i}, {vr(12*p+4*i,4)} offset:{12288*(p-5)}")
    SEL, CSA = 252, 108
    A(f"""
    v_bfe_u32 v248, v{vL}, 3, 1
    v_bfe_u32 v255, v{vL}, 4, 1
    v_cmp_eq_u32 vcc, v248, v255
    v_and_b32 v248, 1, v{vL}
    v_lshlrev_b32 v248, 4, v248
    v_mov_b32 v{SEL}, 0x3f80
    v_lshlrev_b32 v248, v248, v{SEL}
    v_bfe_u32 v255, v{vL}, 1, 2
    v_cndmask_b32 v248, 0, v248, vcc""")
    for r in range(4): A(f"v_cmp_eq_u32 vcc, {r}, v255\nv_cndmask_b32 v{SEL+r}, 0, v248, vcc")
    A("s_waitcnt lgkmcnt(0)")
    for p in range(9, -1, -1):
        for i in range(3):
            d = vr(CSA+4*i,4)
            A(f"v_mfma_f32_16x16x32_bf16 {d}, {vr(SEL,4)}, {vr(12*p+4*i,4)}, {'0' if p == 9 else d}")
    A(f"""
    s_mul_i32 s78, {sQ}, 3072
    s_add_u32 s78, s78, {LGU+61440}
    v_lshlrev_b32 v100, 2, v{vL}
    v_add_u32 v101, s78, v100
    v_and_b32 v248, 15, v{vL}
    v_lshrrev_b32 v102, 5, v{vL}
    v_lshl_add_u32 v248, v102, 4, v248
    v_and_b32 v102, 16, v{vL}
    v_lshl_add_u32 v248, v248, 5, v102
    v_add_u32 v248, s78, v248
    s_lshl_b32 s79, s2, 2
    s_add_u32 s79, s79, {sQ}
    s_lshl_b32 s79, s79, 8
    s_add_u32 s79, s79, {WS_CS}""")
    for i in range(3): A(f"ds_write_b128 v248, {vr(CSA+4*i,4)} offset:{1024*i}")
    for r in range(16): A(f"ds_read_b32 v{84+r}, v101 offset:{192*r}")
    for i in range(3): A(f"v_subrev_u32 v{GI+i}, 61440, v{GI+i}")
    A("s_waitcnt lgkmcnt(0)")
    for s in (8, 4, 2, 1):
        for r in range(s): A(f"v_add_f32 v{84+r}, v{84+r}, v{84+s+r}")
    A(f"buffer_store_dword v84, v100, {WS}, s79 offen\ns_waitcnt vmcnt(0)\nbuffer_load_dword v254, v100, {WS}, s79 offen sc1")
    p4pro()
    stamp("l_g1")
    A("s_barrier")
    for p in range(6):
        for i in range(3): A(f"ds_write_b128 v{GI+i}, {vr(12*p+4*i,4)} offset:{12288*p}")
    A("s_waitcnt lgkmcnt(0)\ns_setprio 2")
    stamp("l_g0")
    A("s_barrier")

    A("L_p4:")
    stamp("GB")
    lg = Q(A, "lgkmcnt", 15); vm = Q(A, "vmcnt", 63)
    def rdA4(st, i):
        if st % 20 == 0 and i == 0: A(f"v_add_u32 v{aA}, {61440*(st//20)}, v{aA0}")
        for hf in range(2): A(f"ds_read_b64_tr_b16 {vr(AR4+12*(st%NA4)+4*i+2*hf,2)}, v{aA} offset:{(st%20)*3072+hf*768+i*32}")
        lg.add((st, i), 2)
    for st in range(NA4-1):
        for i in range(3): rdA4(st, i)
    poll(115, 114, "s57")
    stamp("S3")
    def ldB4(st):
        A(f"buffer_load_dwordx4 {vr(BR4+4*(st%NB4),4)}, v{vB}, {HSRD}, s59 offen offset:{1024*(st&3)} sc1"); vm.add(st)
        if st & 3 == 3: A("s_add_u32 s59, s59, 4096")
    NI, DEP = opt.get("p4init", 3), opt.get("p4dep", 6)
    for st in range(NI): ldB4(st)
    nld = NI
    stamp("p4issued")
    SST, SDM = 8, 40 - DEP
    for st in range(40):
        vm.wait(st)
        stamp(f"p4s{st}")
        for i in range(3):
            if st + NA4 - 1 < 40: rdA4(st+NA4-1, i)
            lg.wait((st, i)); d = vr(AC4+16*i,16)
            A(f"v_mfma_f32_32x32x16_bf16 {d}, {vr(AR4+12*(st%NA4)+4*i,4)}, {vr(BR4+4*(st%NB4),4)}, {'0' if st == 0 else d}")
            if i < 2 and nld < min(40, st + 1 + DEP): ldB4(nld); nld += 1
        if st == 2: A(f"s_mul_i32 s65, {sKH}, 49152\nv_add_u32 v251, s65, v{vB}\ns_sub_u32 s65, 49152, s65\nv_add_u32 v252, s65, v{vB}")
        if st == 3: csaddr(250, 247)
        if st == 4:
            A(f"s_lshl_b32 s78, s2, 10\ns_add_u32 s78, s78, {WS_CS}")
            for i in range(3): A(f"buffer_load_dword v{253+i}, v250, {WS}, s78 offen offset:{64*i} sc1"); vm.add("cs")
        if st in (16, 24):
            vm.wait(("st", st))
            if st == 16: A(f"v_add_f32 v{vNM}, v112, v114\nv_add_f32 v{vVAR}, v113, v115")
            else: A(f"v_add_f32 v112, v112, v114\nv_add_f32 v113, v113, v115\nv_add_f32 v{vNM}, v{vNM}, v112\nv_add_f32 v{vVAR}, v{vVAR}, v113")
        if st in (8, 16): A(f"buffer_load_dwordx4 v[112:115], v{vST}, {WS}, s58 offen offset:{64*(st-8)} sc1"); vm.add(("st", st+8))
        if SDM <= st < SDM + 5:
            j = st - SDM
            A(f"s_add_u32 m0, s60, {1024*j}\nbuffer_load_dwordx4 v{WOFF+j}, {WD}, s61 offen lds"); vm.add("dma")
        LS = opt.get("ls", (5, 9, 17, 21, 25))
        if st in LS:
            A(f"s_cmp_ge_u32 {sW}, 4\ns_cbranch_scc1 L_ls{st}")
            k = LS.index(st)
            if k == 1: ldma()
            else: tr5((120, 0, 140, 160, 180)[k], k > 2, 222, 223)
            A(f"L_ls{st}:")
        c1 = -2*math.sqrt(2/math.pi)*math.log2(math.e); c2 = c1*0.044715
        if st == 28: A(f"""
            v_mov_b32 v114, v{vNM}
            v_mov_b32 v115, v{vVAR}
            v_permlane32_swap_b32 v{vNM}, v114
            v_permlane32_swap_b32 v{vVAR}, v115
            v_add_f32 v{vNM}, v{vNM}, v114
            v_add_f32 v{vVAR}, v{vVAR}, v115
            v_mul_f32 v{vNM}, {f2u(-1/640)}, v{vNM}
            v_mul_f32 v{vVAR}, {f2u(1/640)}, v{vVAR}""")
        if st == 29: A(f"""
            v_fma_f32 v{vVAR}, -v{vNM}, v{vNM}, v{vVAR}
            v_max_f32 v{vVAR}, 0, v{vVAR}
            v_add_f32 v{vVAR}, {f2u(1e-5)}, v{vVAR}
            v_rsq_f32 v{vRS}, v{vVAR}
            v_cvt_pk_bf16_f32 v114, v{vNM}, v{vNM}
            v_and_b32 v115, 0xffff0000, v114
            v_sub_f32 v115, v{vNM}, v115""")
        if st == 30: A(f"""
            v_mul_f32 v119, {f2u(c1)}, v{vRS}
            v_mul_f32 v116, v{vRS}, v{vRS}
            v_mul_f32 v116, v116, v{vRS}
            v_mul_f32 v116, {f2u(c2)}, v116
            s_mul_i32 s58, s68, 98304
            s_mul_i32 s78, {sIDX}, 1536
            s_add_u32 s58, s58, s78
            s_add_u32 s58, s58, {WS_HP}
            s_lshl_b32 s56, s68, 7
            s_lshl_b32 s78, {sIDX}, 2
            s_add_u32 s56, s56, s78
            s_add_u32 s56, s56, {WS_F4}""")
        if st == 31: A(f"""
            v_and_b32 v112, 15, v{vL}
            v_bfe_u32 v113, v{vL}, 4, 1
            v_lshrrev_b32 v114, 5, v{vL}
            v_mul_u32_u24 v113, 49152, v113
            v_lshl_add_u32 v113, v112, 4, v113
            v_lshl_add_u32 v113, v114, 8, v113""")
        if st == 35: A(f"v_cvt_pk_bf16_f32 v104, v{vNM}, v115\nv_mov_b32 v106, 0\nv_mov_b32 v107, 0\nv_mov_b32 v105, v104")
        if st == 38:
            A("v_mov_b32 v117, v113")
            for i in range(3):
                A(f"""v_cvt_pk_bf16_f32 v{60+4*i}, v{253+i}, v{253+i}
                v_and_b32 v114, 0xffff0000, v{60+4*i}
                v_sub_f32 v114, v{253+i}, v114
                v_cvt_pk_bf16_f32 v{61+4*i}, v114, v114
                v_mov_b32 v{62+4*i}, 0
                v_mov_b32 v{63+4*i}, 0""")
        if st == opt.get("f4st", 39): A(f"buffer_load_dword v112, v{vF4}, {WS}, s62 offen sc1"); vm.add("f4")
    assert nld == 40
    stamp("p4mm")
    F0, AC5 = 0, 20
    BL = {1: [[60+8*u for u in range(7)]]*2, 0: [[92, 100, 108, 200, 208], [60, 68, 76, 84, 216]]}
    WR = {1: [F0] + [120+20*u for u in range(6)], 0: [F0, 160, 180, 120, 140]}
    def ldB5(role, ps, vmq):
        if ps == 0: A(f"s_mul_i32 s65, {sQ}, {(6, 4)[1-role]*1024}\ns_add_u32 s65, s65, s63" + ("" if role else f"\ns_add_u32 s65, s65, {24*1024}"))
        else: A(f"s_add_u32 s64, s64, 98304\ns_add_u32 s65, s65, {98304 - (4096 if role else 0)}")
        for u in range(len(WR[role])):
            if u == 5: A("s_add_u32 s65, s65, 4096")
            for tt in range(2):
                A(f"buffer_load_dwordx4 {vr(BL[role][ps][u]+4*tt,4)}, v{251+tt}, {WS}, {'s64' if u == 0 else 's65'} offen offset:{1024*((u-1)&3) if u else 0} sc1")
            vmq.add((ps, u), 2)
    for i in range(3):
        d = vr(AC4+16*i,16)
        A(f"v_mfma_f32_32x32x16_bf16 {d}, {vr(60+4*i,4)}, v[104:107], {d}")
    A(f"s_cmp_lt_u32 {sW}, 4\ns_cbranch_scc1 L_ep\ns_setprio 0\nL_ep:")
    def f4chk():
        lx_, ly_ = L("x"), L("y")
        A(f"s_cmp_ge_u32 {sW}, 4\ns_cbranch_scc1 {lx_}")
        vm.wait("f4")
        A(f"v_cmp_ne_u32 vcc, {sT}, v112\ns_cbranch_vccz {ly_}")
        poll(vF4, 112, "s62")
        A(f"{ly_}:")
        ldB5(0, 0, Q(A, "vmcnt", 63))
        A(f"{lx_}:")
    T0 = 72
    for i in range(3):
        g, u, t = AC4+16*i, AC4+16*i+8, T0
        if i == opt.get("f4i", 1): f4chk()
        for r in range(8): A(f"v_mul_f32 v{t+r}, v{g+r}, v{g+r}")
        for r in range(8): A(f"v_fma_f32 v{t+r}, v{t+r}, v116, v119")
        for r in range(8): A(f"v_mul_f32 v{t+r}, v{t+r}, v{g+r}")
        for r in range(8): A(f"v_exp_f32 v{t+r}, v{t+r}")
        for r in range(8): A(f"v_mul_f32 v{u+r}, v{u+r}, v{g+r}")
        for r in range(8): A(f"v_fma_f32 v{t+r}, v{t+r}, v{vVAR}, v{vVAR}")
        for r in range(8): A(f"v_rcp_f32 v{t+r}, v{t+r}")
        for r in range(8): A(f"v_mul_f32 v{u+r}, v{u+r}, v{t+r}")
        for r in range(4): A(f"v_cvt_pk_bf16_f32 v{80+4*i+r}, v{u+2*r}, v{u+2*r+1}")
    stamp("p4pre")
    stores([f"buffer_store_dwordx4 {vr(80+4*i,4)}, v117, {WS}, s58 offen offset:{512*i}" for i in range(3)])
    aW, a0, aP0, aP1 = 248, 249, 250, 253
    A(f"v_add_u32 v{aW}, s60, v{vB}")
    trA(a0, "s60")
    A(f"""
    s_mul_i32 s78, {sKH}, 40960
    s_add_u32 s79, s78, 40960
    v_add_u32 v{aP0}, s79, v{aW}
    s_sub_u32 s79, 81920, s78
    v_add_u32 v{aP1}, s79, v{aW}
    s_waitcnt vmcnt(3)
    s_cmp_ge_u32 {sW}, 4
    s_cbranch_scc1 L_p5l""")
    def mm5(role, ps, vmq, hook=None):
        for u in range(len(WR[role])):
            if vmq: vmq.wait((ps, u))
            stamp(f"p5s{ps}{u}")
            for ct in range(5):
                for tt in range(2):
                    d = vr(AC5+20*tt+4*ct,4)
                    A(f"v_mfma_f32_16x16x32_bf16 {d}, {vr(WR[role][u]+4*ct,4)}, {vr(BL[role][ps][u]+4*tt,4)}, {d if (u or (tt == 0 and not role)) else '0'}")
            if hook: hook(u)
    def flush(ps, mid=""):
        for tt in range(2):
            if tt: A(mid)
            for ct in range(5): A(f"ds_write_b128 v{(aP0, aP1)[tt]}, {vr(AC5+20*tt+4*ct,4)} offset:{1024*ct}")
        if ps == 0:
            A(f"s_mul_i32 s78, {sKH}, 122880\nv_add_u32 v{aP0}, s78, v{aW}\ns_sub_u32 s78, 122880, s78\nv_add_u32 v{aP1}, s78, v{aW}")
    def resid(ps):
        A(f"s_cmp_eq_u32 {sTT}, {ps}\ns_cselect_b32 s78, 0xffff0000, 0\ns_cselect_b32 s79, 0x10000, 0")
        for r in range(10): A(f"v_mul_u32_u24 v{AC5+2*r}, s79, v{XR+r}\nv_and_b32 v{AC5+2*r+1}, s78, v{XR+r}")
    A("s_add_u32 s62, s62, 128")
    tr5(F0, 0, aW, a0)
    resid(0)
    flag("s56")
    if opt.get("wt", 0) & 2:
        for i in range(3): A(f"buffer_store_dwordx4 {vr(80+4*i,4)}, v117, {WS}, s58 offen offset:{512*i} {opt.get('wtf', 'sc1')}")
    stamp("hppub")
    A("s_barrier")
    stamp("BG")
    A("s_waitcnt lgkmcnt(0)")
    def hk(u):
        if u == 2: A(f"buffer_load_dword v112, v{vF4}, {WS}, s62 offen sc1")
    mm5(0, 0, None, hk)
    stamp("p5a")
    lz = L("z")
    A(f"s_waitcnt vmcnt(0)\nv_cmp_ne_u32 vcc, {sT}, v112\ns_cbranch_vccz {lz}")
    flush(0)
    poll(vF4, 112, "s62")
    vm = Q(A, "vmcnt", 63); ldB5(0, 1, vm)
    A(f"s_branch {lz}b\n{lz}:")
    vm = Q(A, "vmcnt", 63); ldB5(0, 1, vm)
    flush(0)
    A(f"{lz}b:")
    stamp("S4")
    resid(1)
    mm5(0, 1, vm)
    A("s_branch L_p5e\nL_p5l:")
    tr5(F0, 0, aW, a0)
    flag("s56")
    if opt.get("wt", 0) & 1:
        for i in range(3): A(f"buffer_store_dwordx4 {vr(80+4*i,4)}, v117, {WS}, s58 offen offset:{512*i} {opt.get('wtf', 'sc1')}")
    stamp("hppub")
    A("s_setprio 0")
    poll(vF4, 112, "s62")
    stamp("S4e")
    vm = Q(A, "vmcnt", 63); ldB5(1, 0, vm)
    A("s_add_u32 s62, s62, 128\ns_waitcnt lgkmcnt(0)")
    mm5(1, 0, vm)
    stamp("p5a")
    A("s_barrier")
    stamp("BG")
    flush(0)
    A("s_setprio 1")
    poll(vF4, 112, "s62")
    stamp("S4")
    ldB5(1, 1, vm)
    mm5(1, 1, vm)
    A("L_p5e:")
    stamp("p5mm")
    flush(1)
    A(f"""
    s_add_u32 s78, {sQ}, 1
    s_cmp_eq_u32 {sQ}, 2
    s_cselect_b32 s78, 0, s78
    s_min_u32 s78, s78, 3
    s_mul_i32 s78, s78, 40960
    s_mul_i32 s79, {sTH}, 3072
    s_add_u32 s78, s78, s79
    v_add_u32 v1, s78, v{vB}
    v_and_b32 v2, 15, v{vL}
    v_lshrrev_b32 v3, 4, v{vL}
    v_mul_u32_u24 v2, 1280, v2
    v_lshl_add_u32 v5, v3, 3, v2
    v_and_b32 v4, 1, v3
    v_lshrrev_b32 v3, 1, v3
    v_lshl_add_u32 v2, v4, 5, v2
    v_lshl_add_u32 v4, v3, 4, v2
    s_lshl_b32 s56, {sB}, 2
    s_add_u32 s56, s56, {sQ}
    s_mul_i32 s56, s56, {16*1280}
    s_mul_i32 s57, {sNB}, 160
    s_add_u32 s56, s56, s57
    s_mul_i32 s57, {sTH}, 96
    s_add_u32 s56, s56, s57
    s_waitcnt lgkmcnt(0)
    s_barrier
    """)
    stamp("p5x")
    ost = (lambda l: A(l[0] + " sc1")) if opt.get("wt", 0) & 4 else stores
    l5, l6 = L("t5"), L("t6")
    for c in range(3):
        if c == 2: A(f"s_cmp_eq_u32 {sTH}, 1\ns_cbranch_scc1 {l5}")
        for q in range(8): A(f"ds_read_b128 {vr(64+32*c+4*q,4)}, v1 offset:{1024*c+5120*q}")
    A(f"{l5}:")
    for c in range(3):
        r = 64+32*c
        A(f"s_waitcnt lgkmcnt({8 if c == 0 else 0})")
        for s in (16, 8, 4):
            for k in range(0, s, 2): A(f"v_pk_add_f32 {vr(r+k,2)}, {vr(r+k,2)}, {vr(r+s+k,2)}")
        A(f"v_cvt_pk_bf16_f32 v{10+2*c}, v{r}, v{r+1}\nv_cvt_pk_bf16_f32 v{11+2*c}, v{r+2}, v{r+3}")
        if c == 1:
            A("v_permlane16_swap_b32 v10, v12\nv_permlane16_swap_b32 v11, v13")
            ost([f"buffer_store_dwordx4 v[10:13], v4, {OUT}, s56 offen"])
            A(f"s_cmp_eq_u32 {sTH}, 1\ns_cbranch_scc1 {l6}")
    ost([f"buffer_store_dwordx2 v[14:15], v5, {OUT}, s56 offen offset:64"])
    A(f"{l6}:")
    le = L("ep")
    A(f"""
    s_add_u32 s78, s2, {sW}
    s_cmp_lg_u32 s78, 0
    s_cbranch_scc1 {le}
    v_mov_b32 v46, {sT}
    s_mov_b64 exec, 1
    buffer_store_dword v46, off, {WS}, 0 sc1
    s_mov_b64 exec, -1
    {le}:""")
    if opt.get("dbgclk"):
        A(f"""s_waitcnt vmcnt(0)
        s_and_b32 s78, s2, 63
        s_add_u32 s78, s78, {sW}
        s_cmp_lg_u32 s78, 0
        s_cbranch_scc1 L_exit
        s_memtime s[88:89]
        s_memrealtime s[90:91]
        s_waitcnt lgkmcnt(0)
        s_sub_u32 s88, s88, s84
        v_mov_b32 v0, s88
        v_mov_b32 v1, s86
        v_mov_b32 v2, s90
        v_mov_b32 v3, {sFAST}
        s_lshr_b32 s78, s2, 2
        s_mov_b64 exec, 1
        buffer_store_dwordx4 v[0:3], off, s[92:95], s78""")
    if diag:
        A("s_waitcnt vmcnt(0)")
        stamp("end")
        A(f"s_lshl_b32 s78, s2, 3\ns_add_u32 s78, s78, {sW}\ns_lshl_b32 s78, s78, 6\ns_add_u32 s78, s78, {WS_DBG}\ns_mov_b64 exec, 1")
        A(f"s_mov_b32 s99, {sFAST}")
        for i in range(16): A(f"v_mov_b32 v{i}, s{84+i}")
        for i in range(4): A(f"buffer_store_dwordx4 {vr(4*i,4)}, off, {WS}, s78 offset:{16*i}")
    A("L_exit:\ns_endpgm")
    def fm(q):
        S = vr(S3[q],16)
        A(f"v_mfma_f32_32x32x16_bf16 {S}, v[80:83], {vr(Qm[q],4)}, 0\nv_mfma_f32_32x32x8_bf16 {S}, v[88:89], {vr(Qm[q]+4,2)}, {S}")
    A(f"""
    L_fallback:
    v_subrev_u32 v{aK}, {cur['K']}, v{aK}
    v_subrev_u32 v{aT}, {512*tcur[0]}, v{aT}
    v_subrev_u32 v{aV}, {cur['V']}, v{aV}
    v_mov_b32 v144, 0xff800000
    v_mov_b32 v145, 0xff800000
    s_mov_b32 s63, {WS_KV}
    s_nop 7
    L_fb1:
    buffer_load_dwordx4 v[80:83], v{aK}, {WS}, s63 offen sc1
    buffer_load_dwordx2 v[88:89], v{aT}, {WS}, s63 offen sc1
    s_waitcnt vmcnt(0)""")
    fm(0); fm(1)
    for q in range(2):
        for r in range(0, 16, 2): A(f"v_max3_f32 v{144+q}, v{144+q}, v{S3[q]+r}, v{S3[q]+r+1}")
    A(f"""
    s_add_u32 s63, s63, 2560
    s_cmp_lt_u32 s63, {WS_KV+163840}
    s_cbranch_scc1 L_fb1
    v_mov_b32 v146, v144
    v_mov_b32 v147, v145
    v_permlane32_swap_b32 v144, v146
    v_permlane32_swap_b32 v145, v147
    v_max_f32 v144, v144, v146
    v_max_f32 v145, v145, v147
    s_mov_b32 s63, {WS_KV}""")
    for r in range(32): A(f"v_mov_b32 v{r}, 0")
    A(f"""
    s_nop 7
    L_fb2:
    buffer_load_dwordx4 v[80:83], v{aK}, {WS}, s63 offen sc1
    buffer_load_dwordx2 v[88:89], v{aT}, {WS}, s63 offen sc1
    s_mov_b64 exec, s[76:77]
    buffer_load_dwordx4 v[96:99], v{aV}, {WS}, s63 offen sc1
    buffer_load_dwordx4 v[100:103], v{aV}, {WS}, s63 offen offset:1280 sc1
    s_mov_b64 exec, -1
    s_waitcnt vmcnt(0)""")
    fm(0); fm(1)
    for q in range(2):
        for r in range(16): A(f"v_sub_f32 v{S3[q]+r}, v{S3[q]+r}, v{144+q}")
        for r in range(16): A(f"v_exp_f32 v{S3[q]+r}, v{S3[q]+r}")
    for q in range(2):
        for h in range(2): A(f"v_smfmac_f32_32x32x32_bf16 {vr(O_[q],16)}, {vr(96+4*h,4)}, {vr(S3[q]+8*h,8)}, v{vIDX}")
    A(f"""
    s_add_u32 s63, s63, 2560
    s_cmp_lt_u32 s63, {WS_KV+163840}
    s_nop 7
    s_cbranch_scc1 L_fb2
    s_mov_b32 s64, 1
    s_nop 7
    s_branch L_fbret
    L_end:""")
    hdr = open("cdna_kernels/" + NAME + ".s.ref").read().split("\n")
    k0 = next(i for i, l in enumerate(hdr) if l.startswith(NAME + "_kernel:"))
    k1 = next(i for i, l in enumerate(hdr) if l.startswith(".section .rodata"))
    head = [("; @launch grid=(256,1,1) block=(512,1,1) lds=163840" if l.startswith("; @launch") else l) for l in hdr[:k0+1]]
    if diag: head.insert(1, "; stamps: " + " ".join(names))
    return "\n".join(head) + "\n" + A.text() + "    s_endpgm\n" + "\n".join(hdr[k1:]), A.nops

D0 = "xin kvpub BQ slot0 attn S2 hpub S3 p4mm hppub p5a S4 p5mm end".split()
D2 = "BQ slot0 l_s1 a8 l_kv a16 a32 l_gu l_wd a48 a56 l_wo attn".split()
D3 = "attn opre oflag S2 p3s10 p3mm p3pre hpub l_wo l_g1 l_g0 GB S3 p4s0".split()
D4 = "GB S3 p4s0 p4s20 p4mm p4pre hppub S4e p5a BG S4 p5mm p5x end".split()
D5 = "xin BQ slot0 a16 a32 a48 attn hpub p4s0 p4s20 p4mm hppub p5mm end".split()
D6 = "BQ slot0 l_s1 a16 a48 a56 l_kv l_r0 l_r1 l_r2 l_gu l_wd l_wo attn".split()
D7 = "slot0 a48 l_gu l_wd l_wo attn oflag S2 hpub S3 p4mm hppub p5mm end".split()
V = dict(t0=dict(diag="karg setup xin wkv stats norm kvpub q0 q1 q2 q3 BQ slot0".split()), t1=dict(diag="karg setup xin wkv stats norm kvpub q0 q1 q2 q3 BQ slot0".split(), cl=1), t2=dict(diag="karg setup xin wkv stats norm kvpub q0 q1 q2 q3 BQ slot0".split(), ea=1), t3=dict(diag="karg setup xin wkv stats norm kvpub q0 q1 q2 q3 BQ slot0".split(), ea=3), e5=dict(diag=D7, ho=0), e6=dict(diag=D7, ho=1), e7=dict(diag=D7, ho=2), e4=dict(diag=D0, ct=()), e1=dict(diag=D6), e2=dict(diag="slot0 a0 a2 a4 a6 a7 a10 a14 a15 a18 l_s1 l_b1 l_f6 l_kv".split(), nb1=16), e3=dict(diag="a44 a46 a48 a49 a50 a52 a54 a56 a58 a60 a62 attn l_wd l_wo".split(), nb1=16), clk=dict(dbgclk=1), diag=dict(diag=D0), na=dict(diag=D0, alias=0), slow=dict(diag=D0, force_slow=True), fb=dict(force_fb=True),
  d2=dict(diag=D2), d3=dict(diag=D3), d4=dict(diag=D4), r1=dict(diag=D5), r2=dict(diag=D5, rt=1),
  d1=dict(diag="setup xin BX stats norm wkv kvst kvpub q0 q1 q2 q3 BQ slot0".split()))
if __name__ == "__main__":
    t, n = gen()
    open("cdna_kernels/" + NAME + ".s", "w").write(t)
    for nm, kw in V.items(): open(f"k_{nm}.s", "w").write(gen(**kw)[0])
    print("ok; nops", n, "lines", t.count("\n"))
```

```python
import sys, math, struct
from asmlib import Asm
NAME = "sequential_preLN__grouped_kv_mqa__glu_gated_geglu__prompt"
WS_F1, WS_F2, WS_F3, WS_F4 = 0x1000, 0x9000, 0xB000, 0xD000
WS_CS = 0xB80000
WS_KV, WS_HS, WS_O, WS_H, WS_HP, WS_DBG, WS_SIZE = 0x10000, 0x40000, 0x80000, 0x300000, 0x580000, 0xC00000, 0x1000000
def f2u(x): return "0x%08x" % struct.unpack("<I", struct.pack("<f", x))[0]
def vr(a, n): return f"v[{a}:{a+n-1}]" if n > 1 else f"v{a}"
ONES = "0x3f803f80"

class Q:
    def __init__(s, A, name, cap): s.A, s.name, s.cap, s.q, s.done = A, name, cap, [], 0
    def add(s, tag, n=1): s.q += [tag]*n
    def wait(s, tag):
        i = max(i for i, x in enumerate(s.q) if x == tag)
        if i < s.done: return
        k = min(len(s.q) - 1 - i, s.cap); s.done = len(s.q) - k
        s.A(f"s_waitcnt {s.name}({k})")
    def all(s): s.A(f"s_waitcnt {s.name}(0)"); s.done = len(s.q)

def gen(diag=False, force_slow=False, force_fb=False, **opt):
    A = Asm()
    X, WQ, WKV, WO, GU, WD, OUT, WS = ("s[8:11]","s[12:15]","s[16:19]","s[20:23]","s[24:27]","s[28:31]","s[32:35]","s[36:39]")
    sW, sXCD, sIDX, sB, sNB = "s3","s4","s5","s6","s7"
    sT, sXCC, sFAST, sTT, sKH, sTH, sQ = "s40","s41","s42","s43","s44","s45","s46"
    names = []
    def stamp(name):
        if not diag or (name not in diag and name != "start"): return
        if name not in names: names.append(name)
        i = names.index(name); assert i < 15
        A(f"{'s_memrealtime' if opt.get('rt') else 's_memtime'} s[82:83]\ns_waitcnt lgkmcnt(0)\ns_mov_b32 s{84+i}, s82")
    WOFF, vL, vB, vT1 = 240, 245, 246, 247
    XR = 230
    lab = [0]
    def L(p):
        lab[0] += 1; return f"L_{p}{lab[0]}"
    def poll(vaddr, vdst, soff="0", x2=False):
        l0, l1 = L("poll"), L("pdone")
        A(f"s_mov_b32 s78, 0\n{l0}:")
        A(f"buffer_load_dword{'x2' if x2 else ''} {vr(vdst, 2 if x2 else 1)}, v{vaddr}, {WS}, {soff} offen sc1")
        A(f"s_add_u32 s78, s78, 1\ns_cmp_gt_u32 s78, 0x8000\ns_cbranch_scc1 {l1}")
        A(f"s_waitcnt vmcnt(0)\nv_cmp_ne_u32 vcc, {sT}, v{vdst}\ns_cbranch_vccnz {l0}")
        A(f"{l1}:\ns_waitcnt vmcnt(0)")
    def ldsspin(vaddr, vdst, val, off=0):
        l0, l1 = L("spin"), L("spind")
        A(f"""s_mov_b32 s78, 0
        {l0}:
        ds_read_b32 v{vdst}, v{vaddr} offset:{off}
        s_add_u32 s78, s78, 1
        s_cmp_gt_u32 s78, 0x40000
        s_cbranch_scc1 {l1}
        s_waitcnt lgkmcnt(0)
        v_cmp_ne_u32 vcc, {val}, v{vdst}
        s_cbranch_vccnz {l0}
        {l1}:""")
    def stores(lst):
        ls, le = L("slow"), L("stend")
        A(f"s_cmp_eq_u32 {sFAST}, 0\ns_cbranch_scc1 {ls}")
        for sc in ("", " sc1"):
            for st in lst: A(st + sc if st.startswith("buffer_store") else st)
            if not sc: A(f"s_branch {le}\n{ls}:")
        A(f"{le}:")
    def flag(addr_s):
        A(f"v_mov_b32 v{vT1}, {sT}\ns_mov_b64 exec, 1\ns_waitcnt vmcnt(0)")
        stores([f"buffer_store_dword v{vT1}, off, {WS}, {addr_s}"])
        A("s_mov_b64 exec, -1")
    ALIAS = opt.get("alias", 1)
    OB, OST = (WS_HP, 49152) if ALIAS else (WS_O, 20480)
    HSRD, HB = (OUT, 0) if ALIAS else (WS, WS_H)
    LCS = 102400
    def csaddr(dst, t):
        A(f"""
        v_bfe_u32 v{t}, v{vL}, 4, 1
        v_lshrrev_b32 v{dst}, 5, v{vL}
        v_lshl_add_u32 v{dst}, v{t}, 1, v{dst}
        v_lshlrev_b32 v{dst}, 8, v{dst}
        v_bfe_u32 v{t}, v{vL}, 2, 1
        v_lshl_add_u32 v{dst}, v{t}, 5, v{dst}
        v_bfe_u32 v{t}, v{vL}, 3, 1
        v_lshl_add_u32 v{dst}, v{t}, 4, v{dst}
        v_and_b32 v{t}, 3, v{vL}
        v_lshl_add_u32 v{dst}, v{t}, 2, v{dst}
        """)
    def srd(base, lo, size):
        A(f"s_mov_b32 s{base}, s{lo}\ns_mov_b32 s{base+1}, s{lo+1}\ns_mov_b32 s{base+2}, {size}\ns_mov_b32 s{base+3}, 0x00020000")
    def trA(dst, kh_term):
        A(f"v_and_b32 v{vT1}, 3, v{vL}\nv_lshrrev_b32 v{dst}, 2, v{vL}\nv_mul_u32_u24 v{dst}, 160, v{dst}\nv_lshl_add_u32 v{dst}, v{vT1}, 3, v{dst}")
        if kh_term: A(f"v_add_u32 v{dst}, {kh_term}, v{dst}")

    LGU = 40960
    AC4, AR4, NA4, BR4, NB4 = 0, 48, opt.get("na4", 3), 84, 7
    aA0, aA, vF4, vST, vNM, vVAR, vRS = 116, 117, 118, 119, 248, 249, 250
    def p4pro():
        A(f"""
        v_and_b32 v109, 1, v{vL}
        v_bfe_u32 v110, v{vL}, 1, 1
        v_lshl_add_u32 v108, v109, 1, v110
        v_bfe_u32 v109, v{vL}, 2, 3
        v_lshrrev_b32 v110, 5, v{vL}
        v_lshl_add_u32 v111, v110, 4, v109
        v_mul_u32_u24 v111, 96, v111
        v_lshl_add_u32 v111, v108, 3, v111
        v_add_u32 v{aA0}, {LGU}, v111
        v_and_b32 v115, 15, v{vL}
        v_lshlrev_b32 v115, 2, v115
        v_and_b32 v108, 31, v{vL}
        v_lshlrev_b32 v{vF4}, 2, v108
        v_lshlrev_b32 v108, 4, v108
        v_lshl_add_u32 v{vST}, v110, 10, v108
        s_lshl_b32 s68, {sXCD}, 2
        s_add_u32 s68, s68, {sQ}
        s_lshl_b32 s68, s68, 1
        s_add_u32 s68, s68, 1
        s_sub_u32 s68, s68, {sTH}
        s_lshl_b32 s57, s68, 7
        s_add_u32 s57, s57, {WS_F3}
        s_lshl_b32 s58, s68, 11
        s_add_u32 s58, s58, {WS_HS}
        s_mul_i32 s59, s68, 40960
        s_add_u32 s59, s59, {HB}
        s_mul_i32 s60, {sW}, 5120
        s_mul_i32 s61, {sW}, 40960
        s_add_u32 s61, s61, {40*40960}
        s_lshl_b32 s62, {sB}, 8
        s_add_u32 s62, s62, {WS_F4}
        s_mul_i32 s63, {sB}, {4*49152}
        s_add_u32 s63, s63, {WS_HP}
        s_lshl_b32 s64, {sW}, 10
        s_add_u32 s64, s64, s63
        s_add_u32 s64, s64, {40*1024}""")
    def tr5(r, wr, aw, ar):
        if wr:
            for j in range(5): A(f"ds_write_b128 v{aw}, {vr(r+4*j,4)} offset:{1024*j}")
        for ct in range(5):
            for hf in range(2): A(f"ds_read_b64_tr_b16 {vr(r+4*ct+2*hf,2)}, v{ar} offset:{hf*2560+ct*32}")
    LWKV, LKX, LST, LFL, LKP, LQP = 102400, 158720, 160768, 161792, 162048, 102400
    XF, ACC, RING, GOFF = 144, 184, 32, 250
    O_ = (0, 16); S3 = (32, 48, 64); KMb = (80, 84); KTb = (88, 92); Vb = (96, 112); Qm = (128, 134); aK, aT, aV, vIDX = 140, 141, 142, 143
    CT = "s_mov_b64 exec, 3\nglobal_load_dword v203, v2, s[80:81]\ns_mov_b64 exec, -1"
    A(f"""
    s_cmp_ge_u32 s2, 256
    s_cbranch_scc1 L_exit
    s_load_dwordx16 s[52:67], s[0:1], 0
    s_load_dwordx8 s[68:75], s[0:1], 64
    {"s_memtime s[84:85]" if diag else ""}
    s_getpc_b64 s[80:81]
    L_pc:
    v_lshrrev_b32 v1, 6, v0
    v_and_b32 v{vL}, 63, v0
    s_lshr_b32 {sIDX}, s2, 3
    s_lshl_b32 s78, {sIDX}, 11
    v_lshlrev_b32 v253, 7, v{vL}
    v_lshl_add_u32 v2, v1, 8, v253
    v_add_u32 v2, s78, v2
    v_min_u32 v2, L_end-L_pc-4, v2
    {"" if opt.get("cl") else CT}
    v_readfirstlane_b32 {sW}, v1
    s_and_b32 {sXCD}, s2, 7
    s_lshr_b32 {sB}, {sIDX}, 3
    s_and_b32 {sNB}, {sIDX}, 7
    s_lshl_b32 s78, {sXCD}, 2
    s_add_u32 {sB}, {sB}, s78
    s_lshr_b32 {sTT}, {sW}, 1
    s_and_b32 {sKH}, {sW}, 1
    s_lshl_b32 s50, {sB}, 2
    s_add_u32 s50, s50, {sTT}
    s_mul_i32 s78, s50, {16*1280}
    s_mul_i32 s79, {sKH}, 640
    s_add_u32 s78, s78, s79
    v_lshrrev_b32 v209, 3, v{vL}
    v_lshrrev_b32 v210, 4, v{vL}
    v_and_b32 v211, 7, v{vL}
    v_xor_b32 v211, v211, v210
    v_mul_u32_u24 v4, 1280, v209
    v_lshl_add_u32 v4, v211, 4, v4
    v_add_u32 v200, s78, v4
    v_xor_b32 v201, 64, v200
    s_mul_i32 s51, {sW}, 10240
    s_cmp_lt_u32 {sW}, 5
    s_cselect_b32 s78, 0, 25600
    s_add_u32 s51, s51, s78
    s_add_u32 s51, s51, 51200
    s_and_b32 s47, {sNB}, 3
    """)
    def woff():
        A(f"s_mul_i32 s78, {sNB}, 160")
        for j in range(5):
            A(f"""
            v_add_u32 v204, {64*j}, v{vL}
            v_mul_u32_u24 v205, 6554, v204
            v_lshrrev_b32 v205, 16, v205
            v_mul_u32_u24 v206, 10, v205
            v_sub_u32 v206, v204, v206
            v_and_b32 v207, 3, v205
            v_bfe_u32 v208, v205, 2, 2
            v_lshrrev_b32 v204, 4, v205
            v_lshl_add_u32 v207, v208, 3, v207
            v_lshl_add_u32 v207, v204, 2, v207
            v_mul_u32_u24 v207, 1280, v207
            v_lshl_add_u32 v207, v206, 4, v207
            v_add_u32 v{WOFF+j}, s78, v207
            """)
    def common():
        A(f"""
        v_and_b32 v212, 15, v{vL}
        v_and_b32 v221, 31, v{vL}
        v_lshrrev_b32 v222, 5, v{vL}
        v_lshrrev_b32 v211, 1, v212
        v_xor_b32 v211, v211, v210
        v_lshlrev_b32 v211, 4, v211
        v_lshl_add_u32 v207, v212, 7, v211
        v_add_u32 v207, s51, v207
        v_xor_b32 v208, 64, v207
        s_lshl_b32 s78, {sTT}, 8
        s_add_u32 s78, s78, {LST}
        v_lshl_add_u32 v213, v212, 3, s78
        s_lshl_b32 s79, {sKH}, 7
        v_add_u32 v214, s79, v213
        s_lshl_b32 s78, {sW}, 2
        s_add_u32 s78, s78, {LFL}
        v_mov_b32 v215, s78
        v_xor_b32 v217, 4, v215
        v_mov_b32 v216, 1
        """)
        for r in range(4): A(f"v_mov_b32 v{72+r}, {ONES}")
    EA = opt.get("ea", 0)
    if EA >= 1: woff()
    if EA >= 2: common()
    if EA >= 3:
        for r in range(32): A(f"v_mov_b32 v{r}, 0")
    A("s_waitcnt lgkmcnt(0)")
    if diag: names.append("start")
    if opt.get("dbgclk"): A("s_memtime s[84:85]\ns_memrealtime s[86:87]\ns_mov_b32 s92, s72\ns_mov_b32 s93, s73\ns_mov_b32 s94, 256\ns_mov_b32 s95, 0x00020000\ns_waitcnt lgkmcnt(0)")
    if diag:
        for i in range(1, 15): A(f"s_mov_b32 s{84+i}, s84")
    stamp("karg")
    srd(8, 52, 2621440)
    def xloads():
        A("s_movk_i32 s79, 10240")
        for i in range(5):
            A(f"s_add_u32 m0, s51, {1920*i}\nbuffer_load_dwordx4 v200, {X}, 0 offen offset:{128*i} lds")
            A(f"s_add_u32 m0, s51, {1920*i+1024}\nbuffer_load_dwordx4 v201, {X}, s79 offen offset:{128*i} lds")
    def ifkv(lab, kv=True): A(f"s_cmp_{'eq' if kv else 'lg'}_u32 s47, {sTT}\ns_cbranch_scc1 {lab}")
    def srds():
        srd(36, 74, WS_SIZE); srd(12, 54, 819200)
        A(f"s_cmp_lt_u32 {sNB}, 4\ns_cselect_b32 s16, s56, s58\ns_cselect_b32 s17, s57, s59\ns_mov_b32 s18, 25600\ns_mov_b32 s19, 0x00020000")
    def wqdma(js=range(5)):
        for j in js: A(f"s_add_u32 m0, s48, {1024*j}\nbuffer_load_dwordx4 v{WOFF+j}, {WQ}, s49 offen lds")
        if 4 in js: A(f"s_add_u32 s49, s49, {3*40960}\ns_add_u32 s48, s48, 30720")
    def wq1(j):
        l = L("wq"); ifkv(l); wqdma([j]); A(l + ":")
    NL = opt.get("nl", 64); MH = (1 << max(96-NL, 1)) - 1
    def tgu(r, q=None):
        A(f"""s_add_u32 s78, s65, {393216*r}
        s_mov_b64 exec, s[72:73]
        buffer_load_dword v254, v253, {GU}, s78 offen
        s_mov_b64 exec, -1""")
        if q: q.add("t")
    def setup(sx):
        trA(220, None)
        A(f"""
        s_mul_i32 s79, {sKH}, 5120
        v_add_u32 v218, s79, v220
        v_add_u32 v205, 61440, v218
        s_lshl_b32 s78, {sTT}, 4
        v_add_u32 v206, s78, v212
        v_mul_u32_u24 v206, 336, v206
        v_lshl_add_u32 v206, v210, 4, v206
        s_mul_i32 s78, {sKH}, 21504
        s_add_u32 s78, s78, {LQP}
        v_add_u32 v206, s78, v206
        s_lshl_b32 s78, {sXCD}, 12
        s_add_u32 s78, s78, {WS_F1}
        v_lshl_add_u32 v248, v221, 7, s78
        s_mov_b32 s54, 0
        """)
        A(f"s_cmp_ge_u32 {sW}, 4\ns_cbranch_scc1 L_b1{sx}")
        A(f"""
        v_mul_u32_u24 v223, 336, v221
        s_mul_i32 s78, {sQ}, 80
        s_add_u32 s78, s78, {LQP}
        v_add_u32 v223, s78, v223
        v_lshl_add_u32 v224, v222, 5, v223
        v_bfe_u32 v250, v{vL}, 4, 1
        v_mul_u32_u24 v250, 1280, v250
        v_lshl_add_u32 v{aT}, v212, 3, v250
        v_add_u32 v{aT}, 512, v{aT}
        v_lshl_add_u32 v{aK}, v212, 4, v250
        v_lshl_add_u32 v{aK}, v222, 8, v{aK}
        v_and_b32 v250, 3, v{vL}
        v_bfe_u32 v251, v{vL}, 2, 1
        v_bfe_u32 v252, v{vL}, 3, 1
        v_lshl_add_u32 v249, v251, 3, v250
        v_lshl_add_u32 v249, v252, 2, v249
        s_and_b32 s78, {sQ}, 1
        s_lshl_b32 s79, s78, 2
        v_add_u32 v249, s79, v249
        s_lshl_b32 s79, s78, 4
        s_sub_u32 s79, 16, s79
        v_add_u32 v250, s79, v250
        v_cmp_gt_u32 vcc, 16, v221
        v_mul_u32_u24 v251, 20, v222
        v_cndmask_b32 v249, v250, v249, vcc
        v_add_u32 v249, v249, v251
        v_lshlrev_b32 v{aV}, 4, v249
        v_add_u32 v{aV}, 640, v{aV}
        v_mov_b32 v{vIDX}, 0xDDDDDDDD
        s_mov_b32 s76, 0x000fffff
        s_mov_b32 s77, 0x000fffff
        s_mov_b32 s52, 0x01100000
        s_mov_b32 s53, 0x01100000
        v_cndmask_b32 v96, 0, v72, s[52:53]
        """)
        for r in range(1, 32): A(f"v_mov_b32 v{96+r}, v96")
        for r in range(32 if EA < 3 else 0): A(f"v_mov_b32 v{r}, 0")
        A(f"""
        v_mul_u32_u24 v249, 1280, v212
        v_lshl_add_u32 v251, v210, 3, v249
        v_and_b32 v250, 1, v210
        v_lshl_add_u32 v249, v250, 5, v249
        v_lshl_add_u32 v250, v222, 4, v249
        s_lshl_b32 s63, {sB}, 2
        s_add_u32 s63, s63, {sW}
        s_mul_i32 s63, s63, {16*1280}
        s_mul_i32 s57, {sNB}, 160
        s_add_u32 s63, s63, s57
        v_bfe_u32 v226, v{vL}, 4, 1
        v_mul_u32_u24 v226, {OST}, v226
        v_lshl_add_u32 v226, v212, 4, v226
        v_lshl_add_u32 v227, v222, 8, v226
        s_mul_i32 s57, {sB}, {4*OST}
        s_add_u32 s57, s57, {OB}
        s_lshl_b32 s58, {sNB}, 2
        s_add_u32 s58, s58, {sQ}
        s_lshl_b32 s62, {sB}, 7
        s_add_u32 s62, s62, {WS_F2}
        s_lshl_b32 s59, s58, 2
        s_add_u32 s56, s62, s59
        s_mul_i32 s58, s58, 20
        s_add_u32 s59, s58, 4
        s_lshr_b32 s59, s59, 3
        s_lshl_b32 s59, s59, 8
        s_add_u32 s59, s59, s57
        s_and_b32 s60, {sQ}, 1
        s_lshl_b32 s61, s60, 4
        s_sub_u32 s58, s58, s61
        s_add_u32 s58, s58, 16
        s_lshr_b32 s58, s58, 3
        s_lshl_b32 s58, s58, 8
        s_lshl_b32 s60, s60, 3
        s_add_u32 s58, s58, s60
        s_add_u32 s58, s58, s57
        s_add_u32 s60, s58, {2*OST}
        s_add_u32 s61, s59, {2*OST}
        s_mul_i32 s64, {sW}, {OST}
        s_add_u32 s57, s57, s64
        s_add_u32 s57, s57, 16384
        s_mov_b32 s64, 0
        s_mov_b32 s66, {f2u(2.0**-60)}
        s_mov_b32 s67, {f2u(2.0**100)}
        s_mul_i32 s55, {sQ}, {4*40960}
        s_add_u32 s55, s55, {24*40960}
        v_add_u32 v225, 51200, v220
        v_lshlrev_b32 v229, 2, v221
        s_branch L_b2{sx}
        L_b1{sx}:""")
        A(f"s_mul_i32 s78, {sIDX}, 96\ns_mul_i32 s79, {sKH}, 98304\ns_add_u32 s78, s78, s79")
        for i in range(3):
            A(f"""
            v_add_u32 v0, {32*i}, v221
            v_mul_u32_u24 v1, 10923, v0
            v_lshrrev_b32 v1, 16, v1
            v_mul_u32_u24 v2, 6, v1
            v_sub_u32 v2, v0, v2
            v_lshl_add_u32 v1, v222, 4, v1
            v_mul_u32_u24 v1, 3072, v1
            v_lshl_add_u32 v1, v2, 4, v1
            v_add_u32 v{GOFF+i}, s78, v1""")
        A(f"""
        s_mul_i32 s64, {sQ}, 5120
        s_add_u32 s72, {sXCD}, 1
        s_and_b32 s72, s72, 7
        s_add_u32 s73, {sXCD}, {sQ}
        s_add_u32 s73, s73, 2
        s_and_b32 s73, s73, 7
        s_lshr_b32 s57, {sQ}, 1
        s_add_u32 s57, s57, 6
        s_add_u32 s74, {sXCD}, s57
        s_and_b32 s74, s74, 7
        s_add_u32 s78, s64, {WS_KV}
        s_mul_i32 s63, {sXCD}, 20480
        s_add_u32 s63, s63, s78
        s_mul_i32 s60, s72, 20480
        s_add_u32 s60, s60, s78
        s_mul_i32 s61, s73, 20480
        s_add_u32 s61, s61, {WS_KV}
        s_mul_i32 s78, {sKH}, 10240
        s_mul_i32 s59, s74, 20480
        s_add_u32 s59, s59, s78
        s_add_u32 s59, s59, {WS_KV}
        s_mul_i32 s57, s57, 20480
        s_add_u32 s57, s57, s78
        s_mul_i32 s56, {sQ}, 20480
        s_add_u32 s56, s56, 40960
        s_sub_u32 s73, s73, s72
        s_lshl_b32 s73, s73, 12
        s_lshl_b32 s72, s72, 12
        s_add_u32 s72, s72, {WS_F1}
        s_lshl_b32 s74, s74, 12
        s_add_u32 s74, s74, {WS_F1}
        v_lshl_add_u32 v233, v221, 7, s74
        v_mul_lo_u32 v232, v222, s73
        v_lshl_add_u32 v232, v221, 7, v232
        v_add_u32 v232, s72, v232
        s_mul_i32 s62, {sIDX}, 640
        s_add_u32 s62, s62, s61
        s_mul_i32 s58, {sIDX}, 320
        s_add_u32 s58, s58, s59
        s_andn2_b32 s65, {sIDX}, 1
        s_add_u32 s65, s65, {sKH}
        s_mul_i32 s65, s65, {96*128}
        s_mov_b32 s79, {(1 << (min(NL, 63)-32)) - 1}
        s_add_u32 s78, {sIDX}, 1
        s_bitcmp1_b32 s78, 1
        s_cselect_b32 s78, {NL*128}, 0
        s_cselect_b32 s72, {MH & 0xffffffff}, -1
        s_cselect_b32 s73, {MH >> 32}, {-1 if NL >= 64 else 's79'}
        s_add_u32 s65, s65, s78
        s_mul_i32 s74, {sQ}, 192
        s_add_u32 s74, s74, {sIDX}
        s_mul_i32 s74, s74, 1280
        s_lshl_b32 s66, {sIDX}, 2
        s_add_u32 s66, s66, {sQ}
        s_lshl_b32 s78, s66, 9
        v_add_u32 v255, s78, v253
        v_min_u32 v255, L_end-L_pc-4, v255
        s_mul_i32 s67, s66, {50*128}
        s_mul_i32 s66, s66, {60*128}
        s_mul_i32 s55, {sQ}, {6*40960}
        """)
        A(f"v_add_u32 v249, s64, v220\nL_b2{sx}:")
    ifkv("L_a1", False)
    A("s_setprio 2"); xloads(); srds()
    A(f"""
    s_lshr_b32 s78, {sIDX}, 3
    s_lshl_b32 s78, s78, 2
    s_add_u32 s78, s78, s47
    s_lshl_b32 s78, s78, 1
    s_add_u32 s78, s78, {sKH}
    s_mul_i32 s78, s78, {7*128}
    s_mov_b64 exec, 0x7f
    buffer_load_dword v203, v253, {WKV}, s78 offen
    s_mov_b64 exec, -1
    buffer_load_dword v202, off, {WS}, 0 sc1
    s_lshl_b32 s78, {sXCD}, 5
    s_add_u32 s78, s78, {sIDX}
    s_lshl_b32 s78, s78, 7
    s_add_u32 s75, s78, {WS_F1}
    s_mul_i32 s49, {sKH}, 409600
    s_add_u32 s49, s49, {9*40960}
    s_mul_i32 s48, {sKH}, 5120
    s_add_u32 s48, s48, 92160
    v_mov_b32 v219, 0
    s_branch L_a2
    L_a1:""")
    srds()
    A(f"""
    s_sub_u32 s48, {sW}, 2
    s_cmp_gt_u32 {sTT}, s47
    s_cselect_b32 s48, s48, {sW}
    s_mul_i32 s49, {sIDX}, 6
    s_add_u32 s49, s49, s48
    s_add_u32 s78, s49, 224
    s_cmp_lt_u32 s49, 96
    s_cselect_b32 s78, s49, s78
    s_mul_i32 s78, s78, 1280
    s_mov_b64 exec, 0x3ff
    buffer_load_dword v203, v253, {WQ}, s78 offen
    s_mov_b64 exec, -1
    s_mul_i32 s79, s49, {24*128}
    v_add_u32 v204, s79, v253
    v_add_u32 v205, {960*128}, v204
    v_cmp_gt_u32 vcc, {2240*128}, v204
    s_mov_b32 s75, {960*128}
    s_and_b32 s49, s48, 1
    v_cndmask_b32 v219, v205, v204, vcc
    s_mul_i32 s49, s49, 10
    s_lshr_b32 s79, s48, 1
    s_add_u32 s49, s49, s79
    s_mul_i32 s49, s49, 40960
    s_mul_i32 s48, s48, 5120
    L_a2:
    {CT if opt.get("cl") else ""}
    s_getreg_b32 {sXCC}, hwreg(HW_REG_XCC_ID, 0, 4)
    s_lshr_b32 {sTH}, {sW}, 2
    s_and_b32 {sQ}, {sW}, 3
    v_lshlrev_b32 v{vB}, 4, v{vL}
    v_mov_b32 v216, 0
    v_lshlrev_b32 v215, 2, v{vL}
    v_add_u32 v215, {LFL}, v215
    ds_write_b32 v215, v216
    s_mul_i32 s50, s50, 1280
    s_lshr_b32 s79, {sNB}, 2
    s_mul_i32 s79, s79, 640
    s_add_u32 s50, s50, s79
    s_add_u32 s50, s50, {WS_KV}
    """)
    for r in (255, 226, 227, 229, 232, 233, 252): A(f"v_mov_b32 v{r}, 0")
    if EA < 1: woff()
    srd(20, 60, 819200)
    A(f"s_bitcmp1_b32 {sW}, 1\ns_cselect_b32 s24, s66, s64\ns_cselect_b32 s25, s67, s65\ns_mov_b32 s26, 1966080\ns_mov_b32 s27, 0x00020000")
    srd(28, 68, 1966080); srd(32, 70, 2621440)
    A("""    s_mov_b32 s68, 0xAAAAAAAA
    s_mov_b32 s69, 0xAAAAAAAA
    s_mov_b32 s70, 0xCCCCCCCC
    s_mov_b32 s71, 0xCCCCCCCC
""")
    if EA < 2: common()
    setup("n")
    A("s_waitcnt lgkmcnt(0)")
    stamp("setup")
    ifkv("L_c1")
    A("s_barrier")
    xloads()
    TB = opt.get("tb", 1); tb = f"s_mov_b64 exec, 0xffffff\nbuffer_load_dword v203, v219, {WQ}, s75 offen\ns_mov_b64 exec, -1"
    A(f"buffer_load_dword v202, off, {WS}, 0 sc1")
    assert TB == 1
    A(f"s_waitcnt vmcnt({1 if TB == 0 else 0})")
    if TB == 1: A(tb)
    if TB == 3: wqdma(); A(tb)
    A(f"s_branch L_c3\nL_c1:\ns_mul_i32 s78, {sKH}, 12288")
    for j in range(13):
        if j & 3 == 0: A(f"s_add_u32 m0, s78, {LWKV}")
        A(f"buffer_load_dwordx4 v{vB}, {WKV}, s78 offen offset:{1024*(j&3)} lds")
        if j & 3 == 3: A("s_add_u32 s78, s78, 4096")
    A("s_barrier\ns_waitcnt vmcnt(13)\nL_c3:")
    stamp("xin")
    for i in range(5): A(f"ds_read_b128 {vr(XF+8*i,4)}, v207 offset:{2048*i}\nds_read_b128 {vr(XF+8*i+4,4)}, v208 offset:{2048*i}")
    A(f"v_readfirstlane_b32 {sT}, v202\ns_add_u32 {sT}, {sT}, 0x9E3779B9")
    for i in range(10):
        A(f"s_waitcnt lgkmcnt({9-i})"); x = vr(XF+4*i, 4)
        A(f"v_mfma_f32_16x16x32_bf16 v[76:79], v[72:75], {x}, {'0' if i == 0 else 'v[76:79]'}")
        A(f"v_mfma_f32_16x16x32_bf16 v[80:83], {x}, {x}, {'0' if i == 0 else 'v[80:83]'}")
    A(f"""
    v_cndmask_b32 v80, v80, v81, s[68:69]
    v_cndmask_b32 v82, v82, v83, s[68:69]
    v_cndmask_b32 v77, v80, v82, s[70:71]
    s_mov_b32 exec_lo, 0x00F0000F
    s_mov_b32 exec_hi, 0xF0000F00
    ds_write_b64 v214, v[76:77]
    s_mov_b64 exec, -1
    """)
    A("ds_write_b32 v215, v216")
    ifkv("L_e1")
    if TB != 3: wqdma()
    if TB == 2: A(tb)
    A("L_e1:")
    ldsspin(217, 219, 1)
    A(f"""
    L_e2:
    ds_read2_b64 v[76:79], v213 offset1:16
    s_waitcnt lgkmcnt(0)
    v_add_f32 v76, v76, v78
    v_add_f32 v77, v77, v79
    v_mul_f32 v76, {f2u(1/640)}, v76
    v_mul_f32 v77, {f2u(1/640)}, v77
    v_fma_f32 v77, -v76, v76, v77
    v_max_f32 v77, 0, v77
    v_add_f32 v77, {f2u(1e-5)}, v77
    v_rsq_f32 v78, v77
    s_mov_b32 s79, 0xffff0000
    v_mul_f32 v79, v76, v78
    """)
    stamp("stats")
    FU = opt.get("fu", 0)
    if FU: ifkv("L_n1")
    for r0 in range(XF, XF+40, 4):
        for r in range(4): A(f"v_lshlrev_b32 v{80+2*r}, 16, v{r0+r}\nv_and_b32 v{81+2*r}, s79, v{r0+r}")
        if opt.get("pk", 1):
            if r0 == XF: A("v_mov_b32 v76, v78\nv_mov_b32 v77, v78\nv_mul_f32 v78, -1.0, v79\nv_mul_f32 v79, -1.0, v79")
            for r in range(4): A(f"v_pk_fma_f32 {vr(80+2*r,2)}, {vr(80+2*r,2)}, v[76:77], v[78:79]")
        else:
            for r in range(8): A(f"v_fma_f32 v{80+r}, v{80+r}, v78, -v79")
        for r in range(4): A(f"v_cvt_pk_bf16_f32 v{r0+r}, v{80+2*r}, v{81+2*r}")
    stamp("norm")
    ifkv("L_f1", False)
    A("L_n1:")
    KF = 32
    A(f"""
    v_bfe_u32 v209, v{vL}, 2, 2
    v_and_b32 v211, 3, v{vL}
    v_lshl_add_u32 v219, v210, 3, v209
    v_mul_u32_u24 v219, 40, v219
    v_lshl_add_u32 v219, v211, 3, v219
    s_mul_i32 s78, {sKH}, 12800
    s_add_u32 s78, s78, {LWKV}
    v_add_u32 v219, s78, v219
    v_and_b32 v211, 1, v210
    v_add_u32 v204, {LKX}, v{vB}
    s_waitcnt vmcnt(0)
    """)
    stamp("wkv")
    lg = Q(A, "lgkmcnt", 15)
    def rdw(st):
        for tl in range(2):
            for hf in range(2): A(f"ds_read_b64_tr_b16 {vr(KF+8*(st&(3 if FU else 7))+4*tl+2*hf,2)}, v219 offset:{st*1280+hf*160+tl*32}")
        lg.add(st, 4)
    PF = 3 if FU else 4
    for st in range(PF): rdw(st)
    A(f"s_cmp_ge_u32 {sNB}, 4\ns_cbranch_scc1 L_g1")
    sv = (list(lg.q), lg.done)
    for isv in range(2):
        lg.q, lg.done = list(sv[0]), sv[1]
        for st in range(10):
            if FU:
                r0 = XF+4*st
                for r in range(4): A(f"v_lshlrev_b32 v{80+2*r}, 16, v{r0+r}\nv_and_b32 v{81+2*r}, s79, v{r0+r}")
                for r in range(8): A(f"v_fma_f32 v{80+r}, v{80+r}, v78, -v79")
                for r in range(4): A(f"v_cvt_pk_bf16_f32 v{r0+r}, v{80+2*r}, v{81+2*r}")
            lg.wait(st)
            for tl in range(2):
                a_, b_ = vr(KF+8*(st&(3 if FU else 7))+4*tl,4), vr(XF+4*st,4)
                if isv: a_, b_ = b_, a_
                d = vr(ACC+4*tl, 4)
                A(f"v_mfma_f32_16x16x32_bf16 {d}, {a_}, {b_}, {'0' if st == 0 else d}")
            if st + PF < 10: rdw(st+PF)
        if not isv:
            A(f"""
            v_lshlrev_b32 v200, 8, v222
            v_lshl_add_u32 v200, v212, 4, v200
            v_lshl_add_u32 v200, v211, 3, v200
            v_add_u32 v200, {LKP}, v200
            v_lshlrev_b32 v201, 3, v212
            v_add_u32 v201, {LKP+512}, v201
            s_mov_b64 s[52:53], 0xffff
            s_branch L_g2
            L_g1:""")
        else:
            A(f"""
            v_mul_u32_u24 v200, 320, v222
            v_lshl_add_u32 v200, v212, 4, v200
            v_lshl_add_u32 v200, v211, 3, v200
            v_add_u32 v200, {LKP}, v200
            v_add_u32 v201, 256, v200
            s_mov_b32 s52, 0x000f000f
            s_mov_b32 s53, 0x000f000f""")
    A(f"""
    L_g2:
    s_cmp_eq_u32 {sKH}, 0
    s_cbranch_scc1 L_g3
    ds_write_b128 v204, {vr(ACC,4)}
    ds_write_b128 v204, {vr(ACC+4,4)} offset:1024
    ds_write_b32 v215, v216 offset:32
    s_branch L_f3
    L_g3:""")
    ldsspin(217, 219, 1, 32)
    A(f"ds_read_b128 {vr(ACC+8,4)}, v204\nds_read_b128 {vr(ACC+12,4)}, v204 offset:1024\ns_waitcnt lgkmcnt(0)")
    for r in range(8): A(f"v_add_f32 v{ACC+r}, v{ACC+r}, v{ACC+8+r}")
    for r in range(4): A(f"v_cvt_pk_bf16_f32 v{ACC+8+r}, v{ACC+2*r}, v{ACC+1+2*r}")
    A(f"""
    ds_write_b64 v200, {vr(ACC+8,2)}
    s_mov_b64 exec, s[52:53]
    ds_write_b64 v201, {vr(ACC+10,2)}
    s_mov_b32 exec_lo, -1
    s_mov_b32 exec_hi, 0xff
    ds_read_b128 v[132:135], v204 offset:{LKP-LKX}
    s_waitcnt lgkmcnt(0)
    buffer_store_dwordx4 v[132:135], v{vB}, {WS}, s50 offen sc1
    s_mov_b64 exec, -1""")
    stamp("kvst")
    def pub(n):
        A(f"v_mov_b32 v130, {sT}\nv_mov_b32 v131, {sXCC}\ns_mov_b64 exec, 1\ns_waitcnt vmcnt({n})\nbuffer_store_dwordx2 v[130:131], off, {WS}, s75 sc1\ns_mov_b64 exec, -1")
        stamp("kvpub")
    if not opt.get("pl", 0): pub(0)
    A(f"L_f3:\ns_branch L_f2\nL_f1:\nv_and_b32 v217, 7, v{vL}\nv_lshlrev_b32 v217, 2, v217\nv_add_u32 v217, {LFL}, v217")
    ldsspin(217, 219, 1)
    stamp("BX")
    wqdma(); A(f"s_waitcnt vmcnt({6 if TB >= 2 else 5})\nL_f2:\ns_setprio 0\ns_cmp_lt_u32 {sW}, 4\ns_cbranch_scc1 L_f4\ns_setprio 1\ns_branch L_f5\nL_f4:")
    xr = f"buffer_load_dwordx4 {vr(XR,4)}, v250, {X}, s63 offen\nbuffer_load_dwordx2 {vr(XR+4,2)}, v251, {X}, s63 offen offset:64\nbuffer_load_dwordx4 {vr(XR+6,4)}, v250, {X}, s63 offen offset:96"
    if opt.get("pl", 0): ifkv("L_f5")
    A(xr + "\nL_f5:")
    vm = Q(A, "vmcnt", 63)
    def kvdma(src_, dst, add, j0, j1, tag):
        for j in range(j0, j1):
            if j & 3 == 0 or j == j0: A(f"s_add_u32 m0, {dst}, {add + 1024*(j & ~3)}")
            A(f"buffer_load_dwordx4 v{vB}, {WS}, {src_} offen offset:{1024*(j&3)} {opt.get('kvsc', 'sc1')} lds"); vm.add(tag)
            if j & 3 == 3: A(f"s_add_u32 {src_}, {src_}, 4096")
    def stage1():
        kvdma("s60", "s64", 20480, 0, 5, "s1")
        A(f"s_mov_b64 exec, 0x1f\nbuffer_load_dword v254, v253, {WS}, s62 offen {opt.get('tsc', 'sc1')}\ns_mov_b64 exec, -1"); vm.add("t")
    def rdq(st, ct):
        b_, o = (218, st*10240) if st < 6 else (205, (st-6)*10240)
        for hf in range(2): A(f"ds_read_b64_tr_b16 {vr(RING+20*(st&1)+4*ct+2*hf,2)}, v{b_} offset:{o+hf*2560+ct*32}")
    for grp, (s0, s1) in enumerate(((0,3),(3,6),(6,10))):
        A("s_barrier")
        stamp(f"q{grp}")
        for ct in range(5): rdq(s0, ct)
        for st in range(s0, s1):
            for ct in range(5):
                more = st+1 < s1
                if more: rdq(st+1, ct)
                A(f"s_waitcnt lgkmcnt({10 if more else 2*(4-ct)})")
                d = vr(ACC+4*ct,4)
                A(f"v_mfma_f32_16x16x32_bf16 {d}, {vr(RING+20*(st&1)+4*ct,4)}, {vr(XF+4*st,4)}, {'0' if st == 0 else d}")
            if st == 0 and opt.get("pl", 0):
                ifkv("L_i1", False); A(f"s_cmp_lg_u32 {sKH}, 0\ns_cbranch_scc1 L_i4"); pub(0); A(f"L_i4:\ns_cmp_ge_u32 {sW}, 4\ns_cbranch_scc1 L_i1\n{xr}\nL_i1:")
            if st == opt.get("r2st", 0): wqdma()
            if st == opt.get("flst", 4):
                A(f"s_cmp_lt_u32 {sW}, 4\ns_cbranch_scc1 L_h1\nbuffer_load_dwordx2 v[234:235], v248, {WS}, 0 offen sc1\nL_h1:")
            if st == opt.get("ckst", 7):
                A(f"s_cmp_lt_u32 {sW}, 4\ns_cbranch_scc1 L_k0\ns_waitcnt vmcnt(0)\nv_cmp_ne_u32 vcc, {sT}, v234\ns_cbranch_vccnz L_k1")
                kvdma("s63", "s64", 0, 0, 5, "s0")
                A(f"buffer_load_dword v236, v232, {WS}, 0 offen sc1\ns_mov_b32 s54, 1"); tgu(0)
                A("L_k0:\nL_k1:")
            if st == opt.get("xrst", 8):
                A(f"""s_cmp_ge_u32 {sW}, 4
                s_cbranch_scc1 L_k5
                buffer_load_dwordx2 v[254:255], v248, {WS}, 0 offen sc1
                L_k5:""")
        if grp == 0: A("s_waitcnt vmcnt(5)")
        if grp == 1: A(f"s_waitcnt vmcnt(1)\ns_cmp_ge_u32 {sW}, 4\ns_cbranch_scc1 L_k2\ns_waitcnt vmcnt(0)\nL_k2:")
    stamp("q3")
    for ct in range(5):
        A(f"ds_write_b128 v206, {vr(ACC+4*ct,4)} offset:{64*ct}")
    A("s_waitcnt lgkmcnt(0)\ns_barrier")
    stamp("BQ")
    A(f"s_cmp_ge_u32 {sW}, 4\ns_cbranch_scc1 L_loader")

    A("s_setprio 1")
    for q in range(2):
        for p in range(2):
            o = 21504*p + 32*336*q; r = 144 + 24*q + 12*p
            A(f"ds_read_b128 {vr(r,4)}, v224 offset:{o}\nds_read_b128 {vr(r+4,4)}, v224 offset:{o+16}\nds_read_b128 {vr(r+8,4)}, v223 offset:{o+64}")
    A(f"s_mov_b32 s48, 0\ns_mov_b32 s49, -1\nv_mov_b32 v192, {f2u(20**-0.5 * math.log2(math.e))}\nv_cndmask_b32 v194, v192, 0, s[48:49]\nv_mov_b32 v193, v192\nv_mov_b32 v195, v194")
    for q in range(2):
        r0 = 144 + 24*q
        A(f"s_waitcnt lgkmcnt({6-6*q})")
        for r in range(0, 12, 2): A(f"v_pk_add_f32 {vr(r0+r,2)}, {vr(r0+r,2)}, {vr(r0+12+r,2)}")
        for r in range(0, 12, 2): A(f"v_pk_mul_f32 {vr(r0+r,2)}, {vr(r0+r,2)}, {vr(192 if r < 8 else 194,2)}")
        for r in range(6): A(f"v_cvt_pk_bf16_f32 v{Qm[q]+r}, v{r0+2*r}, v{r0+1+2*r}")
    stamp("qrdy")
    A("s_barrier")
    stamp("slot0")
    cur = {"K": 0, "V": 0}
    lg = Q(A, "lgkmcnt", 15)
    def rebase(key, reg, off, span):
        if off + span - cur[key] > 65535:
            A(f"v_add_u32 v{reg}, {off - cur[key]}, v{reg}"); cur[key] = off
        return off - cur[key]
    def rdK(T):
        o = rebase("K", aK, 2560*T, 0); A(f"ds_read_b128 {vr(KMb[T&1],4)}, v{aK} offset:{o}"); lg.add(("K", T))
    tcur = [0]
    def rdT(T):
        if 5*(T+1) - tcur[0] > 255:
            A(f"v_add_u32 v{aT}, {512*(5*T - tcur[0])}, v{aT}"); tcur[0] = 5*T
        A(f"ds_read2st64_b64 {vr(KTb[(T>>1)&1],4)}, v{aT} offset0:{5*T-tcur[0]} offset1:{5*T+5-tcur[0]}"); lg.add(("T", T))
    def rdV(T):
        o = rebase("V", aV, 2560*T, 3840)
        A("s_mov_b64 exec, s[76:77]")
        for i in range(4): A(f"ds_read_b128 {vr(Vb[(T>>1)&1]+4*i,4)}, v{aV} offset:{o+1280*i}")
        A("s_mov_b64 exec, -1"); lg.add(("V", T), 4)
    def m1(u):
        T, q = u >> 1, u & 1; lg.wait(("K", T))
        A(f"v_mfma_f32_32x32x16_bf16 {vr(S3[u%3],16)}, {vr(KMb[T&1],4)}, {vr(Qm[q],4)}, 0")
    def m2(u):
        T, q = u >> 1, u & 1; lg.wait(("T", T & ~1)); S = vr(S3[u%3],16)
        if opt.get("x") != "nom2": A(f"v_mfma_f32_32x32x8_bf16 {S}, {vr(KTb[(T>>1)&1]+2*(T&1),2)}, {vr(Qm[q]+4,2)}, {S}")
    def sm(u, h):
        T, q = u >> 1, u & 1; lg.wait(("V", T & ~1))
        if opt.get("x") == "nosm": return
        if opt.get("x") == "dense":
            b = S3[u%3]+8*h
            for r in range(4): A(f"v_cvt_pk_bf16_f32 v{b+r}, v{b+2*r}, v{b+2*r+1}")
            A(f"s_nop 0\nv_mfma_f32_32x32x16_bf16 {vr(O_[q],16)}, {vr(Vb[(T>>1)&1]+8*(T&1)+4*h,4)}, {vr(b,4)}, {vr(O_[q],16)}"); return
        A(f"v_smfmac_f32_32x32x32_bf16 {vr(O_[q],16)}, {vr(Vb[(T>>1)&1]+8*(T&1)+4*h,4)}, {vr(S3[u%3]+8*h,8)}, v{vIDX}")
    def EX(u, a):
        for r in range(a, a+4): A(f"v_exp_f32 v{S3[u%3]+r}, v{S3[u%3]+r}" if opt.get("x") != "noexp" else "s_nop 1")
    BARS = (12, 28, opt.get("bar2", 94))
    rdK(0); rdT(0); rdK(1); rdV(0)
    m1(0); m2(0)
    for u in range(128):
        if u % 2 == 0: stamp(f"a{u//2}")
        T = u >> 1
        if u == 28: A(f"""
    s_waitcnt vmcnt(0)
    v_cmp_ne_u32 vcc, {sT}, v254
    s_cbranch_vccz L_xok
    buffer_load_dword v255, v248, {WS}, 0 offen offset:4 sc1
    s_waitcnt vmcnt(0)
    L_xok:
    v_cmp_ne_u32 vcc, {sXCC}, v255
    s_cmp_eq_u64 vcc, 0
    s_cselect_b32 {sFAST}, {0 if force_slow else 1}, 0
""")
        if u in BARS: A("s_barrier")
        if u < 127: m1(u+1)
        if u % 2 == 0 and T + 2 < 64: rdK(T+2)
        EX(u, 0)
        if u < 127: m2(u+1)
        if u % 4 == 0 and T + 2 < 64: rdT(T+2)
        EX(u, 4)
        if u > 0: sm(u-1, 0)
        EX(u, 8)
        if u > 0: sm(u-1, 1)
        if u % 4 == 0 and T + 2 < 64: rdV(T+2)
        EX(u, 12)
    sm(127, 0); sm(127, 1)
    A("s_barrier")
    stamp("attn")
    A(f"""
    L_fbret:
    v_cndmask_b32 v144, v12, v8, s[48:49]
    v_cndmask_b32 v146, v28, v24, s[48:49]
    v_rcp_f32 v148, v144
    v_rcp_f32 v150, v146
    v_mov_b32 v149, v148
    v_mov_b32 v151, v150
    """)
    for q in range(2):
        for r in range(0, 12, 2): A(f"v_pk_mul_f32 {vr(O_[q]+r,2)}, {vr(O_[q]+r,2)}, {vr(148+2*q,2)}")
        for r in range(6): A(f"v_cvt_pk_bf16_f32 v{32+6*q+r}, v{O_[q]+2*r}, v{O_[q]+2*r+1}")
    stores([f"buffer_store_dwordx4 v[32:35], v227, {WS}, s59 offen", f"buffer_store_dwordx4 v[38:41], v227, {WS}, s61 offen", "s_mov_b32 exec_hi, 0",
            f"buffer_store_dwordx2 v[36:37], v226, {WS}, s58 offen", f"buffer_store_dwordx2 v[42:43], v226, {WS}, s60 offen"])
    A("s_mov_b32 exec_hi, -1")
    stamp("opre")
    for r in range(0, 12, 2): A(f"v_pk_add_f32 {vr(r,2)}, {vr(r,2)}, {vr(16+r,2)}")
    A(f"""
    v_min_f32 v148, v144, v146
    v_max_f32 v149, v144, v146
    v_pk_add_f32 v[0:1], v[0:1], v[2:3]
    v_pk_add_f32 v[4:5], v[4:5], v[6:7]
    v_pk_add_f32 v[8:9], v[8:9], v[10:11]
    v_cmp_nle_f32 s[50:51], s66, v148
    v_pk_add_f32 v[0:1], v[0:1], v[4:5]
    v_cmp_nge_f32 s[52:53], s67, v149
    v_pk_add_f32 v[0:1], v[0:1], v[8:9]
    v_add_f32 v144, v144, v146
    v_add_f32 v0, v0, v1
    v_add_f32 v0, |v0|, v144
    s_or_b64 s[50:51], s[50:51], s[52:53]
    v_cmp_nge_f32 vcc, {f2u(2.0**126)}, v0
    s_or_b64 s[50:51], s[50:51], vcc
    s_cmp_{'eq' if force_fb else 'lg'}_u64 s[50:51], 0
    s_cselect_b32 s65, 1, 0
    s_cmp_gt_u32 s65, {1 if opt.get("x") else "s64"}
    s_cbranch_scc1 L_fallback
    """)
    AC3, R3 = 80, (100, 120, 140, 200)
    lg = Q(A, "lgkmcnt", 15); vm = Q(A, "vmcnt", 63)
    def rd3(st, ct):
        b, o = (220, st*5120) if st < 10 else (225, (st-10)*5120)
        for hf in range(2): A(f"ds_read_b64_tr_b16 {vr(R3[st&3]+4*ct+2*hf,2)}, v{b} offset:{o+hf*2560+ct*32}")
        lg.add((st, ct), 2)
    for st in (19, 18):
        for ct in range(5): rd3(st, ct)
    flag("s56")
    stamp("oflag")
    for e in range(opt.get("nw1", 2)):
        for j in range(5): A(f"buffer_load_dwordx4 {vr(160+20*e+4*j,4)}, v{WOFF+j}, {WD}, s55 offen")
        A("s_add_u32 s55, s55, 40960")
    for st in (17, 16):
        for ct in range(5): rd3(st, ct)
    A(f"""
    v_permlane16_swap_b32 v{XR}, v{XR+2}
    v_permlane16_swap_b32 v{XR+1}, v{XR+3}
    v_permlane16_swap_b32 v{XR+6}, v{XR+8}
    v_permlane16_swap_b32 v{XR+7}, v{XR+9}
    s_mov_b32 s79, 0xffff0000
    v_and_b32 v221, 15, v{vL}
    v_lshrrev_b32 v222, 5, v{vL}
    v_bfe_u32 v223, v{vL}, 4, 1
    v_lshlrev_b32 v228, 4, v221
    v_lshl_add_u32 v227, v222, 9, v228
    v_lshl_add_u32 v226, v223, 10, v227
    v_lshl_add_u32 v227, v223, 3, v227
    s_lshl_b32 s56, {sB}, 1
    s_add_u32 s56, s56, {sTT}
    s_lshl_b32 s61, {sKH}, 8
    s_mul_i32 s60, s56, 40960
    s_add_u32 s60, s60, s61
    s_mul_i32 s58, {sNB}, 5120
    s_add_u32 s60, s60, s58
    s_add_u32 s60, s60, {HB}
    s_lshl_b32 s58, s56, 11
    s_add_u32 s58, s58, s61
    s_lshr_b32 s59, {sNB}, 1
    s_lshl_b32 s59, s59, 9
    s_add_u32 s58, s58, s59
    s_and_b32 s59, {sNB}, 1
    s_lshl_b32 s59, s59, 3
    s_add_u32 s58, s58, s59
    s_add_u32 s58, s58, {WS_HS}
    s_lshl_b32 s56, s56, 7
    s_lshl_b32 s59, {sNB}, 3
    s_add_u32 s56, s56, s59
    s_lshl_b32 s59, {sKH}, 2
    s_add_u32 s56, s56, s59
    s_add_u32 s56, s56, {WS_F3}
    """)
    for r in range(10): A(f"v_lshlrev_b32 v{AC3+2*r}, 16, v{XR+r}\nv_and_b32 v{AC3+2*r+1}, s79, v{XR+r}")
    poll(229, 223, "s62")
    stamp("S2")
    def ld3(st):
        A(f"buffer_load_dwordx4 {vr(4*st,4)}, v{vB}, {WS}, s57 offen offset:{1024*(st&3)} sc1"); vm.add(st)
        if st & 3 == 0 and st > 0: A("s_sub_u32 s57, s57, 4096")
    NI3, DEP3 = opt.get("p3init", 8), opt.get("p3dep", 12); n3 = [19 - NI3]
    for st in range(19, 19-NI3, -1): ld3(st)
    lg.all()
    stamp("p3i")
    for st in range(19, -1, -1):
        vm.wait(st)
        stamp(f"p3s{st}")
        for ct in range(5):
            lg.wait((st, ct)); d = vr(AC3+4*ct,4)
            if st == 8 and ct == 4: A("s_barrier")
            A(f"v_mfma_f32_16x16x32_bf16 {d}, {vr(R3[st&3]+4*ct,4)}, {vr(4*st,4)}, {d}")
            if ct in (0, 2) and n3[0] >= max(0, st - DEP3): ld3(n3[0]); n3[0] -= 1
            if st - 4 >= 0: rd3(st-4, ct)
    stamp("p3mm")
    for r in range(10): A(f"v_cvt_pk_bf16_f32 v{16+r}, v{AC3+2*r}, v{AC3+2*r+1}")
    A(f"""
    v_permlane16_swap_b32 v16, v18
    v_permlane16_swap_b32 v17, v19
    v_permlane16_swap_b32 v22, v24
    v_permlane16_swap_b32 v23, v25""")
    stores([f"buffer_store_dwordx4 v[16:19], v226, {HSRD}, s60 offen",
            f"buffer_store_dwordx2 v[20:21], v227, {HSRD}, s60 offen offset:2048",
            f"buffer_store_dwordx4 v[22:25], v226, {HSRD}, s60 offen offset:3072"])
    A(f"v_pk_add_f32 v[12:13], {vr(AC3,2)}, {vr(AC3+2,2)}\nv_pk_mul_f32 v[14:15], {vr(AC3,2)}, {vr(AC3,2)}")
    for r in range(1, 10):
        if r > 1: A(f"v_pk_add_f32 v[12:13], v[12:13], {vr(AC3+2*r,2)}")
        A(f"v_pk_fma_f32 v[14:15], {vr(AC3+2*r,2)}, {vr(AC3+2*r,2)}, v[14:15]")
    A(f"""
    v_add_f32 v12, v12, v13
    v_add_f32 v13, v14, v15
    v_mov_b32 v14, v12
    v_mov_b32 v15, v13
    v_permlane16_swap_b32 v12, v14
    v_permlane16_swap_b32 v13, v15
    v_pk_add_f32 v[12:13], v[12:13], v[14:15]
    v_mov_b32 v14, v12
    v_mov_b32 v15, v13
    v_permlane32_swap_b32 v12, v14
    v_permlane32_swap_b32 v13, v15
    v_pk_add_f32 v[12:13], v[12:13], v[14:15]
    s_mov_b64 exec, 0xffff
    """)
    stores([f"buffer_store_dwordx2 v[12:13], v228, {WS}, s58 offen"])
    A("s_mov_b64 exec, -1")
    stamp("p3pre")
    for r in range(10): A(f"v_cvt_pk_bf16_f32 v{XR+r}, v{AC3+2*r}, v{AC3+2*r+1}")
    p4pro()
    flag("s56")
    stamp("hpub")
    A("s_barrier")
    def ldma():
        for j in range(5): A(f"s_add_u32 m0, s60, {1024*j}\nbuffer_load_dwordx4 v{WOFF+j}, {WD}, s55 offen lds")
        A("s_add_u32 s55, s55, 40960")
    ldma()
    A(f"v_add_u32 v222, s60, v{vB}\nv_add_u32 v223, s60, v220")
    A("s_branch L_p4")

    A("L_loader:\ns_setprio 2")
    def touch(srd_, soff, nl, add=0, dst=254):
        A(f"s_add_u32 s78, {soff}, {add}\ns_mov_b32 exec_hi, {(1 << (nl-32)) - 1}\nbuffer_load_dword v{dst}, v253, {srd_}, s78 offen\ns_mov_b32 exec_hi, -1"); vm.add("t")
    A("s_cmp_eq_u32 s54, 1\ns_cbranch_scc1 L_l0")
    poll(248, 234, x2=True)
    kvdma("s63", "s64", 0, 0, 5, "s0")
    A(f"buffer_load_dword v236, v232, {WS}, 0 offen sc1"); tgu(0)
    A("L_l0:\ns_waitcnt vmcnt(2)\ns_barrier")
    stamp("slot0")
    A(f"""
    s_waitcnt vmcnt(1)
    v_cmp_ne_u32 vcc, {sT}, v236
    s_cbranch_vccz L_l1""")
    poll(232, 236)
    A("L_l1:")
    vm.q, vm.done = [], 0
    stage1()
    A(f"""
    L_l2:
    v_cmp_ne_u32 vcc, {sXCC}, v235
    s_nop 1
    s_cmp_eq_u64 vcc, 0
    s_cselect_b32 {sFAST}, {0 if force_slow else 1}, 0""")
    A(f"buffer_load_dword v237, v233, {WS}, 0 offen sc1"); vm.add("fb")
    NB0 = opt.get("nb0", 6)
    kvdma("s61", "s56", 0, 0, NB0, "s2")
    vm.wait("fb")
    stamp("l_s1")
    A(f"v_cmp_ne_u32 vcc, {sT}, v237\ns_mov_b64 exec, 7\ns_cbranch_vccnz L_l4\nbuffer_load_dword v254, v253, {WS}, s58 offen {opt.get('tsc', 'sc1')}\nL_l4:\ns_mov_b64 exec, -1")
    NB1 = opt.get("nb1", 16)
    kvdma("s61", "s56", 0, NB0, NB1, "s2")
    stamp("l_b1"); A("s_barrier"); stamp("l_b1x")
    kvdma("s61", "s56", 0, NB1, 20, "s2")
    A(f"v_cmp_ne_u32 vcc, {sT}, v237\ns_cbranch_vccz L_l3")
    poll(233, 237)
    A("L_l3:"); stamp("l_f6")
    kvdma("s59", "s57", 0, 0, 10, "s6")
    def lgu(s):
        for p in (2*s, 2*s+1):
            A(f"s_mov_b32 s78, {p*2*98304}")
            for i in range(3): A(f"buffer_load_dwordx4 {vr(12*p+4*i,4)}, v{GOFF+i}, {GU}, s78 offen{' nt' if opt.get('nt', 6) & 1 else ''}")
        vm.add(("g", s), 6)
    def wdma(p):
        for j in range(5): A(f"s_add_u32 m0, s64, {1024*j}\nbuffer_load_dwordx4 v{WOFF+j}, {WD}, s55 offen lds")
        A("s_add_u32 s55, s55, 40960"); vm.add(("w", p), 5)
    def wrd(p):
        vm.wait(("w", p)); tr5(120+20*p, 0, 0, 249); A("s_waitcnt lgkmcnt(0)")
    def ctouch(): A("s_mov_b64 exec, 15\nglobal_load_dword v254, v255, s[80:81]\ns_mov_b64 exec, -1"); vm.add("t")
    def twd(ps):
        for p in ps: A(f"s_add_u32 s78, s74, {40960*p}\ns_mov_b64 exec, 0x3ff\nbuffer_load_dword v254, v253, {WD}, s78 offen\ns_mov_b64 exec, -1"); vm.add("t")
    lgu(0); twd([0]); tgu(1, vm); twd([1])
    vm.wait("s6"); stamp("l_kv"); A("s_barrier")
    for p in range(4):
        wdma(p)
        if p < 3: tgu(p+2, vm)
        else: touch(WO, "s67", 50, 0)
        twd([p+2])
        if p in opt.get("ct", (1, 3)): ctouch()
        lgu(p+1)
        wrd(p); stamp(f"l_r{p}")
    stamp("l_gu")
    wdma(4); wrd(4)
    A(f"""
    s_cmp_eq_u32 {sFAST}, 0
    s_cbranch_scc1 L_npt
    s_lshl_b32 s78, {sXCD}, 5
    s_add_u32 s78, s78, {sIDX}
    s_lshl_b32 s78, s78, 2
    s_add_u32 s78, s78, {sQ}
    s_lshr_b32 s79, s78, 3
    s_mul_i32 s79, s79, 49152
    s_add_u32 s79, s79, {WS_HP}
    s_and_b32 s76, s78, 7
    s_mul_i32 s77, s76, 3584
    s_mul_i32 s76, s76, 2560
    s_add_u32 s76, s76, s79
    s_add_u32 s79, s79, s77
    s_add_u32 s79, s79, 20480
    v_add_u32 v248, s79, v253
    s_lshl_b32 s79, s78, 7
    s_add_u32 s79, s79, {WS_HS}
    v_writelane_b32 v248, s79, 28
    s_mul_i32 s78, s78, 2560
    s_add_u32 s77, s78, {HB}
    s_add_u32 s78, s78, {WS_O}
    s_mov_b64 exec, 0xfffff
    buffer_load_dword v254, v253, {WS}, s76 offen sc1""")
    if not ALIAS: A(f"buffer_load_dword v254, v253, {WS}, s78 offen sc1")
    HO = opt.get("ho", 1)
    t1 = f"s_mov_b64 exec, 0xfffff\nbuffer_load_dword v247, v253, {HSRD}, s77 offen sc1"
    t2 = f"s_mov_b64 exec, 0x1fffffff\nbuffer_load_dword v247, v248, {WS}, 0 offen sc1"
    if HO < 2: A(t1)
    if HO < 1: A(t2)
    A(f"s_mov_b64 exec, -1\nL_npt:")
    vm.q, vm.done = [], 0
    A(f"s_mul_i32 s57, {sQ}, 40960")
    stamp("l_wd")
    A("s_barrier")
    def wo(p):
        A(f"s_add_u32 s78, s57, {4*40960*p}")
        for j in range(5): A(f"s_add_u32 m0, s64, {20480*p+1024*j}\nbuffer_load_dwordx4 v{WOFF+j}, {WO}, s78 offen lds")
        vm.add("wo", 5)
    wo(4); wo(3)
    wdma(5); wo(2); wrd(5); wo(1); wo(0)
    if 5 in opt.get("ct", (5,)): A("s_mov_b64 exec, 15\nglobal_load_dword v247, v255, s[80:81]\ns_mov_b64 exec, -1"); vm.add("t")
    touch(WD, "s66", 60, 983040, 247)
    GI = 249
    A(f"s_cmp_eq_u32 {sFAST}, 0\ns_cbranch_scc1 L_npu")
    if HO >= 2: A(t1)
    if HO >= 1: A(t2)
    A(f"s_mov_b64 exec, -1\ns_waitcnt vmcnt({2+HO})\ns_branch L_npv\nL_npu:\ns_waitcnt vmcnt(2)\nL_npv:")
    stamp("l_wo")
    A("s_setprio 0\ns_barrier")
    A(f"""
    s_mul_i32 s78, {sKH}, 6144
    s_lshr_b32 s79, {sQ}, 1
    s_mul_i32 s79, s79, 384
    s_add_u32 s78, s78, s79
    s_add_u32 s78, s78, {LGU+61440}""")
    for i in range(3):
        A(f"""
        v_and_b32 v248, 31, v{vL}
        v_add_u32 v248, {32*i}, v248
        v_mul_u32_u24 v252, 10923, v248
        v_lshrrev_b32 v252, 18, v252
        v_mul_u32_u24 v252, 384, v252
        v_lshl_add_u32 v252, v248, 4, v252
        v_lshrrev_b32 v248, 5, v{vL}
        v_mul_u32_u24 v248, 3072, v248
        v_add3_u32 v{GI+i}, v248, v252, s78""")
    for p in (9, 8, 7, 6):
        for i in range(3): A(f"ds_write_b128 v{GI+i}, {vr(12*p+4*i,4)} offset:{12288*(p-5)}")
    SEL, CSA = 252, 108
    A(f"""
    v_bfe_u32 v248, v{vL}, 3, 1
    v_bfe_u32 v255, v{vL}, 4, 1
    v_cmp_eq_u32 vcc, v248, v255
    v_and_b32 v248, 1, v{vL}
    v_lshlrev_b32 v248, 4, v248
    v_mov_b32 v{SEL}, 0x3f80
    v_lshlrev_b32 v248, v248, v{SEL}
    v_bfe_u32 v255, v{vL}, 1, 2
    v_cndmask_b32 v248, 0, v248, vcc""")
    for r in range(4): A(f"v_cmp_eq_u32 vcc, {r}, v255\nv_cndmask_b32 v{SEL+r}, 0, v248, vcc")
    A("s_waitcnt lgkmcnt(0)")
    for p in range(9, -1, -1):
        for i in range(3):
            d = vr(CSA+4*i,4)
            A(f"v_mfma_f32_16x16x32_bf16 {d}, {vr(SEL,4)}, {vr(12*p+4*i,4)}, {'0' if p == 9 else d}")
    A(f"""
    s_mul_i32 s78, {sQ}, 3072
    s_add_u32 s78, s78, {LGU+61440}
    v_lshlrev_b32 v100, 2, v{vL}
    v_add_u32 v101, s78, v100
    v_and_b32 v248, 15, v{vL}
    v_lshrrev_b32 v102, 5, v{vL}
    v_lshl_add_u32 v248, v102, 4, v248
    v_and_b32 v102, 16, v{vL}
    v_lshl_add_u32 v248, v248, 5, v102
    v_add_u32 v248, s78, v248
    s_lshl_b32 s79, s2, 2
    s_add_u32 s79, s79, {sQ}
    s_lshl_b32 s79, s79, 8
    s_add_u32 s79, s79, {WS_CS}""")
    for i in range(3): A(f"ds_write_b128 v248, {vr(CSA+4*i,4)} offset:{1024*i}")
    for r in range(16): A(f"ds_read_b32 v{84+r}, v101 offset:{192*r}")
    for i in range(3): A(f"v_subrev_u32 v{GI+i}, 61440, v{GI+i}")
    A("s_waitcnt lgkmcnt(0)")
    for s in (8, 4, 2, 1):
        for r in range(s): A(f"v_add_f32 v{84+r}, v{84+r}, v{84+s+r}")
    A(f"buffer_store_dword v84, v100, {WS}, s79 offen\ns_waitcnt vmcnt(0)\nbuffer_load_dword v254, v100, {WS}, s79 offen sc1")
    p4pro()
    stamp("l_g1")
    A("s_barrier")
    for p in range(6):
        for i in range(3): A(f"ds_write_b128 v{GI+i}, {vr(12*p+4*i,4)} offset:{12288*p}")
    A("s_waitcnt lgkmcnt(0)\ns_setprio 2")
    stamp("l_g0")
    A("s_barrier")

    A("L_p4:")
    stamp("GB")
    lg = Q(A, "lgkmcnt", 15); vm = Q(A, "vmcnt", 63)
    def rdA4(st, i):
        if st % 20 == 0 and i == 0: A(f"v_add_u32 v{aA}, {61440*(st//20)}, v{aA0}")
        for hf in range(2): A(f"ds_read_b64_tr_b16 {vr(AR4+12*(st%NA4)+4*i+2*hf,2)}, v{aA} offset:{(st%20)*3072+hf*768+i*32}")
        lg.add((st, i), 2)
    for st in range(NA4-1):
        for i in range(3): rdA4(st, i)
    poll(115, 114, "s57")
    stamp("S3")
    def ldB4(st):
        A(f"buffer_load_dwordx4 {vr(BR4+4*(st%NB4),4)}, v{vB}, {HSRD}, s59 offen offset:{1024*(st&3)} sc1"); vm.add(st)
        if st & 3 == 3: A("s_add_u32 s59, s59, 4096")
    NI, DEP = opt.get("p4init", 3), opt.get("p4dep", 6)
    for st in range(NI): ldB4(st)
    nld = NI
    stamp("p4issued")
    SST, SDM = 8, 40 - DEP
    for st in range(40):
        vm.wait(st)
        stamp(f"p4s{st}")
        for i in range(3):
            if st + NA4 - 1 < 40: rdA4(st+NA4-1, i)
            lg.wait((st, i)); d = vr(AC4+16*i,16)
            A(f"v_mfma_f32_32x32x16_bf16 {d}, {vr(AR4+12*(st%NA4)+4*i,4)}, {vr(BR4+4*(st%NB4),4)}, {'0' if st == 0 else d}")
            if i < 2 and nld < min(40, st + 1 + DEP): ldB4(nld); nld += 1
        if st == 2: A(f"s_mul_i32 s65, {sKH}, 49152\nv_add_u32 v251, s65, v{vB}\ns_sub_u32 s65, 49152, s65\nv_add_u32 v252, s65, v{vB}")
        if st == 3: csaddr(250, 247)
        if st == 4:
            A(f"s_lshl_b32 s78, s2, 10\ns_add_u32 s78, s78, {WS_CS}")
            for i in range(3): A(f"buffer_load_dword v{253+i}, v250, {WS}, s78 offen offset:{64*i} sc1"); vm.add("cs")
        if st in (16, 24):
            vm.wait(("st", st))
            if st == 16: A(f"v_add_f32 v{vNM}, v112, v114\nv_add_f32 v{vVAR}, v113, v115")
            else: A(f"v_add_f32 v112, v112, v114\nv_add_f32 v113, v113, v115\nv_add_f32 v{vNM}, v{vNM}, v112\nv_add_f32 v{vVAR}, v{vVAR}, v113")
        if st in (8, 16): A(f"buffer_load_dwordx4 v[112:115], v{vST}, {WS}, s58 offen offset:{64*(st-8)} sc1"); vm.add(("st", st+8))
        if SDM <= st < SDM + 5:
            j = st - SDM
            A(f"s_add_u32 m0, s60, {1024*j}\nbuffer_load_dwordx4 v{WOFF+j}, {WD}, s61 offen lds"); vm.add("dma")
        LS = opt.get("ls", (5, 9, 17, 21, 25))
        if st in LS:
            A(f"s_cmp_ge_u32 {sW}, 4\ns_cbranch_scc1 L_ls{st}")
            k = LS.index(st)
            if k == 1: ldma()
            else: tr5((120, 0, 140, 160, 180)[k], k > 2, 222, 223)
            A(f"L_ls{st}:")
        c1 = -2*math.sqrt(2/math.pi)*math.log2(math.e); c2 = c1*0.044715
        if st == 28: A(f"""
            v_mov_b32 v114, v{vNM}
            v_mov_b32 v115, v{vVAR}
            v_permlane32_swap_b32 v{vNM}, v114
            v_permlane32_swap_b32 v{vVAR}, v115
            v_add_f32 v{vNM}, v{vNM}, v114
            v_add_f32 v{vVAR}, v{vVAR}, v115
            v_mul_f32 v{vNM}, {f2u(-1/640)}, v{vNM}
            v_mul_f32 v{vVAR}, {f2u(1/640)}, v{vVAR}""")
        if st == 29: A(f"""
            v_fma_f32 v{vVAR}, -v{vNM}, v{vNM}, v{vVAR}
            v_max_f32 v{vVAR}, 0, v{vVAR}
            v_add_f32 v{vVAR}, {f2u(1e-5)}, v{vVAR}
            v_rsq_f32 v{vRS}, v{vVAR}
            v_cvt_pk_bf16_f32 v114, v{vNM}, v{vNM}
            v_and_b32 v115, 0xffff0000, v114
            v_sub_f32 v115, v{vNM}, v115""")
        if st == 30: A(f"""
            v_mul_f32 v119, {f2u(c1)}, v{vRS}
            v_mul_f32 v116, v{vRS}, v{vRS}
            v_mul_f32 v116, v116, v{vRS}
            v_mul_f32 v116, {f2u(c2)}, v116
            s_mul_i32 s58, s68, 98304
            s_mul_i32 s78, {sIDX}, 1536
            s_add_u32 s58, s58, s78
            s_add_u32 s58, s58, {WS_HP}
            s_lshl_b32 s56, s68, 7
            s_lshl_b32 s78, {sIDX}, 2
            s_add_u32 s56, s56, s78
            s_add_u32 s56, s56, {WS_F4}""")
        if st == 31: A(f"""
            v_and_b32 v112, 15, v{vL}
            v_bfe_u32 v113, v{vL}, 4, 1
            v_lshrrev_b32 v114, 5, v{vL}
            v_mul_u32_u24 v113, 49152, v113
            v_lshl_add_u32 v113, v112, 4, v113
            v_lshl_add_u32 v113, v114, 8, v113""")
        if st == 35: A(f"v_cvt_pk_bf16_f32 v104, v{vNM}, v115\nv_mov_b32 v106, 0\nv_mov_b32 v107, 0\nv_mov_b32 v105, v104")
        if st == 38:
            A("v_mov_b32 v117, v113")
            for i in range(3):
                A(f"""v_cvt_pk_bf16_f32 v{60+4*i}, v{253+i}, v{253+i}
                v_and_b32 v114, 0xffff0000, v{60+4*i}
                v_sub_f32 v114, v{253+i}, v114
                v_cvt_pk_bf16_f32 v{61+4*i}, v114, v114
                v_mov_b32 v{62+4*i}, 0
                v_mov_b32 v{63+4*i}, 0""")
        if st == opt.get("f4st", 39): A(f"buffer_load_dword v112, v{vF4}, {WS}, s62 offen sc1"); vm.add("f4")
    assert nld == 40
    stamp("p4mm")
    F0, AC5 = 0, 20
    BL = {1: [[60+8*u for u in range(7)]]*2, 0: [[92, 100, 108, 200, 208], [60, 68, 76, 84, 216]]}
    WR = {1: [F0] + [120+20*u for u in range(6)], 0: [F0, 160, 180, 120, 140]}
    def ldB5(role, ps, vmq):
        if ps == 0: A(f"s_mul_i32 s65, {sQ}, {(6, 4)[1-role]*1024}\ns_add_u32 s65, s65, s63" + ("" if role else f"\ns_add_u32 s65, s65, {24*1024}"))
        else: A(f"s_add_u32 s64, s64, 98304\ns_add_u32 s65, s65, {98304 - (4096 if role else 0)}")
        for u in range(len(WR[role])):
            if u == 5: A("s_add_u32 s65, s65, 4096")
            for tt in range(2):
                A(f"buffer_load_dwordx4 {vr(BL[role][ps][u]+4*tt,4)}, v{251+tt}, {WS}, {'s64' if u == 0 else 's65'} offen offset:{1024*((u-1)&3) if u else 0} sc1")
            vmq.add((ps, u), 2)
    for i in range(3):
        d = vr(AC4+16*i,16)
        A(f"v_mfma_f32_32x32x16_bf16 {d}, {vr(60+4*i,4)}, v[104:107], {d}")
    A(f"s_cmp_lt_u32 {sW}, 4\ns_cbranch_scc1 L_ep\ns_setprio 0\nL_ep:")
    def f4chk():
        lx_, ly_ = L("x"), L("y")
        A(f"s_cmp_ge_u32 {sW}, 4\ns_cbranch_scc1 {lx_}")
        vm.wait("f4")
        A(f"v_cmp_ne_u32 vcc, {sT}, v112\ns_cbranch_vccz {ly_}")
        poll(vF4, 112, "s62")
        A(f"{ly_}:")
        ldB5(0, 0, Q(A, "vmcnt", 63))
        A(f"{lx_}:")
    T0 = 72
    for i in range(3):
        g, u, t = AC4+16*i, AC4+16*i+8, T0
        if i == opt.get("f4i", 1): f4chk()
        for r in range(8): A(f"v_mul_f32 v{t+r}, v{g+r}, v{g+r}")
        for r in range(8): A(f"v_fma_f32 v{t+r}, v{t+r}, v116, v119")
        for r in range(8): A(f"v_mul_f32 v{t+r}, v{t+r}, v{g+r}")
        for r in range(8): A(f"v_exp_f32 v{t+r}, v{t+r}")
        for r in range(8): A(f"v_mul_f32 v{u+r}, v{u+r}, v{g+r}")
        for r in range(8): A(f"v_fma_f32 v{t+r}, v{t+r}, v{vVAR}, v{vVAR}")
        for r in range(8): A(f"v_rcp_f32 v{t+r}, v{t+r}")
        for r in range(8): A(f"v_mul_f32 v{u+r}, v{u+r}, v{t+r}")
        for r in range(4): A(f"v_cvt_pk_bf16_f32 v{80+4*i+r}, v{u+2*r}, v{u+2*r+1}")
    stamp("p4pre")
    stores([f"buffer_store_dwordx4 {vr(80+4*i,4)}, v117, {WS}, s58 offen offset:{512*i}{' nt' if opt.get('nt', 6) & 2 else ''}" for i in range(3)])
    aW, a0, aP0, aP1 = 248, 249, 250, 253
    A(f"v_add_u32 v{aW}, s60, v{vB}")
    trA(a0, "s60")
    A(f"""
    s_mul_i32 s78, {sKH}, 40960
    s_add_u32 s79, s78, 40960
    v_add_u32 v{aP0}, s79, v{aW}
    s_sub_u32 s79, 81920, s78
    v_add_u32 v{aP1}, s79, v{aW}
    s_waitcnt vmcnt(3)
    s_cmp_ge_u32 {sW}, 4
    s_cbranch_scc1 L_p5l""")
    def mm5(role, ps, vmq, hook=None):
        for u in range(len(WR[role])):
            if vmq: vmq.wait((ps, u))
            stamp(f"p5s{ps}{u}")
            for ct in range(5):
                for tt in range(2):
                    d = vr(AC5+20*tt+4*ct,4)
                    A(f"v_mfma_f32_16x16x32_bf16 {d}, {vr(WR[role][u]+4*ct,4)}, {vr(BL[role][ps][u]+4*tt,4)}, {d if (u or (tt == 0 and not role)) else '0'}")
            if hook: hook(u)
    def flush(ps, mid=""):
        for tt in range(2):
            if tt: A(mid)
            for ct in range(5): A(f"ds_write_b128 v{(aP0, aP1)[tt]}, {vr(AC5+20*tt+4*ct,4)} offset:{1024*ct}")
        if ps == 0:
            A(f"s_mul_i32 s78, {sKH}, 122880\nv_add_u32 v{aP0}, s78, v{aW}\ns_sub_u32 s78, 122880, s78\nv_add_u32 v{aP1}, s78, v{aW}")
    def resid(ps):
        A(f"s_cmp_eq_u32 {sTT}, {ps}\ns_cselect_b32 s78, 0xffff0000, 0\ns_cselect_b32 s79, 0x10000, 0")
        for r in range(10): A(f"v_mul_u32_u24 v{AC5+2*r}, s79, v{XR+r}\nv_and_b32 v{AC5+2*r+1}, s78, v{XR+r}")
    A("s_add_u32 s62, s62, 128")
    tr5(F0, 0, aW, a0)
    resid(0)
    flag("s56")
    if opt.get("wt", 0) & 2:
        for i in range(3): A(f"buffer_store_dwordx4 {vr(80+4*i,4)}, v117, {WS}, s58 offen offset:{512*i} {opt.get('wtf', 'sc1')}")
    stamp("hppub")
    A("s_barrier")
    stamp("BG")
    A("s_waitcnt lgkmcnt(0)")
    def hk(u):
        if u == 2: A(f"buffer_load_dword v112, v{vF4}, {WS}, s62 offen sc1")
    mm5(0, 0, None, hk)
    stamp("p5a")
    lz = L("z")
    A(f"s_waitcnt vmcnt(0)\nv_cmp_ne_u32 vcc, {sT}, v112\ns_cbranch_vccz {lz}")
    flush(0)
    poll(vF4, 112, "s62")
    vm = Q(A, "vmcnt", 63); ldB5(0, 1, vm)
    A(f"s_branch {lz}b\n{lz}:")
    vm = Q(A, "vmcnt", 63); ldB5(0, 1, vm)
    flush(0)
    A(f"{lz}b:")
    stamp("S4")
    resid(1)
    mm5(0, 1, vm)
    A("s_branch L_p5e\nL_p5l:")
    tr5(F0, 0, aW, a0)
    flag("s56")
    if opt.get("wt", 0) & 1:
        for i in range(3): A(f"buffer_store_dwordx4 {vr(80+4*i,4)}, v117, {WS}, s58 offen offset:{512*i} {opt.get('wtf', 'sc1')}")
    stamp("hppub")
    A("s_setprio 0")
    poll(vF4, 112, "s62")
    stamp("S4e")
    vm = Q(A, "vmcnt", 63); ldB5(1, 0, vm)
    A("s_add_u32 s62, s62, 128\ns_waitcnt lgkmcnt(0)")
    mm5(1, 0, vm)
    stamp("p5a")
    A("s_barrier")
    stamp("BG")
    flush(0)
    A("s_setprio 1")
    poll(vF4, 112, "s62")
    stamp("S4")
    ldB5(1, 1, vm)
    mm5(1, 1, vm)
    A("L_p5e:")
    stamp("p5mm")
    flush(1)
    A(f"""
    s_add_u32 s78, {sQ}, 1
    s_cmp_eq_u32 {sQ}, 2
    s_cselect_b32 s78, 0, s78
    s_min_u32 s78, s78, 3
    s_mul_i32 s78, s78, 40960
    s_mul_i32 s79, {sTH}, 3072
    s_add_u32 s78, s78, s79
    v_add_u32 v1, s78, v{vB}
    v_and_b32 v2, 15, v{vL}
    v_lshrrev_b32 v3, 4, v{vL}
    v_mul_u32_u24 v2, 1280, v2
    v_lshl_add_u32 v5, v3, 3, v2
    v_and_b32 v4, 1, v3
    v_lshrrev_b32 v3, 1, v3
    v_lshl_add_u32 v2, v4, 5, v2
    v_lshl_add_u32 v4, v3, 4, v2
    s_lshl_b32 s56, {sB}, 2
    s_add_u32 s56, s56, {sQ}
    s_mul_i32 s56, s56, {16*1280}
    s_mul_i32 s57, {sNB}, 160
    s_add_u32 s56, s56, s57
    s_mul_i32 s57, {sTH}, 96
    s_add_u32 s56, s56, s57
    s_waitcnt lgkmcnt(0)
    s_barrier
    """)
    stamp("p5x")
    ost = (lambda l: A(l[0] + " sc1")) if opt.get("wt", 0) & 4 else stores
    l5, l6 = L("t5"), L("t6")
    for c in range(3):
        if c == 2: A(f"s_cmp_eq_u32 {sTH}, 1\ns_cbranch_scc1 {l5}")
        for q in range(8): A(f"ds_read_b128 {vr(64+32*c+4*q,4)}, v1 offset:{1024*c+5120*q}")
    A(f"{l5}:")
    for c in range(3):
        r = 64+32*c
        A(f"s_waitcnt lgkmcnt({8 if c == 0 else 0})")
        for s in (16, 8, 4):
            for k in range(0, s, 2): A(f"v_pk_add_f32 {vr(r+k,2)}, {vr(r+k,2)}, {vr(r+s+k,2)}")
        A(f"v_cvt_pk_bf16_f32 v{10+2*c}, v{r}, v{r+1}\nv_cvt_pk_bf16_f32 v{11+2*c}, v{r+2}, v{r+3}")
        if c == 1:
            A("v_permlane16_swap_b32 v10, v12\nv_permlane16_swap_b32 v11, v13")
            ost([f"buffer_store_dwordx4 v[10:13], v4, {OUT}, s56 offen{' nt' if opt.get('nt', 6) & 4 else ''}"])
            A(f"s_cmp_eq_u32 {sTH}, 1\ns_cbranch_scc1 {l6}")
    ost([f"buffer_store_dwordx2 v[14:15], v5, {OUT}, s56 offen offset:64{' nt' if opt.get('nt', 6) & 4 else ''}"])
    A(f"{l6}:")
    le = L("ep")
    A(f"""
    s_add_u32 s78, s2, {sW}
    s_cmp_lg_u32 s78, 0
    s_cbranch_scc1 {le}
    v_mov_b32 v46, {sT}
    s_mov_b64 exec, 1
    buffer_store_dword v46, off, {WS}, 0 sc1
    s_mov_b64 exec, -1
    {le}:""")
    if opt.get("dbgclk"):
        A(f"""s_waitcnt vmcnt(0)
        s_and_b32 s78, s2, 63
        s_add_u32 s78, s78, {sW}
        s_cmp_lg_u32 s78, 0
        s_cbranch_scc1 L_exit
        s_memtime s[88:89]
        s_memrealtime s[90:91]
        s_waitcnt lgkmcnt(0)
        s_sub_u32 s88, s88, s84
        v_mov_b32 v0, s88
        v_mov_b32 v1, s86
        v_mov_b32 v2, s90
        v_mov_b32 v3, {sFAST}
        s_lshr_b32 s78, s2, 2
        s_mov_b64 exec, 1
        buffer_store_dwordx4 v[0:3], off, s[92:95], s78""")
    if diag:
        A("s_waitcnt vmcnt(0)")
        stamp("end")
        A(f"s_lshl_b32 s78, s2, 3\ns_add_u32 s78, s78, {sW}\ns_lshl_b32 s78, s78, 6\ns_add_u32 s78, s78, {WS_DBG}\ns_mov_b64 exec, 1")
        A(f"s_mov_b32 s99, {sFAST}")
        for i in range(16): A(f"v_mov_b32 v{i}, s{84+i}")
        for i in range(4): A(f"buffer_store_dwordx4 {vr(4*i,4)}, off, {WS}, s78 offset:{16*i}")
    A("L_exit:\ns_endpgm")
    def fm(q):
        S = vr(S3[q],16)
        A(f"v_mfma_f32_32x32x16_bf16 {S}, v[80:83], {vr(Qm[q],4)}, 0\nv_mfma_f32_32x32x8_bf16 {S}, v[88:89], {vr(Qm[q]+4,2)}, {S}")
    A(f"""
    L_fallback:
    v_subrev_u32 v{aK}, {cur['K']}, v{aK}
    v_subrev_u32 v{aT}, {512*tcur[0]}, v{aT}
    v_subrev_u32 v{aV}, {cur['V']}, v{aV}
    v_mov_b32 v144, 0xff800000
    v_mov_b32 v145, 0xff800000
    s_mov_b32 s63, {WS_KV}
    s_nop 7
    L_fb1:
    buffer_load_dwordx4 v[80:83], v{aK}, {WS}, s63 offen sc1
    buffer_load_dwordx2 v[88:89], v{aT}, {WS}, s63 offen sc1
    s_waitcnt vmcnt(0)""")
    fm(0); fm(1)
    for q in range(2):
        for r in range(0, 16, 2): A(f"v_max3_f32 v{144+q}, v{144+q}, v{S3[q]+r}, v{S3[q]+r+1}")
    A(f"""
    s_add_u32 s63, s63, 2560
    s_cmp_lt_u32 s63, {WS_KV+163840}
    s_cbranch_scc1 L_fb1
    v_mov_b32 v146, v144
    v_mov_b32 v147, v145
    v_permlane32_swap_b32 v144, v146
    v_permlane32_swap_b32 v145, v147
    v_max_f32 v144, v144, v146
    v_max_f32 v145, v145, v147
    s_mov_b32 s63, {WS_KV}""")
    for r in range(32): A(f"v_mov_b32 v{r}, 0")
    A(f"""
    s_nop 7
    L_fb2:
    buffer_load_dwordx4 v[80:83], v{aK}, {WS}, s63 offen sc1
    buffer_load_dwordx2 v[88:89], v{aT}, {WS}, s63 offen sc1
    s_mov_b64 exec, s[76:77]
    buffer_load_dwordx4 v[96:99], v{aV}, {WS}, s63 offen sc1
    buffer_load_dwordx4 v[100:103], v{aV}, {WS}, s63 offen offset:1280 sc1
    s_mov_b64 exec, -1
    s_waitcnt vmcnt(0)""")
    fm(0); fm(1)
    for q in range(2):
        for r in range(16): A(f"v_sub_f32 v{S3[q]+r}, v{S3[q]+r}, v{144+q}")
        for r in range(16): A(f"v_exp_f32 v{S3[q]+r}, v{S3[q]+r}")
    for q in range(2):
        for h in range(2): A(f"v_smfmac_f32_32x32x32_bf16 {vr(O_[q],16)}, {vr(96+4*h,4)}, {vr(S3[q]+8*h,8)}, v{vIDX}")
    A(f"""
    s_add_u32 s63, s63, 2560
    s_cmp_lt_u32 s63, {WS_KV+163840}
    s_nop 7
    s_cbranch_scc1 L_fb2
    s_mov_b32 s64, 1
    s_nop 7
    s_branch L_fbret
    L_end:""")
    hdr = open("cdna_kernels/" + NAME + ".s.ref").read().split("\n")
    k0 = next(i for i, l in enumerate(hdr) if l.startswith(NAME + "_kernel:"))
    k1 = next(i for i, l in enumerate(hdr) if l.startswith(".section .rodata"))
    head = [("; @launch grid=(256,1,1) block=(512,1,1) lds=163840" if l.startswith("; @launch") else l) for l in hdr[:k0+1]]
    if diag: head.insert(1, "; stamps: " + " ".join(names))
    return "\n".join(head) + "\n" + A.text() + "    s_endpgm\n" + "\n".join(hdr[k1:]), A.nops

D0 = "xin kvpub BQ slot0 attn S2 hpub S3 p4mm hppub p5a S4 p5mm end".split()
D2 = "BQ slot0 l_s1 a8 l_kv a16 a32 l_gu l_wd a48 a56 l_wo attn".split()
D3 = "attn opre oflag S2 p3s10 p3mm p3pre hpub l_wo l_g1 l_g0 GB S3 p4s0".split()
D4 = "GB S3 p4s0 p4s20 p4mm p4pre hppub S4e p5a BG S4 p5mm p5x end".split()
D5 = "xin BQ slot0 a16 a32 a48 attn hpub p4s0 p4s20 p4mm hppub p5mm end".split()
D6 = "BQ slot0 l_s1 a16 a48 a56 l_kv l_r0 l_r1 l_r2 l_gu l_wd l_wo attn".split()
D7 = "slot0 a48 l_gu l_wd l_wo attn oflag S2 hpub S3 p4mm hppub p5mm end".split()
V = dict(n1=dict(nt=1), n2=dict(nt=2), n4=dict(nt=4), t0=dict(diag="karg setup xin wkv stats norm kvpub q0 q1 q2 q3 BQ slot0".split()), t1=dict(diag="karg setup xin wkv stats norm kvpub q0 q1 q2 q3 BQ slot0".split(), cl=1), t2=dict(diag="karg setup xin wkv stats norm kvpub q0 q1 q2 q3 BQ slot0".split(), ea=1), t3=dict(diag="karg setup xin wkv stats norm kvpub q0 q1 q2 q3 BQ slot0".split(), ea=3), e5=dict(diag=D7, ho=0), e6=dict(diag=D7, ho=1), e7=dict(diag=D7, ho=2), e4=dict(diag=D0, ct=()), e1=dict(diag=D6), e2=dict(diag="slot0 a0 a2 a4 a6 a7 a10 a14 a15 a18 l_s1 l_b1 l_f6 l_kv".split(), nb1=16), e3=dict(diag="a44 a46 a48 a49 a50 a52 a54 a56 a58 a60 a62 attn l_wd l_wo".split(), nb1=16), clk=dict(dbgclk=1), diag=dict(diag=D0), na=dict(diag=D0, alias=0), slow=dict(diag=D0, force_slow=True), fb=dict(force_fb=True),
  d2=dict(diag=D2), d3=dict(diag=D3), d4=dict(diag=D4), r1=dict(diag=D5), r2=dict(diag=D5, rt=1),
  d1=dict(diag="setup xin BX stats norm wkv kvst kvpub q0 q1 q2 q3 BQ slot0".split()))
if __name__ == "__main__":
    t, n = gen()
    open("cdna_kernels/" + NAME + ".s", "w").write(t)
    for nm, kw in V.items(): open(f"k_{nm}.s", "w").write(gen(**kw)[0])
    print("ok; nops", n, "lines", t.count("\n"))
```
